```python
import torch

def _softmax(x, axis=-1):
    return torch.softmax(x, dim=axis)
def _gelu(x):
    return torch.nn.functional.gelu(x, approximate="tanh")
def _silu(x):
    return torch.nn.functional.silu(x)
def _sigmoid(x):
    return torch.sigmoid(x)
def _layernorm(x, axis=-1, eps=1e-5):
    m = x.mean(dim=axis, keepdim=True)
    v = x.var(dim=axis, keepdim=True, unbiased=False)
    return (x - m) / torch.sqrt(v + eps)
def _scatter_add(tgt, idx, src, axis=0):
    return tgt.clone().index_add_(axis, idx, src)
def _segment_sum(src, seg, n):
    out = torch.zeros((n,) + src.shape[1:], dtype=src.dtype)
    return out.index_add_(0, seg, src)
def _pad(x, pw):
    flat = tuple(v for pair in reversed(pw) for v in pair)
    return torch.nn.functional.pad(x, flat)

kernel_name = 'standalone__mha_block__prompt'

def setup_inputs():

    _w = (lambda a: (lambda t: t.to(torch.bfloat16) if t.is_floating_point() else t)(torch.as_tensor(a)))
    B, S, D, H = 1, 2048, 448, 16
    return {
        "x": _w((lambda *s: torch.randn(*s, dtype=torch.bfloat16) * 0.2)(B, S, D)),
        "wqkv": _w((lambda *s: torch.randn(*s, dtype=torch.bfloat16) * 0.2)(D, 3 * D)),
        "wo": _w((lambda *s: torch.randn(*s, dtype=torch.bfloat16) * 0.05)(D, D)),
    }

def reference(x, wqkv, wo):
    B, S, D = x.shape
    H = 16
    Dh = D // H
    qkv = (lambda x, *d: x.permute(*d))((x @ wqkv).reshape(B, S, 3, H, Dh), 2, 0, 3, 1, 4)
    q, k, v = qkv[0], qkv[1], qkv[2]
    scores = torch.einsum("bhqd,bhkd->bhqk", q, k) * (Dh ** -0.5)
    p = _softmax(scores, axis=-1)
    o = torch.einsum("bhqk,bhkd->bhqd", p, v)
    return (lambda x, *d: x.permute(*d))(o, 0, 2, 1, 3).reshape(B, S, D) @ wo
```

```python
import sys, math

S_TOK, D, H, DH = 2048, 448, 16, 28
QF_OFF = 0
KV_OFF = 2 << 20
OF_OFF = 6 << 20
WS_USED = 8 << 20
QSCALE = math.log2(math.e) / math.sqrt(DH)


def f32bits(x):
    import struct
    return struct.unpack("<I", struct.pack("<f", x))[0]


class Asm:
    def __init__(self):
        self.l = []

    def __call__(self, s):
        self.l.append("  " + s)

    def label(self, s):
        self.l.append(s + ":")

    def raw(self, s):
        self.l.append(s)

    def text(self):
        return "\n".join(self.l) + "\n"


def vr(a, n):
    return f"v[{a}:{a+n-1}]"


def kernel_head(A, name):
    A.raw(f".globl {name}")
    A.raw(".p2align 8")
    A.raw(f".type {name},@function")
    A.label(name)


def kernel_desc(name, vgpr, sgpr):
    acc = (vgpr + 3) // 4 * 4
    return f""".p2align 6
.amdhsa_kernel {name}
  .amdhsa_next_free_vgpr {vgpr}
  .amdhsa_next_free_sgpr {sgpr}
  .amdhsa_accum_offset {acc}
  .amdhsa_group_segment_fixed_size 0
  .amdhsa_kernarg_size 48
  .amdhsa_user_sgpr_count 2
  .amdhsa_user_sgpr_kernarg_segment_ptr 1
  .amdhsa_system_sgpr_workgroup_id_x 1
.end_amdhsa_kernel
"""


def mfma(A, d, a, b, c):
    cs = "0" if c is None else vr(c, 16)
    A(f"v_mfma_f32_32x32x16_bf16 {vr(d,16)}, {vr(a,4)}, {vr(b,4)}, {cs}")


K1_GRID = 248
K1_LDS_W = 0
K1_LDS_X = 65536
K1_LDS = 65536 + 7 * 12288


def gen_k1(A):
    name = "qkv_kernel"
    kernel_head(A, name)
    A(f"s_cmp_ge_u32 s2, {K1_GRID}")
    A("s_cbranch_scc1 K1_END")
    A("s_load_dwordx4 s[16:19], s[0:1], 0")
    A("s_load_dwordx2 s[4:5], s[0:1], 40")
    A("s_and_b32 s20, s2, 7")
    A("s_mul_i32 s20, s20, 31")
    A("s_lshr_b32 s21, s2, 3")
    A("s_add_u32 s20, s20, s21")
    A("s_cmp_ge_u32 s20, 242")
    A("s_cbranch_scc1 K1_END")
    A("s_cmp_ge_u32 s20, 132")
    A("s_cbranch_scc1 K1_RIGHT")
    A("s_mul_i32 s21, s20, 171")
    A("s_lshr_b32 s21, s21, 10")
    A("s_mul_i32 s23, s21, 6")
    A("s_sub_u32 s22, s20, s23")
    A("s_branch K1_MAPPED")
    A.label("K1_RIGHT")
    A("s_sub_u32 s23, s20, 132")
    A("s_mul_i32 s21, s23, 205")
    A("s_lshr_b32 s21, s21, 10")
    A("s_mul_i32 s24, s21, 5")
    A("s_sub_u32 s22, s23, s24")
    A("s_add_u32 s22, s22, 6")
    A.label("K1_MAPPED")
    A("v_lshrrev_b32 v1, 6, v0")
    A("v_and_b32 v2, 63, v0")
    A("v_readfirstlane_b32 s25, v1")
    A("s_waitcnt lgkmcnt(0)")
    A("s_mov_b32 s8, s4"); A("s_mov_b32 s9, s5"); A(f"s_mov_b32 s10, {WS_USED}"); A("s_mov_b32 s11, 0x00020000")
    A("s_mov_b32 s28, s16"); A("s_mov_b32 s29, s17"); A(f"s_mov_b32 s30, {S_TOK*D*2}"); A("s_mov_b32 s31, 0x00020000")
    A("s_mov_b32 s32, s18"); A("s_mov_b32 s33, s19"); A(f"s_mov_b32 s34, {D*3*D*2}"); A("s_mov_b32 s35, 0x00020000")
    A("s_cmp_lt_u32 s25, 4")
    A("s_cbranch_scc1 K1_COMPUTE")

    A("s_sub_u32 s25, s25, 4")
    A("s_lshl_b32 s26, s21, 1")
    A("s_add_u32 s26, s26, s22")
    A("s_mul_i32 s27, s26, 37")
    A("s_lshr_b32 s27, s27, 8")
    A("s_mul_i32 s27, s27, 7")
    A("s_sub_u32 s26, s26, s27")
    A("v_lshrrev_b32 v3, 3, v2")
    A("v_and_b32 v4, 7, v2")
    A("v_lshrrev_b32 v5, 1, v3")
    A("s_and_b32 s27, s25, 1")
    A("s_lshl_b32 s27, s27, 2")
    A("v_add_u32 v5, s27, v5")
    A("v_and_b32 v5, 7, v5")
    A("v_xor_b32 v4, v4, v5")
    A("v_mul_u32_u24 v3, 896, v3")
    A("v_lshl_add_u32 v3, v4, 4, v3")
    A("v_lshrrev_b32 v6, 4, v2")
    A("v_and_b32 v7, 15, v2")
    A("v_lshlrev_b32 v8, 2, v6")
    A("v_xor_b32 v7, v7, v8")
    A("v_mul_u32_u24 v6, 2688, v6")
    A("v_lshl_add_u32 v6, v7, 4, v6")
    A("s_lshl_b32 s27, s22, 4")
    A("v_add_u32 v7, s27, v7")
    A("v_mov_b32 v8, 0x40000000")
    A("v_cmp_le_u32 vcc, 168, v7")
    A("s_nop 1")
    A("v_cndmask_b32 v6, v6, v8, vcc")
    A("s_mul_i32 s36, s21, 96")
    A("s_lshl_b32 s27, s25, 3")
    A("s_add_u32 s36, s36, s27")
    A("s_mul_i32 s36, s36, 896")
    A(f"s_mul_i32 s37, s25, {4*2688}")
    A("s_lshl_b32 s27, s22, 8")
    A("s_add_u32 s37, s37, s27")
    A("s_lshl_b32 s38, s25, 10")

    def chunk_of(tau):
        A(f"s_add_u32 s40, s26, {tau}")
        A("s_cmp_ge_u32 s40, 7")
        A("s_cselect_b32 s41, 7, 0")
        A("s_sub_u32 s40, s40, s41")

    def load_w(tau):
        chunk_of(tau)
        A(f"s_mul_i32 s41, s40, {64*2688}")
        A("s_add_u32 s41, s41, s37")
        for i in range(4):
            A(f"s_add_u32 s42, s38, {K1_LDS_W + (tau % 4) * 16384 + i * 4096}")
            A("s_mov_b32 m0, s42")
            A(f"s_add_u32 s43, s41, {i * 16 * 2688}")
            A("buffer_load_dwordx4 v6, s[32:35], s43 offen lds")

    def load_x(tau):
        chunk_of(tau)
        A("s_lshl_b32 s41, s40, 7")
        A("s_add_u32 s41, s41, s36")
        for i in range(3):
            A(f"s_add_u32 s42, s38, {K1_LDS_X + tau * 12288 + i * 4096}")
            A("s_mov_b32 m0, s42")
            A(f"s_add_u32 s43, s41, {i * 32 * 896}")
            A("buffer_load_dwordx4 v3, s[28:31], s43 offen lds")

    for t in range(4):
        load_w(t)
        load_x(t)
    load_x(4)
    A("s_waitcnt vmcnt(24)")
    A("s_barrier")
    A("s_waitcnt vmcnt(17)")
    A("s_barrier")
    load_w(4); load_x(5)
    A("s_waitcnt vmcnt(17)")
    A("s_barrier")
    load_w(5); load_x(6)
    A("s_waitcnt vmcnt(17)")
    A("s_barrier")
    load_w(6)
    A("s_waitcnt vmcnt(14)")
    A("s_barrier")
    A("s_waitcnt vmcnt(7)")
    A("s_barrier")
    A("s_waitcnt vmcnt(0)")
    A("s_barrier")
    A("s_cmp_ge_u32 s20, 128")
    A("s_cbranch_scc1 K1_END")
    A("s_lshl_b32 s40, s20, 2")
    A("s_add_u32 s40, s40, s25")
    A("s_lshl_b32 s40, s40, 13")
    A(f"s_add_u32 s40, s40, {KV_OFF}")
    A("v_lshrrev_b32 v3, 5, v2")
    A("v_and_b32 v4, 31, v2")
    A("v_lshlrev_b32 v3, 12, v3")
    A("v_lshl_add_u32 v3, v4, 4, v3")
    A("v_mov_b32 v8, 0x3f803f80")
    A("v_mov_b32 v9, 0x00003f80")
    A(f"buffer_store_dwordx2 v[8:9], v3, s[8:11], s40 offen offset:{1024+512+8}")
    A("v_lshrrev_b32 v3, 4, v2")
    A("v_lshlrev_b32 v3, 12, v3")
    A("v_bfe_u32 v4, v2, 3, 1")
    A("v_lshl_add_u32 v3, v4, 10, v3")
    A("v_bfe_u32 v4, v2, 2, 1")
    A("v_lshl_add_u32 v3, v4, 9, v3")
    A("v_and_b32 v4, 3, v2")
    A("v_lshl_add_u32 v3, v4, 4, v3")
    A("v_cmp_eq_u32 vcc, 0, v4")
    A("v_mov_b32 v5, 0x3f803f80")
    A("s_nop 0")
    A("v_cndmask_b32 v8, 0, v5, vcc")
    A("v_mov_b32 v9, v8"); A("v_mov_b32 v10, v8"); A("v_mov_b32 v11, v8")
    A("s_mov_b64 exec, 0xffffffff")
    A(f"buffer_store_dwordx4 v[8:11], v3, s[8:11], s40 offen offset:{2048+28*16}")
    A("s_branch K1_END")

    A.label("K1_COMPUTE")
    A("s_lshl_b32 s26, s22, 2")
    A("s_add_u32 s26, s26, s25")
    A("v_and_b32 v3, 31, v2")
    A("v_lshrrev_b32 v4, 5, v2")
    A("v_bfe_u32 v5, v3, 1, 3")
    for ks in range(4):
        A(f"v_add_u32 v6, {2*ks}, v4")
        A("v_xor_b32 v6, v6, v5")
        A("v_lshlrev_b32 v6, 4, v6")
        A(f"v_lshl_add_u32 v{8+ks}, v3, 7, v6")
        A(f"v_add_u32 v{8+ks}, {K1_LDS_X}, v{8+ks}")
    A("v_and_b32 v5, 15, v2")
    A("v_lshrrev_b32 v6, 2, v5")
    A("v_bfe_u32 v7, v2, 4, 1")
    A("v_lshlrev_b32 v7, 1, v7")
    A("v_bfe_u32 v13, v5, 1, 1")
    A("v_add_u32 v7, v7, v13")
    A("s_lshl_b32 s27, s25, 2")
    A("v_add_u32 v7, s27, v7")
    A("v_lshlrev_b32 v13, 2, v6")
    A("v_xor_b32 v7, v7, v13")
    A("v_lshl_add_u32 v6, v4, 3, v6")
    A("v_lshlrev_b32 v12, 8, v6")
    A("v_lshl_add_u32 v12, v7, 4, v12")
    A("v_and_b32 v13, 1, v5")
    A("v_lshl_add_u32 v12, v13, 3, v12")
    ACC = 16
    for r in range(48):
        A(f"v_mov_b32 v{ACC+r}, 0")
    XF = 64
    WF = 112
    A("s_cmp_ge_u32 s26, 42")
    A("s_cbranch_scc1 K1_IDLE")
    A("s_cmp_ge_u32 s26, 28")
    A("s_cbranch_scc1 K1_VLOOP")

    def mainloop(transposed):
        for tau in range(7):
            A("s_barrier")
            if tau == 4:
                for ks in range(4):
                    A(f"v_add_u32 v{8+ks}, {4*12288}, v{8+ks}")
            tx = tau if tau < 4 else tau - 4

            def rds(ks):
                for rd in range(2):
                    A(f"ds_read_b64_tr_b16 {vr(WF+4*ks+2*rd,2)}, v12 offset:{(tau%4)*16384 + ks*4096 + rd*1024}")
                for rt in range(3):
                    A(f"ds_read_b128 {vr(XF+12*ks+4*rt,4)}, v{8+ks} offset:{tx*12288 + rt*4096}")
            for ks in range(3):
                rds(ks)
            for ks in range(4):
                if ks == 1:
                    rds(3)
                for rt in range(3):
                    left = ((2 if ks == 0 else 3) - ks) * 5 + (2 - rt)
                    A(f"s_waitcnt lgkmcnt({left})")
                    if transposed:
                        mfma(A, ACC + 16 * rt, WF + 4 * ks, XF + 12 * ks + 4 * rt, ACC + 16 * rt)
                    else:
                        mfma(A, ACC + 16 * rt, XF + 12 * ks + 4 * rt, WF + 4 * ks, ACC + 16 * rt)

    mainloop(True)
    A("s_cmp_ge_u32 s26, 14")
    A("s_cselect_b32 s27, 14, 0")
    A(f"s_cselect_b32 s36, {KV_OFF}, {QF_OFF}")
    A("s_cselect_b32 s37, 12, 11")
    A(f"s_cselect_b32 s38, 1.0, {f32bits(QSCALE):#x}")
    A("s_sub_u32 s27, s26, s27")
    A("s_lshl_b32 s27, s27, 3")
    A("s_add_u32 s39, s37, 6")
    for g in range(4):
        A(f"v_add_u32 v5, {2*g}, v4")
        A("v_add_u32 v5, s27, v5")
        A("v_mul_u32_u24 v6, 147, v5")
        A("v_lshrrev_b32 v6, 10, v6")
        A("v_mul_u32_u24 v7, 7, v6")
        A("v_sub_u32 v5, v5, v7")
        A(f"v_lshlrev_b32 v{8+g}, s39, v6")
        A("v_lshrrev_b32 v7, 2, v5")
        A(f"v_lshl_add_u32 v{8+g}, v7, 10, v{8+g}")
        A("v_and_b32 v7, 1, v5")
        A(f"v_lshl_add_u32 v{8+g}, v7, 9, v{8+g}")
        A("v_bfe_u32 v7, v5, 1, 1")
        A(f"v_lshl_add_u32 v{8+g}, v7, 3, v{8+g}")
        A(f"v_lshl_add_u32 v{8+g}, v3, 4, v{8+g}")
    A("v_mov_b32 v14, s38")
    A("v_mov_b32 v15, s38")
    A("s_mul_i32 s40, s21, 3")
    for rt in range(3):
        if rt == 1:
            A("s_cmp_eq_u32 s21, 21")
            A("s_cbranch_scc1 K1_END")
        A(f"s_add_u32 s41, s40, {rt}")
        A("s_lshl_b32 s41, s41, s37")
        A("s_add_u32 s41, s41, s36")
        a = ACC + 16 * rt
        for p in range(8):
            A(f"v_pk_mul_f32 {vr(a+2*p,2)}, {vr(a+2*p,2)}, v[14:15]")
        for p in range(8):
            A(f"v_cvt_pk_bf16_f32 v{XF+8*rt+p}, v{a+2*p}, v{a+2*p+1}")
        for g in range(4):
            A(f"buffer_store_dwordx2 {vr(XF+8*rt+2*g,2)}, v{8+g}, s[8:11], s41 offen")
    A("s_branch K1_END")

    A.label("K1_VLOOP")
    mainloop(False)
    A("s_sub_u32 s27, s26, 28")
    A("s_lshl_b32 s27, s27, 5")
    A("v_add_u32 v5, s27, v3")
    A("v_mul_u32_u24 v6, 2341, v5")
    A("v_lshrrev_b32 v6, 16, v6")
    A("v_mul_u32_u24 v7, 28, v6")
    A("v_sub_u32 v5, v5, v7")
    A("v_lshlrev_b32 v8, 18, v6")
    A("v_lshl_add_u32 v5, v4, 5, v5")
    A("v_lshl_add_u32 v8, v5, 4, v8")
    A("s_mul_i32 s40, s21, 3")
    A("s_nop 4")
    for rt in range(3):
        if rt == 1:
            A("s_cmp_eq_u32 s21, 21")
            A("s_cbranch_scc1 K1_END")
        A(f"s_add_u32 s41, s40, {rt}")
        A("s_lshl_b32 s41, s41, 12")
        A(f"s_add_u32 s41, s41, {KV_OFF}")
        a = ACC + 16 * rt
        for p in range(8):
            A(f"v_cvt_pk_bf16_f32 v{XF+8*rt+p}, v{a+2*p}, v{a+2*p+1}")
        for tt in range(2):
            A(f"buffer_store_dwordx4 {vr(XF+8*rt+4*tt,4)}, v8, s[8:11], s41 offen offset:{2048+1024*tt}")
    A("s_branch K1_END")

    A.label("K1_IDLE")
    for tau in range(7):
        A("s_barrier")
    A.label("K1_END")
    A("s_endpgm")
    return name, 128, 48


K2_LDS_FLAG = 49152
K2_LDS_MX = 49152 + 256
K2_LDS = 49152 + 256 + 2048


def gen_k2(A):
    name = "attn_kernel"
    kernel_head(A, name)
    Q = 8
    O = 40
    SB = [104, 120]
    P = 136
    KVB = 144
    K0T = 208
    T2, T3 = 216, 232
    VOFF = 248
    NV = 252

    def Kreg(b, s): return KVB + 16 * b + 4 * s
    def Vreg(b, t): return KVB + 16 * b + 8 + 4 * t
    def Qreg(i, s): return Q + 8 * i + 4 * s

    A("s_cmp_ge_u32 s2, 256")
    A("s_cbranch_scc1 K2_END")
    A("s_load_dwordx2 s[4:5], s[0:1], 40")
    A("v_lshrrev_b32 v1, 6, v0")
    A("v_and_b32 v2, 63, v0")
    A("v_readfirstlane_b32 s20, v1")
    A("v_lshlrev_b32 v3, 4, v2")
    A("s_and_b32 s21, s2, 7")
    A("s_lshl_b32 s21, s21, 1")
    A("s_bfe_u32 s22, s2, 0x10003")
    A("s_add_u32 s21, s21, s22")
    A("s_lshr_b32 s22, s2, 4")
    for j in range(4):
        A(f"v_add_u32 v{VOFF+j}, {j*4096}, v3")
    A("s_mov_b32 s34, 0")
    A("s_lshl_b32 s23, s21, 18")
    A(f"s_add_u32 s23, s23, {KV_OFF}")
    A("s_lshl_b32 s24, s20, 16")
    A("s_add_u32 s24, s24, s23")
    A("s_lshl_b32 s25, s21, 17")
    A("s_lshl_b32 s26, s22, 13")
    A("s_add_u32 s25, s25, s26")
    A("s_waitcnt lgkmcnt(0)")
    A("s_mov_b32 s8, s4"); A("s_mov_b32 s9, s5"); A(f"s_mov_b32 s10, {WS_USED}"); A("s_mov_b32 s11, 0x00020000")
    A("s_add_u32 s12, s4, s24"); A("s_addc_u32 s13, s5, 0"); A("s_mov_b32 s14, 65536"); A("s_mov_b32 s15, 0x00020000")
    for i in range(4):
        A(f"s_add_u32 s26, s20, {i}")
        A("s_and_b32 s26, s26, 3")
        A("s_lshl_b32 s26, s26, 11")
        A("s_add_u32 s26, s26, s25")
        for s in range(2):
            A(f"buffer_load_dwordx4 {vr(Qreg(i,s),4)}, v3, s[8:11], s26 offen offset:{1024*s}")
    for s in range(2):
        A(f"buffer_load_dwordx4 {vr(K0T+4*s,4)}, v3, s[8:11], s23 offen offset:{1024*s}")

    def kv_prologue_loads():
        for b in range(4):
            for s in range(2):
                A(f"buffer_load_dwordx4 {vr(Kreg(b,s),4)}, v{VOFF+b}, s[12:15], 0 offen offset:{1024*s}")
            if b < 3:
                for t in range(2):
                    A(f"buffer_load_dwordx4 {vr(Vreg(b,t),4)}, v{VOFF+b}, s[12:15], 0 offen offset:{2048+1024*t}")

    def zero_state():
        for r in range(64):
            A(f"v_mov_b32 v{O+r}, 0")
        for r in range(4):
            A(f"v_mov_b32 v{P+4+r}, 0")
            A(f"v_mov_b32 v{Vreg(3,1)+r}, 0")

    kv_prologue_loads()
    zero_state()
    A(f"v_mov_b32 v4, {K2_LDS_FLAG}")
    A("v_mov_b32 v5, 0")
    A("ds_write_b32 v4, v5")
    for i in range(1, 4):
        A(f"s_add_u32 s26, s20, {i}")
        A("s_and_b32 s26, s26, 3")
        A("s_mul_i32 s26, s26, 12288")
        A(f"s_add_u32 s26, s26, {(i-1)*4096}")
        A(f"v_add_u32 v{3+i}, s26, v3")
    A("s_mul_i32 s26, s20, 12288")
    A("v_add_u32 v7, s26, v3")
    A("s_waitcnt vmcnt(14)")
    A("s_mov_b32 s28, 0")
    A("s_mov_b32 s29, -1")
    A("s_mov_b64 exec, s[28:29]")
    for i in range(4):
        A(f"v_mov_b32 v{Qreg(i,1)+2}, 0")
        A(f"v_mov_b32 v{Qreg(i,1)+3}, 0")
    A("s_mov_b64 exec, -1")
    A("s_nop 1")
    TMP = [SB[0], SB[1], T2, T3]
    for i in range(4):
        mfma(A, TMP[i], K0T, Qreg(i, 0), None)
        mfma(A, TMP[i], K0T + 4, Qreg(i, 1), TMP[i])
    A("s_nop 7")
    for i in range(4):
        t = TMP[i]
        A(f"v_max3_f32 v{t}, v{t}, v{t+1}, v{t+2}")
        for k in range(3, 15, 2):
            A(f"v_max3_f32 v{t}, v{t}, v{t+k}, v{t+k+1}")
        A(f"v_max_f32 v{t}, v{t}, v{t+15}")
    A("s_mov_b64 exec, s[28:29]")
    for i in range(4):
        A(f"v_cvt_pk_bf16_f32 v{Qreg(i,1)+2}, -v{TMP[i]}, 0")
    A("s_mov_b64 exec, -1")

    A.label("K2_MAIN")
    A("s_mov_b32 s30, 16384")
    A("s_mov_b32 s31, 0")
    A("s_waitcnt vmcnt(10)")
    mfma(A, SB[0], Kreg(0, 0), Qreg(0, 0), None)
    mfma(A, SB[0], Kreg(0, 1), Qreg(0, 1), SB[0])
    A("s_nop 7")
    A("s_nop 3")
    A.raw(".p2align 6")
    A.label("K2_LOOP")
    for tb in range(4):
        for qt in range(4):
            u = tb * 4 + qt
            sc = SB[u % 2]
            sn = SB[(u + 1) % 2]
            ntb, nqt = (tb, qt + 1) if qt < 3 else ((tb + 1) % 4, 0)
            ptb, pqt = (tb, qt - 1) if qt > 0 else ((tb + 3) % 4, 3)

            def ex(k, extra=()):
                extra = list(extra)
                for j in range(4):
                    A(f"v_exp_f32 v{sc+4*k+j}, v{sc+4*k+j}")
                    if extra:
                        A(extra.pop(0))
                assert not extra
                A(f"v_cvt_pk_bf16_f32 v{P+2*k}, v{sc+4*k}, v{sc+4*k+1}")
                A(f"v_cvt_pk_bf16_f32 v{P+2*k+1}, v{sc+4*k+2}, v{sc+4*k+3}")
            if qt == 3:
                A("s_waitcnt vmcnt(8)")
            mfma(A, sn, Kreg(ntb, 0), Qreg(nqt, 0), None)
            e = []
            if qt == 3:
                e = [f"buffer_load_dwordx4 {vr(Kreg(tb,s),4)}, v{VOFF+tb}, s[12:15], s30 offen offset:{1024*s}" for s in range(2)]
            if qt == 1:
                b = (tb + 3) % 4
                so = "s30" if tb >= 1 else "s31"
                e = [f"buffer_load_dwordx4 {vr(Vreg(b,t),4)}, v{VOFF+b}, s[12:15], {so} offen offset:{2048+1024*t}" for t in range(2)]
            ex(0, e)
            mfma(A, O + 16 * pqt, Vreg(ptb, 1), P + 4, O + 16 * pqt)
            ex(1)
            mfma(A, sn, Kreg(ntb, 1), Qreg(nqt, 1), sn)
            ex(2)
            mfma(A, O + 16 * qt, Vreg(tb, 0), P, O + 16 * qt)
            e = []
            if tb == 3 and qt == 3:
                e = ["s_add_u32 s31, s31, 16384", "s_add_u32 s30, s30, 16384", f"s_cmp_lt_u32 s31, 65536"]
            ex(3, e)
    A("s_cbranch_scc1 K2_LOOP")
    A("s_nop 0")
    mfma(A, O + 48, Vreg(3, 1), P + 4, O + 48)
    for i in (1, 2, 3):
        if i == 3:
            A("s_nop 7")
        for g in range(4):
            A(f"ds_write_b128 v{3+i}, {vr(O+16*i+4*g,4)} offset:{1024*g}")
    A("s_waitcnt lgkmcnt(0)")
    A("s_barrier")
    R = KVB
    for sl in range(3):
        for g in range(4):
            A(f"ds_read_b128 {vr(R+16*sl+4*g,4)}, v7 offset:{4096*sl+1024*g}")
    for sl in range(3):
        for g in range(4):
            A(f"s_waitcnt lgkmcnt({11-4*sl-g})")
            for p in range(2):
                A(f"v_pk_add_f32 {vr(O+4*g+2*p,2)}, {vr(O+4*g+2*p,2)}, {vr(R+16*sl+4*g+2*p,2)}")
    L = SB[0]
    A(f"v_mov_b32 v{L}, v{O+12}")
    A(f"v_mov_b32 v{L+1}, v{O+12}")
    A(f"v_add_f32 v{L+4}, |v{O}|, |v{O+1}|")
    A(f"v_add_f32 v{L+4}, v{L+4}, |v{O+2}|")
    A(f"v_permlane32_swap_b32 v{L}, v{L+1}")
    for r in range(3, 16):
        A(f"v_add_f32 v{L+4}, v{L+4}, |v{O+r}|")
    A(f"v_rcp_f32 v{L+2}, v{L+1}")
    A(f"v_mov_b32 v{L+5}, 0x7f800000")
    A(f"v_mov_b32 v{L+3}, v{L+2}")
    for p in range(8):
        A(f"v_pk_mul_f32 {vr(O+2*p,2)}, {vr(O+2*p,2)}, {vr(L+2,2)}")
    for p in range(8):
        A(f"v_cvt_pk_bf16_f32 v{R+p}, v{O+2*p}, v{O+2*p+1}")
    A("s_mov_b64 exec, s[28:29]")
    A(f"v_mov_b32 v{R+6}, 0")
    A(f"v_mov_b32 v{R+7}, 0")
    A("s_mov_b64 exec, -1")
    A("s_lshl_b32 s26, s22, 2")
    A("s_add_u32 s26, s26, s20")
    A("s_lshl_b32 s26, s26, 4")
    A("s_add_u32 s26, s26, s21")
    A("s_lshl_b32 s26, s26, 11")
    A(f"s_add_u32 s26, s26, {OF_OFF}")
    for s in range(2):
        A(f"buffer_store_dwordx4 {vr(R+4*s,4)}, v3, s[8:11], s26 offen offset:{1024*s}")
    A("s_cmp_lg_u32 s34, 0")
    A("s_cbranch_scc1 K2_END")
    A(f"v_cmp_nlt_f32 vcc, v{L+4}, v{L+5}")
    A(f"v_mov_b32 v{L+5}, {f32bits(2.0**-40):#x}")
    A(f"v_cmp_nge_f32 s[36:37], v{L+1}, v{L+5}")
    A("s_nop 1")
    A("s_or_b64 s[36:37], vcc, s[36:37]")
    A("s_cbranch_scc0 K2_NOFLAG")
    A(f"v_mov_b32 v{L+5}, {K2_LDS_FLAG}")
    A(f"v_mov_b32 v{L+6}, 1")
    A(f"ds_write_b32 v{L+5}, v{L+6}")
    A.label("K2_NOFLAG")
    A("s_waitcnt lgkmcnt(0)")
    A("s_barrier")
    A(f"v_mov_b32 v{L+5}, {K2_LDS_FLAG}")
    A(f"ds_read_b32 v{L+6}, v{L+5}")
    A("s_waitcnt lgkmcnt(0)")
    A(f"v_readfirstlane_b32 s26, v{L+6}")
    A("s_nop 3")
    A("s_cmp_eq_u32 s26, 0")
    A("s_cbranch_scc1 K2_END")

    A("s_mov_b32 s34, 1")
    A("s_waitcnt vmcnt(0)")
    A("s_mov_b64 exec, s[28:29]")
    for i in range(4):
        A(f"v_mov_b32 v{Qreg(i,1)+2}, 0")
        A(f"v_mov_b32 v{Qreg(i,1)+3}, 0")
    A("s_mov_b64 exec, -1")
    M = T2
    for i in range(4):
        A(f"v_mov_b32 v{M+i}, 0xff800000")
    A("s_mov_b32 s31, 0")
    A.label("K2_MAXLOOP")
    for s in range(2):
        A(f"buffer_load_dwordx4 {vr(K0T+4*s,4)}, v3, s[12:15], s31 offen offset:{1024*s}")
    A("s_waitcnt vmcnt(0)")
    for i in range(4):
        t = O + 16 * i
        mfma(A, t, K0T, Qreg(i, 0), None)
        mfma(A, t, K0T + 4, Qreg(i, 1), t)
    A("s_nop 7")
    A("s_nop 7")
    for i in range(4):
        t = O + 16 * i
        for k in range(0, 16, 2):
            A(f"v_max3_f32 v{M+i}, v{M+i}, v{t+k}, v{t+k+1}")
    A("s_add_u32 s31, s31, 4096")
    A("s_cmp_lt_u32 s31, 65536")
    A("s_cbranch_scc1 K2_MAXLOOP")
    for i in range(4):
        A(f"v_mov_b32 v{M+4+i}, v{M+i}")
    A("s_nop 1")
    for i in range(4):
        A(f"v_permlane32_swap_b32 v{M+i}, v{M+4+i}")
    A("s_nop 1")
    for i in range(4):
        A(f"v_max_f32 v{M+i}, v{M+i}, v{M+4+i}")
    A(f"v_and_b32 v{M+8}, 31, v2")
    A(f"v_lshlrev_b32 v{M+8}, 2, v{M+8}")
    for i in range(4):
        A(f"s_add_u32 s26, s20, {i}")
        A("s_and_b32 s26, s26, 3")
        A("s_lshl_b32 s26, s26, 9")
        A(f"s_add_u32 s26, s26, {K2_LDS_MX}")
        A(f"v_add_u32 v{M+9+i}, s26, v{M+8}")
        A("s_lshl_b32 s27, s20, 7")
        A(f"v_add_u32 v{M+13}, s27, v{M+9+i}")
        A(f"ds_write_b32 v{M+13}, v{M+i}")
    A("s_waitcnt lgkmcnt(0)")
    A("s_barrier")
    for i in range(4):
        for w in range(4):
            A(f"ds_read_b32 v{O+4*i+w}, v{M+9+i} offset:{128*w}")
    A("s_waitcnt lgkmcnt(0)")
    for i in range(4):
        t = O + 4 * i
        A(f"v_max3_f32 v{t}, v{t}, v{t+1}, v{t+2}")
        A(f"v_max_f32 v{t}, v{t}, v{t+3}")
        A(f"v_sub_f32 v{t}, 0, v{t}")
        A(f"v_cvt_pk_bf16_f32 v{t+1}, v{t}, 0")
        A(f"v_lshlrev_b32 v{t+2}, 16, v{t+1}")
        A(f"v_sub_f32 v{t}, v{t}, v{t+2}")
        A(f"v_cvt_pk_bf16_f32 v{t+2}, v{t}, 0")
        A(f"v_lshlrev_b32 v{t+3}, 16, v{t+2}")
        A(f"v_sub_f32 v{t}, v{t}, v{t+3}")
        A(f"v_or_b32 v{t+1}, v{t+1}, v{t+3}")
        A(f"v_cvt_pk_bf16_f32 v{t+2}, v{t}, 0")
    A("s_mov_b64 exec, s[28:29]")
    for i in range(4):
        t = O + 4 * i
        A(f"v_mov_b32 v{Qreg(i,1)+2}, v{t+1}")
        A(f"v_mov_b32 v{Qreg(i,1)+3}, v{t+2}")
    A("s_mov_b64 exec, -1")
    kv_prologue_loads()
    zero_state()
    A("s_branch K2_MAIN")
    A.label("K2_END")
    A("s_endpgm")
    return name, NV, 48


K3_LDS_RED = 57 * 1024
K3_LDS = 57 * 1024 + 16384


def gen_k3(A):
    name = "proj_kernel"
    kernel_head(A, name)
    A("s_cmp_ge_u32 s2, 224")
    A("s_cbranch_scc1 K3_END")
    A("s_load_dwordx4 s[16:19], s[0:1], 16")
    A("s_load_dwordx2 s[4:5], s[0:1], 40")
    A("v_lshrrev_b32 v1, 6, v0")
    A("v_and_b32 v2, 63, v0")
    A("v_readfirstlane_b32 s20, v1")
    A("v_lshlrev_b32 v3, 4, v2")
    A("s_lshr_b32 s23, s2, 3")
    A("s_mul_i32 s24, s23, 37")
    A("s_lshr_b32 s24, s24, 8")
    A("s_mul_i32 s25, s24, 7")
    A("s_sub_u32 s22, s23, s25")
    A("s_and_b32 s21, s2, 7")
    A("s_lshl_b32 s21, s21, 2")
    A("s_add_u32 s21, s21, s24")
    A("s_and_b32 s23, s20, 1")
    A("s_lshr_b32 s24, s20, 1")
    A("s_waitcnt lgkmcnt(0)")
    A("s_mov_b32 s8, s4"); A("s_mov_b32 s9, s5"); A(f"s_mov_b32 s10, {WS_USED}"); A("s_mov_b32 s11, 0x00020000")
    A("s_mov_b32 s12, s16"); A("s_mov_b32 s13, s17"); A(f"s_mov_b32 s14, {D*D*2}"); A("s_mov_b32 s15, 0x00020000")
    A("s_mov_b32 s28, s18"); A("s_mov_b32 s29, s19"); A(f"s_mov_b32 s30, {S_TOK*D*2}"); A("s_mov_b32 s31, 0x00020000")
    A("v_lshrrev_b32 v4, 3, v2")
    A("v_and_b32 v5, 7, v2")
    A("v_bfe_u32 v6, v4, 1, 1")
    A("v_lshlrev_b32 v6, 2, v6")
    A("v_xor_b32 v5, v5, v6")
    A("v_mul_u32_u24 v4, 896, v4")
    A("v_lshl_add_u32 v4, v5, 4, v4")
    A(f"s_mul_i32 s25, s20, {8*896}")
    A("s_lshl_b32 s26, s22, 7")
    A("s_add_u32 s25, s25, s26")
    A("s_lshl_b32 s26, s20, 10")
    A("s_lshl_b32 s27, s21, 1")
    A("s_add_u32 s27, s27, s23")
    A("s_lshl_b32 s27, s27, 15")
    A("s_lshl_b32 s32, s24, 14")
    A("s_add_u32 s27, s27, s32")
    A(f"s_add_u32 s27, s27, {OF_OFF}")
    OFR = 16
    WF = 80
    ACC = 208
    npieces = 15
    oq = 0
    for i in range(15):
        if i == 14:
            A("s_cmp_ge_u32 s20, 1")
            A("s_cbranch_scc1 K3_SKIP")
        A(f"s_add_u32 s32, s26, {i*4096}")
        A("s_mov_b32 m0, s32")
        A(f"s_add_u32 s33, s25, {i*32*896}")
        A("buffer_load_dwordx4 v4, s[12:15], s33 offen lds")
        if i == 14:
            A.label("K3_SKIP")
        for _ in range(2 if i < 2 else 1):
            if oq < 16:
                if oq % 4 == 0:
                    A(f"s_add_u32 s34, s27, {oq*1024}")
                A(f"buffer_load_dwordx4 {vr(OFR+4*oq,4)}, v3, s[8:11], s34 offen offset:{(oq%4)*1024}")
                oq += 1
    assert oq == 16
    A("v_and_b32 v5, 15, v2")
    A("v_lshrrev_b32 v6, 2, v5")
    A("v_bfe_u32 v7, v2, 4, 1")
    A("v_lshlrev_b32 v7, 1, v7")
    A("v_bfe_u32 v8, v5, 1, 1")
    A("v_add_u32 v7, v7, v8")
    A("v_bfe_u32 v8, v5, 3, 1")
    A("v_lshlrev_b32 v8, 2, v8")
    A("v_xor_b32 v7, v7, v8")
    A("v_lshrrev_b32 v10, 5, v2")
    A("v_lshl_add_u32 v6, v10, 2, v6")
    A("v_lshlrev_b32 v8, 7, v6")
    A("v_lshl_add_u32 v8, v7, 4, v8")
    A("v_and_b32 v7, 1, v5")
    A("v_lshl_add_u32 v8, v7, 3, v8")
    A(f"s_mul_i32 s32, s24, {8*28*128}")
    A("v_add_u32 v8, s32, v8")
    A("v_xor_b32 v9, 64, v8")
    for r in range(32):
        A(f"v_mov_b32 v{ACC+r}, 0")
    A("s_waitcnt vmcnt(0)")
    A("s_barrier")
    def reads(hh, s, ct):
        for rd in range(2):
            A(f"ds_read_b64_tr_b16 {vr(WF+16*hh+8*s+4*ct+2*rd,2)}, v{8+ct} offset:{(28*hh+16*s+8*rd)*128}")
    for s in range(2):
        for ct in range(2):
            reads(0, s, ct)
    for hh in range(8):
        for s in range(2):
            for ct in range(2):
                left = 6 if hh < 7 else (3 - 2 * s - ct) * 2
                A(f"s_waitcnt lgkmcnt({left})")
                mfma(A, ACC + 16 * ct, WF + 16 * hh + 8 * s + 4 * ct, OFR + 8 * hh + 4 * s, ACC + 16 * ct)
                if hh < 7:
                    reads(hh + 1, s, ct)
    A("s_xor_b32 s32, s20, 2")
    A("s_lshl_b32 s32, s32, 12")
    A(f"s_add_u32 s32, s32, {K3_LDS_RED}")
    A("v_add_u32 v4, s32, v3")
    A("s_lshl_b32 s32, s20, 12")
    A(f"s_add_u32 s32, s32, {K3_LDS_RED}")
    A("v_add_u32 v5, s32, v3")
    A("s_nop 7")
    A("s_cmp_eq_u32 s24, 0")
    A("s_cbranch_scc1 K3_KH0")
    for g in range(4):
        A(f"ds_write_b128 v4, {vr(ACC+4*g,4)} offset:{1024*g}")
    for r in range(16):
        A(f"v_mov_b32 v{OFR+r}, v{ACC+16+r}")
    A("s_branch K3_RED")
    A.label("K3_KH0")
    for g in range(4):
        A(f"ds_write_b128 v4, {vr(ACC+16+4*g,4)} offset:{1024*g}")
    for r in range(16):
        A(f"v_mov_b32 v{OFR+r}, v{ACC+r}")
    A.label("K3_RED")
    A("s_waitcnt lgkmcnt(0)")
    A("s_barrier")
    for g in range(4):
        A(f"ds_read_b128 {vr(WF+4*g,4)}, v5 offset:{1024*g}")
    A("v_and_b32 v6, 31, v2")
    A("v_mul_u32_u24 v6, 896, v6")
    A("v_lshl_add_u32 v6, v10, 4, v6")
    A("s_lshl_b32 s32, s21, 1")
    A("s_add_u32 s32, s32, s23")
    A(f"s_mul_i32 s32, s32, {32*896}")
    A("s_lshl_b32 s33, s22, 7")
    A("s_add_u32 s32, s32, s33")
    A("s_lshl_b32 s33, s24, 6")
    A("s_add_u32 s32, s32, s33")
    for g in range(4):
        A(f"s_waitcnt lgkmcnt({3-g})")
        for p in range(2):
            A(f"v_pk_add_f32 {vr(OFR+4*g+2*p,2)}, {vr(OFR+4*g+2*p,2)}, {vr(WF+4*g+2*p,2)}")
    for p in range(8):
        A(f"v_cvt_pk_bf16_f32 v{WF+16+p}, v{OFR+2*p}, v{OFR+2*p+1}")
    A("s_nop 1")
    for g in (0, 2):
        b = WF + 16 + 2 * g
        A(f"v_permlane32_swap_b32 v{b}, v{b+2}")
        A(f"v_permlane32_swap_b32 v{b+1}, v{b+3}")
    for g in (0, 2):
        b = WF + 16 + 2 * g
        A(f"buffer_store_dwordx4 {vr(b,4)}, v6, s[28:31], s32 offen offset:{16*g}")
    A.label("K3_END")
    A("s_endpgm")
    return name, 240, 48


HEADER = """; MHA block (B=1, S=2048, D=448, H=16) for gfx950: QKV projection -> attention -> output projection.
"""


def main(out):
    A = Asm()
    A.raw(HEADER.rstrip())
    A.raw(f"; @launch kernel=qkv_kernel grid=({K1_GRID},1,1) block=(512,1,1) lds={K1_LDS}")
    A.raw(f"; @launch kernel=attn_kernel grid=(256,1,1) block=(256,1,1) lds={K2_LDS}")
    A.raw(f"; @launch kernel=proj_kernel grid=(224,1,1) block=(256,1,1) lds={K3_LDS}")
    A.raw('.amdgcn_target "amdgcn-amd-amdhsa--gfx950"')
    A.raw(".text")
    ks = [gen_k1(A), gen_k2(A), gen_k3(A)]
    A.raw('.section .rodata,"a"')
    for n, v, s in ks:
        A.raw(kernel_desc(n, v, s).rstrip())
    open(out, "w").write(A.text())


if __name__ == "__main__":
    main(sys.argv[1] if len(sys.argv) > 1 else "standalone__mha_block__prompt.s")
```

```python
import sys, math, struct

S_TOK, D, H, DH = 2048, 448, 16, 28
QF_OFF = 0
KV_OFF = 2 << 20
OF_OFF = 6 << 20
C1_OFF = 8 << 20
C2_OFF = (8 << 20) + 65536
WS_USED = (8 << 20) + 131072
QSCALE = math.log2(math.e) / math.sqrt(DH)
SPIN_MAX = 40000

OPT = dict(ldsc="sc1")


def f32bits(x):
    return struct.unpack("<I", struct.pack("<f", x))[0]


class Asm:
    def __init__(self):
        self.l = []

    def __call__(self, s):
        self.l.append("  " + s)

    def label(self, s):
        self.l.append(s + ":")

    def raw(self, s):
        self.l.append(s)

    def text(self):
        return "\n".join(self.l) + "\n"


def vr(a, n):
    return f"v[{a}:{a+n-1}]"


STAMP = False
STAMP_OFF = 16 << 20
NSTAMP = 16


def stamp_init(A):
    if not STAMP:
        return
    for k in range(NSTAMP):
        A(f"s_mov_b32 s{64+2*k}, 0")
    A("s_memrealtime s[64:65]")


def stamp(A, slot):
    if STAMP:
        A(f"s_memrealtime s[{64+2*slot}:{65+2*slot}]")


def cstamp(A, slot):
    if STAMP:
        A(f"s_memtime s[{64+2*slot}:{65+2*slot}]")


def stamp_flush(A):
    if not STAMP:
        return
    A("s_waitcnt vmcnt(0)")
    A(f"s_memrealtime s[{64+2*(NSTAMP-1)}:{65+2*(NSTAMP-1)}]")
    A("s_waitcnt lgkmcnt(0)")
    A(f"s_add_u32 s96, s6, {STAMP_OFF}")
    A("s_addc_u32 s97, s7, 0")
    A("s_mov_b32 s98, 0x100000")
    A("s_mov_b32 s99, 0x00020000")
    A("s_lshl_b32 s100, s2, 10")
    A("s_lshl_b32 s101, s3, 6")
    A("s_add_u32 s100, s100, s101")
    A("s_mov_b64 exec, 1")
    A("v_mov_b32 v0, 0")
    for k in range(NSTAMP):
        A(f"v_mov_b32 v1, s{64+2*k}")
        A(f"buffer_store_dword v1, v0, s[96:99], s100 offen offset:{4*k}")
        A("s_nop 1")


def mfma(A, d, a, b, c):
    cs = "0" if c is None else vr(c, 16)
    A(f"v_mfma_f32_32x32x16_bf16 {vr(d,16)}, {vr(a,4)}, {vr(b,4)}, {cs}")


L1_W = 0
L1_X = 65536
L2_CMB = 0
L2_FLAG = 49152
L2_MX = 49152 + 256
L3_STG = 53248
L3_RED = 114688
LDS_TOTAL = 163840

NAME = "standalone__mha_block__prompt_kernel"


def gen(A):
    LD = OPT["ldsc"]
    A.raw(f".globl {NAME}")
    A.raw(".p2align 8")
    A.raw(f".type {NAME},@function")
    A.label(NAME)
    A("s_cmp_ge_u32 s2, 256")
    A("s_cbranch_scc1 L_EXIT")
    stamp_init(A)
    A("s_load_dwordx4 s[16:19], s[0:1], 0")
    A("s_load_dwordx4 s[52:55], s[0:1], 16")
    A("s_load_dwordx4 s[4:7], s[0:1], 32")
    A("v_lshrrev_b32 v1, 6, v0")
    A("v_and_b32 v2, 63, v0")
    A("v_readfirstlane_b32 s3, v1")
    A("s_and_b32 s20, s2, 7")
    A("s_mul_i32 s20, s20, 31")
    A("s_lshr_b32 s21, s2, 3")
    A("s_add_u32 s20, s20, s21")
    A("s_cmp_lt_u32 s2, 248")
    A("s_cselect_b32 s20, s20, 255")
    A("s_cmp_ge_u32 s20, 132")
    A("s_cbranch_scc1 L_RIGHT")
    A("s_mul_i32 s21, s20, 171")
    A("s_lshr_b32 s21, s21, 10")
    A("s_mul_i32 s23, s21, 6")
    A("s_sub_u32 s22, s20, s23")
    A("s_branch L_MAPPED")
    A.label("L_RIGHT")
    A("s_sub_u32 s23, s20, 132")
    A("s_mul_i32 s21, s23, 205")
    A("s_lshr_b32 s21, s21, 10")
    A("s_mul_i32 s24, s21, 5")
    A("s_sub_u32 s22, s23, s24")
    A("s_add_u32 s22, s22, 6")
    A.label("L_MAPPED")
    A("s_and_b32 s24, s2, 7")
    A("s_lshl_b32 s24, s24, 1")
    A("s_bfe_u32 s25, s2, 0x10003")
    A("s_add_u32 s24, s24, s25")
    A("s_lshr_b32 s25, s2, 4")
    A("s_waitcnt lgkmcnt(0)")
    A("s_mov_b32 s8, s6"); A("s_mov_b32 s9, s7"); A(f"s_mov_b32 s10, {WS_USED}"); A("s_mov_b32 s11, 0x00020000")
    A("s_cmp_lt_u32 s3, 4")
    A("s_cbranch_scc1 L_CWAVE")

    A("s_sub_u32 s26, s3, 4")
    A("s_mov_b32 s56, s4"); A("s_mov_b32 s57, s5"); A("s_mov_b32 s58, 256"); A("s_mov_b32 s59, 0x00020000")
    A("s_cmp_lg_u32 s2, 0")
    A("s_cbranch_scc1 L_NOINIT")
    A("s_cmp_lg_u32 s26, 3")
    A("s_cbranch_scc1 L_NOINIT")
    A("v_lshlrev_b32 v3, 8, v2")
    A("v_mov_b32 v4, 0")
    for i in range(8):
        if i == 3:
            continue
        A(f"s_mov_b32 s27, {C1_OFF + i * 16384}")
        A("buffer_store_dword v4, v3, s[8:11], s27 offen sc1")
    A("s_waitcnt vmcnt(0)")
    A("v_mov_b32 v5, 1")
    A("s_mov_b64 exec, 1")
    A("buffer_store_dword v5, v4, s[56:59], 0 offen sc1")
    A("s_mov_b64 exec, -1")
    A("s_waitcnt vmcnt(0)")
    A.label("L_NOINIT")
    A("s_cmp_ge_u32 s20, 242")
    A("s_cbranch_scc1 L_LP1DONE")
    A("s_mov_b32 s28, s16"); A("s_mov_b32 s29, s17"); A(f"s_mov_b32 s30, {S_TOK*D*2}"); A("s_mov_b32 s31, 0x00020000")
    A("s_mov_b32 s32, s18"); A("s_mov_b32 s33, s19"); A(f"s_mov_b32 s34, {D*3*D*2}"); A("s_mov_b32 s35, 0x00020000")
    A("s_lshl_b32 s39, s21, 1")
    A("s_add_u32 s39, s39, s22")
    A("s_mul_i32 s27, s39, 37")
    A("s_lshr_b32 s27, s27, 8")
    A("s_mul_i32 s27, s27, 7")
    A("s_sub_u32 s39, s39, s27")
    A("v_lshrrev_b32 v3, 3, v2")
    A("v_and_b32 v4, 7, v2")
    A("v_lshrrev_b32 v5, 1, v3")
    A("s_and_b32 s27, s26, 1")
    A("s_lshl_b32 s27, s27, 2")
    A("v_add_u32 v5, s27, v5")
    A("v_and_b32 v5, 7, v5")
    A("v_xor_b32 v4, v4, v5")
    A("v_mul_u32_u24 v3, 896, v3")
    A("v_lshl_add_u32 v3, v4, 4, v3")
    A("v_lshrrev_b32 v6, 4, v2")
    A("v_and_b32 v7, 15, v2")
    A("v_lshlrev_b32 v8, 2, v6")
    A("v_xor_b32 v7, v7, v8")
    A("v_mul_u32_u24 v6, 2688, v6")
    A("v_lshl_add_u32 v6, v7, 4, v6")
    A("s_lshl_b32 s27, s22, 4")
    A("v_add_u32 v7, s27, v7")
    A("v_mov_b32 v8, 0x40000000")
    A("v_cmp_le_u32 vcc, 168, v7")
    A("s_nop 1")
    A("v_cndmask_b32 v6, v6, v8, vcc")
    A("s_mul_i32 s36, s21, 96")
    A("s_lshl_b32 s27, s26, 3")
    A("s_add_u32 s36, s36, s27")
    A("s_mul_i32 s36, s36, 896")
    A(f"s_mul_i32 s37, s26, {4*2688}")
    A("s_lshl_b32 s27, s22, 8")
    A("s_add_u32 s37, s37, s27")
    A("s_lshl_b32 s38, s26, 10")

    def chunk_of(tau):
        A(f"s_add_u32 s40, s39, {tau}")
        A("s_cmp_ge_u32 s40, 7")
        A("s_cselect_b32 s41, 7, 0")
        A("s_sub_u32 s40, s40, s41")

    def load_w(tau):
        chunk_of(tau)
        A(f"s_mul_i32 s41, s40, {64*2688}")
        A("s_add_u32 s41, s41, s37")
        for i in range(4):
            A(f"s_add_u32 s42, s38, {L1_W + (tau % 4) * 16384 + i * 4096}")
            A("s_mov_b32 m0, s42")
            A(f"s_add_u32 s43, s41, {i * 16 * 2688}")
            A("buffer_load_dwordx4 v6, s[32:35], s43 offen lds")

    def load_x(tau):
        chunk_of(tau)
        A("s_lshl_b32 s41, s40, 7")
        A("s_add_u32 s41, s41, s36")
        for i in range(3):
            A(f"s_add_u32 s42, s38, {L1_X + tau * 12288 + i * 4096}")
            A("s_mov_b32 m0, s42")
            A(f"s_add_u32 s43, s41, {i * 32 * 896}")
            A("buffer_load_dwordx4 v3, s[28:31], s43 offen lds")

    load_w(0); load_x(0); load_w(1); load_x(1); load_w(2); load_x(2)
    A("s_waitcnt vmcnt(14)")
    A("s_barrier")
    stamp(A, 1)
    load_w(3); load_x(3)
    A("s_waitcnt vmcnt(14)")
    A("s_barrier")
    load_x(4); load_w(4)
    A("s_waitcnt vmcnt(14)")
    A("s_barrier")
    load_x(5); load_w(5)
    A("s_waitcnt vmcnt(14)")
    A("s_barrier")
    stamp(A, 2)
    load_x(6); load_w(6)
    A("s_waitcnt vmcnt(14)")
    A("s_barrier")
    A("s_waitcnt vmcnt(7)")
    A("s_barrier")
    A.label("L_LP1DONE")
    A("s_cmp_lg_u32 s26, 0")
    A("s_cbranch_scc1 L_INITSEEN")
    A("v_mov_b32 v4, 0")
    A("s_mov_b32 s27, 0")
    A.label("L_INITPOLL")
    A("buffer_load_dword v5, v4, s[56:59], 0 offen sc1")
    A("s_waitcnt vmcnt(0)")
    A("v_readfirstlane_b32 s40, v5")
    A("s_add_u32 s27, s27, 1")
    A(f"s_cmp_gt_u32 s27, {SPIN_MAX}")
    A("s_cbranch_scc1 L_INITSEEN")
    A("s_cmp_eq_u32 s40, 0")
    A("s_cbranch_scc1 L_INITPOLL")
    A.label("L_INITSEEN")
    A("s_cmp_ge_u32 s20, 242")
    A("s_cbranch_scc1 L_LNOB6")
    A("s_waitcnt vmcnt(0)")
    A("s_barrier")
    A.label("L_LNOB6")
    stamp(A, 3)
    A("s_cmp_lg_u32 s26, 0")
    A("s_cbranch_scc1 L_C1DONE")
    A("v_lshrrev_b32 v3, 3, v2")
    A("v_add_u32 v3, 1, v3")
    A("v_bfe_u32 v4, v2, 2, 1")
    A("v_and_b32 v5, 3, v2")
    A("v_cmp_le_u32 vcc, 16, v2")
    A("v_and_b32 v6, 1, v2")
    A("s_lshr_b32 s27, s25, 2")
    A("v_mov_b32 v7, s27")
    A("v_cndmask_b32 v3, v3, 0, vcc")
    A("v_cndmask_b32 v4, v4, v6, vcc")
    A("v_cndmask_b32 v5, v5, v7, vcc")
    A("s_mul_i32 s27, s24, 28")
    A("v_mul_u32_u24 v4, 27, v4")
    A("v_add_u32 v4, s27, v4")
    A("v_lshrrev_b32 v4, 5, v4")
    A("v_mul_u32_u24 v3, 14, v3")
    A("v_add_u32 v3, v3, v4")
    A("v_lshl_add_u32 v3, v3, 2, v5")
    A("v_lshlrev_b32 v3, 8, v3")
    A("s_mov_b64 exec, 0x3ffff")
    A("s_mov_b32 s27, 0")
    A(f"s_mov_b32 s41, {C1_OFF}")
    A.label("L_C1POLL")
    A("buffer_load_dword v5, v3, s[8:11], s41 offen sc1")
    A("s_waitcnt vmcnt(0)")
    A("v_cmp_ne_u32 vcc, 6, v5")
    A("s_add_u32 s27, s27, 1")
    A(f"s_cmp_gt_u32 s27, {SPIN_MAX}")
    A("s_cbranch_scc1 L_C1OUT")
    A("s_cmp_lg_u64 vcc, 0")
    A("s_cbranch_scc1 L_C1POLL")
    A.label("L_C1OUT")
    A("s_mov_b64 exec, -1")
    A.label("L_C1DONE")
    A("s_barrier")
    stamp(A, 4)
    A("s_lshr_b32 s44, s2, 2")
    A("s_and_b32 s45, s2, 3")
    A("s_mov_b32 s28, s52"); A("s_mov_b32 s29, s53"); A(f"s_mov_b32 s30, {D*D*2}"); A("s_mov_b32 s31, 0x00020000")
    A("s_mov_b32 s32, s54"); A("s_mov_b32 s33, s55"); A(f"s_mov_b32 s34, {S_TOK*D*2}"); A("s_mov_b32 s35, 0x00020000")
    A("v_lshrrev_b32 v6, 4, v2")
    A("v_and_b32 v7, 15, v2")
    A("v_lshlrev_b32 v8, 2, v6")
    A("v_xor_b32 v7, v7, v8")
    A("v_mul_u32_u24 v6, 896, v6")
    A("v_lshl_add_u32 v6, v7, 4, v6")
    A("s_lshl_b32 s27, s45, 4")
    A("v_add_u32 v7, s27, v7")
    A("v_mov_b32 v8, 0x40000000")
    A("v_cmp_le_u32 vcc, 56, v7")
    A("s_nop 1")
    A("v_cndmask_b32 v6, v6, v8, vcc")
    A(f"s_mul_i32 s36, s26, {112*896}")
    A("s_lshl_b32 s27, s45, 8")
    A("s_add_u32 s36, s36, s27")
    A("s_mul_i32 s38, s26, 15360")
    A(f"s_add_u32 s38, s38, {L3_STG}")
    A("v_and_b32 v5, 15, v2")
    A("v_lshrrev_b32 v3, 2, v5")
    A("v_bfe_u32 v4, v2, 4, 1")
    A("v_lshlrev_b32 v4, 1, v4")
    A("v_bfe_u32 v7, v5, 1, 1")
    A("v_add_u32 v4, v4, v7")
    A("v_lshrrev_b32 v12, 5, v2")
    A("v_lshl_add_u32 v7, v12, 2, v3")
    A("v_lshlrev_b32 v13, 8, v7")
    A("v_lshl_add_u32 v13, v4, 4, v13")
    A("v_and_b32 v7, 1, v5")
    A("v_lshl_add_u32 v13, v7, 3, v13")
    A("v_add_u32 v13, s38, v13")
    for i in range(4):
        A(f"s_add_u32 s27, s26, {i}")
        A("s_and_b32 s27, s27, 3")
        A("v_xor_b32 v7, s27, v3")
        A(f"v_lshl_add_u32 v{8+i}, v7, 6, v13")
    WF = 16
    OFR = 144
    ACC3 = 176
    for rho in range(2):
        for i in range(15):
            A(f"s_add_u32 s42, s38, {i*1024}")
            A("s_mov_b32 m0, s42")
            A(f"s_add_u32 s43, s36, {(56*rho + 4*i)*896}")
            A("buffer_load_dwordx4 v6, s[28:31], s43 offen lds")
        A("s_waitcnt vmcnt(0)")
        n = 0
        for hh in range(2):
            for s in range(2):
                for i in range(4):
                    for rd in range(2):
                        j = (2 * rho + hh) * 2 + s
                        A(f"ds_read_b64_tr_b16 {vr(WF+16*j+4*i+2*rd,2)}, v{8+i} offset:{(28*hh+16*s+8*rd)*256}")
                        n += 1
                        if n % 8 == 0:
                            A("s_waitcnt lgkmcnt(4)")
        A("s_waitcnt lgkmcnt(0)")
    stamp(A, 5)
    A("v_lshlrev_b32 v3, 4, v2")
    for i in range(1, 4):
        A(f"s_add_u32 s27, s26, {i}")
        A("s_and_b32 s27, s27, 3")
        A("s_mul_i32 s27, s27, 12288")
        A(f"s_add_u32 s27, s27, {L3_RED + (i-1)*4096}")
        A(f"v_add_u32 v{3+i}, s27, v3")
    A("s_mul_i32 s27, s26, 12288")
    A(f"s_add_u32 s27, s27, {L3_RED}")
    A("v_add_u32 v7, s27, v3")
    A("v_add_u32 v8, 4096, v3")
    A("s_lshl_b32 s36, s44, 15")
    A("s_lshl_b32 s27, s26, 13")
    A("s_add_u32 s36, s36, s27")
    A(f"s_add_u32 s36, s36, {OF_OFF}")
    A("s_lshl_b32 s37, s44, 2")
    A("s_add_u32 s37, s37, s26")
    A("s_lshl_b32 s37, s37, 8")
    A(f"s_add_u32 s37, s37, {C2_OFF}")
    A("v_and_b32 v9, 31, v2")
    A("v_mul_u32_u24 v9, 896, v9")
    A("v_lshl_add_u32 v9, v12, 4, v9")
    A(f"s_mul_i32 s38, s44, {32*896}")
    A("s_lshl_b32 s27, s45, 8")
    A("s_add_u32 s38, s38, s27")
    A("s_lshl_b32 s27, s26, 6")
    A("s_add_u32 s38, s38, s27")
    A(f"v_mov_b32 v10, {L2_FLAG}")
    A("v_mov_b32 v11, 0")
    A("s_barrier")
    A("ds_read_b32 v13, v10")
    A("s_waitcnt lgkmcnt(0)")
    A("v_readfirstlane_b32 s27, v13")
    A("s_nop 3")
    A("s_cmp_eq_u32 s27, 0")
    A("s_cbranch_scc1 L_NOFB")
    A("s_barrier")
    A("s_barrier")
    A.label("L_NOFB")
    stamp(A, 6)
    A("s_mov_b32 s27, 0")
    A.label("L_C2POLL")
    A("buffer_load_dword v13, v11, s[8:11], s37 offen sc1")
    A("s_waitcnt vmcnt(0)")
    A("v_readfirstlane_b32 s40, v13")
    A("s_add_u32 s27, s27, 1")
    A(f"s_cmp_gt_u32 s27, {SPIN_MAX}")
    A("s_cbranch_scc1 L_C2OUT")
    A("s_cmp_lg_u32 s40, 4")
    A("s_cbranch_scc1 L_C2POLL")
    A.label("L_C2OUT")
    stamp(A, 7)
    for j in range(8):
        A(f"buffer_load_dwordx4 {vr(OFR+4*j,4)}, v{3 if j < 4 else 8}, s[8:11], s36 offen offset:{(j%4)*1024} {LD}")
    for j in range(8):
        A(f"s_waitcnt vmcnt({7-j})")
        for i in range(4):
            mfma(A, ACC3 + 16 * i, WF + 16 * j + 4 * i, OFR + 4 * j, None if j == 0 else ACC3 + 16 * i)
    stamp(A, 8)
    A("s_nop 7")
    A("s_nop 3")
    for i in (1, 2, 3):
        for g in range(4):
            A(f"ds_write_b128 v{3+i}, {vr(ACC3+16*i+4*g,4)} offset:{1024*g}")
    A("s_waitcnt lgkmcnt(0)")
    A("s_barrier")
    R = WF
    for sl in range(3):
        for g in range(4):
            A(f"ds_read_b128 {vr(R+16*sl+4*g,4)}, v7 offset:{4096*sl+1024*g}")
    for sl in range(3):
        for g in range(4):
            A(f"s_waitcnt lgkmcnt({11-4*sl-g})")
            for p in range(2):
                A(f"v_pk_add_f32 {vr(ACC3+4*g+2*p,2)}, {vr(ACC3+4*g+2*p,2)}, {vr(R+16*sl+4*g+2*p,2)}")
    for p in range(8):
        A(f"v_cvt_pk_bf16_f32 v{OFR+p}, v{ACC3+2*p}, v{ACC3+2*p+1}")
    A("s_lshl_b32 s27, s45, 2")
    A("s_add_u32 s27, s27, s26")
    A("s_cmp_ge_u32 s27, 14")
    A("s_cbranch_scc1 L_END")
    for g in (0, 2):
        b = OFR + 2 * g
        A(f"v_permlane32_swap_b32 v{b}, v{b+2}")
        A(f"v_permlane32_swap_b32 v{b+1}, v{b+3}")
    for g in (0, 2):
        b = OFR + 2 * g
        A(f"buffer_store_dwordx4 {vr(b,4)}, v9, s[32:35], s38 offen offset:{16*g}")
    A("s_branch L_END")

    A.label("L_CWAVE")
    A("s_cmp_ge_u32 s20, 242")
    A("s_cbranch_scc1 L_P2")
    A("s_lshl_b32 s26, s22, 2")
    A("s_add_u32 s26, s26, s3")
    A("v_and_b32 v3, 31, v2")
    A("v_lshrrev_b32 v4, 5, v2")
    A("v_bfe_u32 v5, v3, 1, 3")
    for ks in range(4):
        A(f"v_add_u32 v6, {2*ks}, v4")
        A("v_xor_b32 v6, v6, v5")
        A("v_lshlrev_b32 v6, 4, v6")
        A(f"v_lshl_add_u32 v{8+ks}, v3, 7, v6")
        A(f"v_add_u32 v{8+ks}, {L1_X}, v{8+ks}")
    A("v_and_b32 v5, 15, v2")
    A("v_lshrrev_b32 v6, 2, v5")
    A("v_bfe_u32 v7, v2, 4, 1")
    A("v_lshlrev_b32 v7, 1, v7")
    A("v_bfe_u32 v13, v5, 1, 1")
    A("v_add_u32 v7, v7, v13")
    A("s_lshl_b32 s27, s3, 2")
    A("v_add_u32 v7, s27, v7")
    A("v_lshlrev_b32 v13, 2, v6")
    A("v_xor_b32 v7, v7, v13")
    A("v_lshl_add_u32 v6, v4, 3, v6")
    A("v_lshlrev_b32 v12, 8, v6")
    A("v_lshl_add_u32 v12, v7, 4, v12")
    A("v_and_b32 v13, 1, v5")
    A("v_lshl_add_u32 v12, v13, 3, v12")
    ACC = 16
    for r in range(48):
        A(f"v_mov_b32 v{ACC+r}, 0")
    XF = 64
    WF1 = 112
    EA = 128
    A("s_mul_i32 s27, s21, 96")
    A("s_lshr_b32 s40, s27, 9")
    A("s_add_u32 s27, s27, 95")
    A("s_min_u32 s27, s27, 2047")
    A("s_lshr_b32 s41, s27, 9")
    A("s_cmp_lg_u32 s40, s41")
    A("s_cselect_b32 s46, 3, 1")
    A("s_mov_b32 s47, 0")
    A("s_lshl_b32 s27, s26, 2")
    A("s_add_u32 s27, s27, s40")
    A(f"v_add_u32 v{EA+10}, s27, v2")
    A(f"v_lshlrev_b32 v{EA+10}, 8, v{EA+10}")
    A(f"v_mov_b32 v{EA+11}, 1")
    A("s_mul_i32 s40, s21, 3")
    A("s_cmp_ge_u32 s26, 42")
    A("s_cbranch_scc1 L_IDLE")
    A("s_cmp_ge_u32 s26, 28")
    A("s_cbranch_scc1 L_VPART")

    def mainloop(transposed):
        for tau in range(7):
            A("s_barrier")
            if tau == 4:
                for ks in range(4):
                    A(f"v_add_u32 v{8+ks}, {4*12288}, v{8+ks}")
            tx = tau if tau < 4 else tau - 4

            def rds(ks):
                for rd in range(2):
                    A(f"ds_read_b64_tr_b16 {vr(WF1+4*ks+2*rd,2)}, v12 offset:{(tau%4)*16384 + ks*4096 + rd*1024}")
                for rt in range(3):
                    A(f"ds_read_b128 {vr(XF+12*ks+4*rt,4)}, v{8+ks} offset:{tx*12288 + rt*4096}")
            for ks in range(3):
                rds(ks)
            for ks in range(4):
                if ks == 1:
                    rds(3)
                for rt in range(3):
                    left = ((2 if ks == 0 else 3) - ks) * 5 + (2 - rt)
                    A(f"s_waitcnt lgkmcnt({left})")
                    if transposed:
                        mfma(A, ACC + 16 * rt, WF1 + 4 * ks, XF + 12 * ks + 4 * rt, ACC + 16 * rt)
                    else:
                        mfma(A, ACC + 16 * rt, XF + 12 * ks + 4 * rt, WF1 + 4 * ks, ACC + 16 * rt)

    A("s_cmp_ge_u32 s26, 14")
    A("s_cselect_b32 s27, 14, 0")
    A(f"s_cselect_b32 s36, {KV_OFF}, {QF_OFF}")
    A("s_cselect_b32 s37, 12, 11")
    A(f"s_cselect_b32 s38, 1.0, {f32bits(QSCALE):#x}")
    A("s_cselect_b32 s42, 0x3f803f80, 0")
    A("s_cselect_b32 s43, 0x3f80, 0")
    A("s_sub_u32 s27, s26, s27")
    A("s_lshl_b32 s27, s27, 2")
    A("s_add_u32 s39, s37, 6")
    A("s_lshl_b32 s44, 1, s39")
    for gi, g in enumerate((0, 2)):
        A(f"v_add_u32 v5, {g}, v4")
        A("v_add_u32 v5, s27, v5")
        A("v_mul_u32_u24 v6, 37, v5")
        A("v_lshrrev_b32 v6, 8, v6")
        A("v_mul_u32_u24 v7, 7, v6")
        A("v_sub_u32 v5, v5, v7")
        A(f"v_cmp_eq_u32 s[{48+2*gi}:{49+2*gi}], 3, v5")
        A("v_lshrrev_b32 v7, 2, v5")
        A("v_lshl_add_u32 v6, v6, 1, v7")
        A("v_and_b32 v5, 3, v5")
        A(f"v_lshlrev_b32 v{EA+gi}, s39, v6")
        A(f"v_lshl_add_u32 v{EA+gi}, v5, 9, v{EA+gi}")
        A(f"v_lshl_add_u32 v{EA+gi}, v3, 4, v{EA+gi}")
        A(f"v_add_u32 v{EA+2+gi}, s44, v{EA+gi}")
    A("v_mov_b32 v14, s38")
    A("v_mov_b32 v15, s38")
    mainloop(True)
    stamp(A, 1)
    A("s_nop 7")
    for rt in range(3):
        if rt == 1:
            A("s_cmp_eq_u32 s21, 21")
            A("s_cbranch_scc1 L_SIGNAL")
        A(f"s_add_u32 s41, s40, {rt}")
        A("s_lshl_b32 s41, s41, s37")
        A("s_add_u32 s41, s41, s36")
        a = ACC + 16 * rt
        o = XF + 16 * rt
        for p in range(8):
            A(f"v_pk_mul_f32 {vr(a+2*p,2)}, {vr(a+2*p,2)}, v[14:15]")
        for p in range(8):
            A(f"v_cvt_pk_bf16_f32 v{o+p}, v{a+2*p}, v{a+2*p+1}")
        A("s_nop 1")
        for g in (0, 2):
            b = o + 2 * g
            A(f"v_permlane32_swap_b32 v{b}, v{b+2}")
            A(f"v_permlane32_swap_b32 v{b+1}, v{b+3}")
        for gi, g in enumerate((0, 2)):
            b = o + 2 * g
            T = o + 8 + 4 * gi
            lab = f"L_NOMIX_{rt}_{gi}"
            A(f"s_mov_b64 exec, s[{48+2*gi}:{49+2*gi}]")
            A(f"s_cbranch_execz {lab}")
            A(f"v_mov_b32 v{T}, v{b+2}")
            A(f"v_mov_b32 v{T+1}, v{b+3}")
            A(f"v_mov_b32 v{T+2}, s42")
            A(f"v_mov_b32 v{T+3}, s43")
            A(f"v_mov_b32 v{b+2}, s42")
            A(f"v_mov_b32 v{b+3}, s43")
            A(f"buffer_store_dwordx4 {vr(T,4)}, v{EA+2+gi}, s[8:11], s41 offen sc1")
            A.label(lab)
            A("s_mov_b64 exec, -1")
            A(f"buffer_store_dwordx4 {vr(b,4)}, v{EA+gi}, s[8:11], s41 offen sc1")
    A("s_branch L_SIGNAL")

    A.label("L_VPART")
    A("s_sub_u32 s27, s26, 28")
    A("s_lshl_b32 s27, s27, 5")
    A("v_add_u32 v5, s27, v3")
    A("v_mul_u32_u24 v6, 2341, v5")
    A("v_lshrrev_b32 v6, 16, v6")
    A("v_mul_u32_u24 v7, 28, v6")
    A("v_sub_u32 v5, v5, v7")
    A("v_cmp_le_u32 s[48:49], 24, v5")
    A("v_cmp_eq_u32 vcc, 24, v5")
    A(f"v_lshlrev_b32 v{EA}, 18, v6")
    A("v_lshl_add_u32 v5, v4, 5, v5")
    A(f"v_lshl_add_u32 v{EA}, v5, 4, v{EA}")
    A("v_mov_b32 v5, 0x3f803f80")
    A(f"v_cndmask_b32 v{EA+4}, 0, v5, vcc")
    for r in range(1, 4):
        A(f"v_mov_b32 v{EA+4+r}, v{EA+4}")
    mainloop(False)
    stamp(A, 1)
    A("s_nop 7")
    for rt in range(3):
        if rt == 1:
            A("s_cmp_eq_u32 s21, 21")
            A("s_cbranch_scc1 L_SIGNAL")
        A(f"s_add_u32 s41, s40, {rt}")
        A("s_lshl_b32 s41, s41, 12")
        A(f"s_add_u32 s41, s41, {KV_OFF}")
        a = ACC + 16 * rt
        o = XF + 16 * rt
        for p in range(8):
            A(f"v_cvt_pk_bf16_f32 v{o+p}, v{a+2*p}, v{a+2*p+1}")
        for tt in range(2):
            A(f"buffer_store_dwordx4 {vr(o+4*tt,4)}, v{EA}, s[8:11], s41 offen offset:{2048+1024*tt} sc1")
        A("s_mov_b64 exec, s[48:49]")
        for tt in range(2):
            A(f"buffer_store_dwordx4 {vr(EA+4,4)}, v{EA}, s[8:11], s41 offen offset:{2048+1024*tt+64} sc1")
        A("s_mov_b64 exec, -1")
    A.label("L_SIGNAL")
    stamp(A, 2)
    A("s_waitcnt vmcnt(0)")
    stamp(A, 3)
    A(f"s_mov_b32 s41, {C1_OFF}")
    A("s_mov_b64 exec, s[46:47]")
    A(f"buffer_atomic_add v{EA+11}, v{EA+10}, s[8:11], s41 offen sc1")
    A("s_mov_b64 exec, -1")
    A("s_branch L_P2")
    A.label("L_IDLE")
    for tau in range(7):
        A("s_barrier")

    A.label("L_P2")
    Q = 8
    O = 40
    SB = [104, 120]
    P = 136
    KVB = 144
    K0T = 208
    T2, T3 = 216, 232
    VOFF = 248

    def Kreg(b, s): return KVB + 16 * b + 4 * s
    def Vreg(b, t): return KVB + 16 * b + 8 + 4 * t
    def Qreg(i, s): return Q + 8 * i + 4 * s

    A("v_lshlrev_b32 v3, 4, v2")
    for j in range(4):
        A(f"v_add_u32 v{VOFF+j}, {j*4096}, v3")
    A("s_mov_b32 s34, 0")
    A("s_lshl_b32 s23, s24, 18")
    A(f"s_add_u32 s23, s23, {KV_OFF}")
    A("s_lshl_b32 s26, s3, 16")
    A("s_add_u32 s26, s26, s23")
    A("s_add_u32 s12, s6, s26"); A("s_addc_u32 s13, s7, 0"); A("s_mov_b32 s14, 65536"); A("s_mov_b32 s15, 0x00020000")
    A("s_lshl_b32 s27, s24, 17")
    A("s_lshl_b32 s26, s25, 13")
    A("s_add_u32 s27, s27, s26")
    for i in range(4):
        A(f"s_add_u32 s26, s3, {i}")
        A("s_and_b32 s26, s26, 3")
        A("s_lshl_b32 s26, s26, 11")
        A(f"s_add_u32 s{36+i}, s26, s27")

    def kv_prologue_loads():
        for b in range(4):
            for s in range(2):
                A(f"buffer_load_dwordx4 {vr(Kreg(b,s),4)}, v{VOFF+b}, s[12:15], 0 offen offset:{1024*s} {LD}")
            if b < 3:
                for t in range(2):
                    A(f"buffer_load_dwordx4 {vr(Vreg(b,t),4)}, v{VOFF+b}, s[12:15], 0 offen offset:{2048+1024*t} {LD}")

    def zero_state():
        for r in range(64):
            A(f"v_mov_b32 v{O+r}, 0")
        for r in range(4):
            A(f"v_mov_b32 v{P+4+r}, 0")
            A(f"v_mov_b32 v{Vreg(3,1)+r}, 0")

    zero_state()
    for i in range(1, 4):
        A(f"s_add_u32 s26, s3, {i}")
        A("s_and_b32 s26, s26, 3")
        A("s_mul_i32 s26, s26, 12288")
        A(f"s_add_u32 s26, s26, {L2_CMB + (i-1)*4096}")
        A(f"v_add_u32 v{3+i}, s26, v3")
    A("s_mul_i32 s26, s3, 12288")
    A(f"s_add_u32 s26, s26, {L2_CMB}")
    A("v_add_u32 v7, s26, v3")
    A("s_mov_b32 s28, 0")
    A("s_mov_b32 s29, -1")
    A("s_lshl_b32 s26, s25, 2")
    A("s_add_u32 s26, s26, s3")
    A("s_lshl_b32 s35, s26, 4")
    A("s_add_u32 s35, s35, s24")
    A("s_lshl_b32 s35, s35, 11")
    A(f"s_add_u32 s35, s35, {OF_OFF}")
    A("s_lshl_b32 s33, s26, 2")
    A("s_lshr_b32 s26, s24, 2")
    A("s_add_u32 s33, s33, s26")
    A("s_lshl_b32 s33, s33, 8")
    A(f"s_add_u32 s33, s33, {C2_OFF}")
    A(f"v_mov_b32 v{T2}, {L2_FLAG}")
    A(f"v_mov_b32 v{T2+1}, 0")
    A(f"ds_write_b32 v{T2}, v{T2+1}")
    A("s_waitcnt vmcnt(0) lgkmcnt(0)")
    stamp(A, 4)
    A("s_barrier")
    stamp(A, 5)
    for i in range(4):
        for s in range(2):
            A(f"buffer_load_dwordx4 {vr(Qreg(i,s),4)}, v3, s[8:11], s{36+i} offen offset:{1024*s} {LD}")
    for s in range(2):
        A(f"buffer_load_dwordx4 {vr(K0T+4*s,4)}, v3, s[8:11], s23 offen offset:{1024*s} {LD}")
    kv_prologue_loads()
    A("s_waitcnt vmcnt(14)")
    stamp(A, 6)
    A("s_mov_b64 exec, s[28:29]")
    for i in range(4):
        A(f"v_mov_b32 v{Qreg(i,1)+2}, 0")
        A(f"v_mov_b32 v{Qreg(i,1)+3}, 0")
    A("s_mov_b64 exec, -1")
    A("s_nop 1")
    TMP = [SB[0], SB[1], T2, T3]
    for i in range(4):
        mfma(A, TMP[i], K0T, Qreg(i, 0), None)
        mfma(A, TMP[i], K0T + 4, Qreg(i, 1), TMP[i])
    A("s_nop 7")
    for i in range(4):
        t = TMP[i]
        A(f"v_max3_f32 v{t}, v{t}, v{t+1}, v{t+2}")
        for k in range(3, 15, 2):
            A(f"v_max3_f32 v{t}, v{t}, v{t+k}, v{t+k+1}")
        A(f"v_max_f32 v{t}, v{t}, v{t+15}")
    A("s_mov_b64 exec, s[28:29]")
    for i in range(4):
        A(f"v_cvt_pk_bf16_f32 v{Qreg(i,1)+2}, -v{TMP[i]}, 0")
    A("s_mov_b64 exec, -1")

    A.label("L_MAIN")
    A("s_mov_b32 s30, 16384")
    A("s_mov_b32 s31, 0")
    A("s_waitcnt vmcnt(10)")
    mfma(A, SB[0], Kreg(0, 0), Qreg(0, 0), None)
    mfma(A, SB[0], Kreg(0, 1), Qreg(0, 1), SB[0])
    A("s_nop 7")
    A("s_nop 3")
    stamp(A, 7)
    cstamp(A, 12)
    A.raw(".p2align 6")
    A.label("L_LOOP")
    for tb in range(4):
        for qt in range(4):
            u = tb * 4 + qt
            sc = SB[u % 2]
            sn = SB[(u + 1) % 2]
            ntb, nqt = (tb, qt + 1) if qt < 3 else ((tb + 1) % 4, 0)
            ptb, pqt = (tb, qt - 1) if qt > 0 else ((tb + 3) % 4, 3)

            def ex(k, extra=()):
                extra = list(extra)
                for j in range(4):
                    A(f"v_exp_f32 v{sc+4*k+j}, v{sc+4*k+j}")
                    if extra:
                        A(extra.pop(0))
                assert not extra
                A(f"v_cvt_pk_bf16_f32 v{P+2*k}, v{sc+4*k}, v{sc+4*k+1}")
                A(f"v_cvt_pk_bf16_f32 v{P+2*k+1}, v{sc+4*k+2}, v{sc+4*k+3}")
            lds = [None, None]
            if qt == 3:
                lds = [f"buffer_load_dwordx4 {vr(Kreg(tb,s),4)}, v{VOFF+tb}, s[12:15], s30 offen offset:{1024*s} {LD}" for s in range(2)]
            if qt == 1:
                b = (tb + 3) % 4
                so = "s30" if tb >= 1 else "s31"
                lds = [f"buffer_load_dwordx4 {vr(Vreg(b,t),4)}, v{VOFF+b}, s[12:15], {so} offen offset:{2048+1024*t} {LD}" for t in range(2)]
            mfma(A, sn, Kreg(ntb, 0), Qreg(nqt, 0), None)
            if lds[0]:
                A(lds[0])
            ex(0)
            mfma(A, O + 16 * pqt, Vreg(ptb, 1), P + 4, O + 16 * pqt)
            if lds[1]:
                A(lds[1])
            ex(1)
            mfma(A, sn, Kreg(ntb, 1), Qreg(nqt, 1), sn)
            ex(2)
            mfma(A, O + 16 * qt, Vreg(tb, 0), P, O + 16 * qt)
            e = []
            if qt == 2:
                A("s_waitcnt vmcnt(8)")
            if tb == 3 and qt == 3:
                e = ["s_add_u32 s31, s31, 16384", "s_add_u32 s30, s30, 16384", "s_cmp_lt_u32 s31, 65536"]
            ex(3, e)
    A("s_cbranch_scc1 L_LOOP")
    A("s_nop 0")
    mfma(A, O + 48, Vreg(3, 1), P + 4, O + 48)
    stamp(A, 8)
    cstamp(A, 13)
    L = SB[0]
    for i in (1, 2):
        for g in range(4):
            A(f"ds_write_b128 v{3+i}, {vr(O+16*i+4*g,4)} offset:{1024*g}")
    A(f"v_mov_b32 v{L}, {f32bits(2.0**40):#x}")
    A(f"v_mov_b32 v{L+1}, {f32bits(2.0**-40):#x}")
    A("s_nop 3")
    for g in range(4):
        A(f"ds_write_b128 v6, {vr(O+48+4*g,4)} offset:{1024*g}")
    A("s_cmp_lg_u32 s34, 0")
    A("s_cbranch_scc1 L_NOFLAG")
    A(f"v_min3_f32 v{L+3}, v{O+12}, v{O+28}, v{O+44}")
    A(f"v_add_f32 v{L+4}, v{O+12}, v{O+28}")
    A(f"v_add_f32 v{L+5}, v{O+44}, v{O+60}")
    A(f"v_min_f32 v{L+3}, v{L+3}, v{O+60}")
    A(f"v_add_f32 v{L+4}, v{L+4}, v{L+5}")
    A(f"v_cmp_nlt_f32 vcc, v{L+4}, v{L}")
    A(f"v_cmp_nge_f32 s[40:41], v{L+3}, v{L+1}")
    A("s_cmp_eq_u32 s3, 0")
    A("s_cselect_b32 s41, s41, 0")
    A("s_or_b32 s41, s41, vcc_hi")
    A("s_cbranch_scc0 L_NOFLAG")
    A(f"v_mov_b32 v{L+5}, {L2_FLAG}")
    A(f"v_mov_b32 v{L+6}, 1")
    A(f"ds_write_b32 v{L+5}, v{L+6}")
    A.label("L_NOFLAG")
    A(f"v_mov_b32 v{L+5}, {L2_FLAG}")
    A("s_waitcnt lgkmcnt(0)")
    A("s_barrier")
    stamp(A, 9)
    R = KVB
    A(f"ds_read_b32 v{L+6}, v{L+5}")
    for sl in range(3):
        for g in range(4):
            A(f"ds_read_b128 {vr(R+16*sl+4*g,4)}, v7 offset:{4096*sl+1024*g}")
    A("s_waitcnt lgkmcnt(12)")
    A(f"v_readfirstlane_b32 s26, v{L+6}")
    for sl in range(3):
        for g in range(4):
            A(f"s_waitcnt lgkmcnt({11-4*sl-g})")
            for p in range(2):
                A(f"v_pk_add_f32 {vr(O+4*g+2*p,2)}, {vr(O+4*g+2*p,2)}, {vr(R+16*sl+4*g+2*p,2)}")
    A("s_cmp_gt_u32 s26, s34")
    A("s_cbranch_scc1 L_FALLBACK")
    A(f"v_mov_b32 v{L}, v{O+12}")
    A(f"v_mov_b32 v{L+1}, v{O+12}")
    A("s_nop 1")
    A(f"v_permlane32_swap_b32 v{L}, v{L+1}")
    A("s_nop 0")
    A(f"v_rcp_f32 v{L+2}, v{L+1}")
    A("s_nop 0")
    A(f"v_mov_b32 v{L+3}, v{L+2}")
    for p in range(8):
        A(f"v_pk_mul_f32 {vr(O+2*p,2)}, {vr(O+2*p,2)}, {vr(L+2,2)}")
    for p in range(8):
        A(f"v_cvt_pk_bf16_f32 v{R+p}, v{O+2*p}, v{O+2*p+1}")
    A("s_mov_b64 exec, s[28:29]")
    A(f"v_mov_b32 v{R+6}, 0")
    A(f"v_mov_b32 v{R+7}, 0")
    A("s_mov_b64 exec, -1")
    for s in range(2):
        A(f"buffer_store_dwordx4 {vr(R+4*s,4)}, v3, s[8:11], s35 offen offset:{1024*s} sc1")
    A(f"v_mov_b32 v{L}, 0")
    A(f"v_mov_b32 v{L+1}, 1")
    stamp(A, 10)
    A("s_waitcnt vmcnt(0)")
    stamp(A, 11)
    A("s_mov_b64 exec, 1")
    A(f"buffer_atomic_add v{L+1}, v{L}, s[8:11], s33 offen sc1")
    A("s_branch L_END")

    A.label("L_FALLBACK")
    A("s_mov_b32 s34, 1")
    A("s_waitcnt vmcnt(0)")
    A("s_mov_b64 exec, s[28:29]")
    for i in range(4):
        A(f"v_mov_b32 v{Qreg(i,1)+2}, 0")
        A(f"v_mov_b32 v{Qreg(i,1)+3}, 0")
    A("s_mov_b64 exec, -1")
    M = T2
    for i in range(4):
        A(f"v_mov_b32 v{M+i}, 0xff800000")
    A("s_mov_b32 s31, 0")
    A.label("L_MAXLOOP")
    for s in range(2):
        A(f"buffer_load_dwordx4 {vr(K0T+4*s,4)}, v3, s[12:15], s31 offen offset:{1024*s} {LD}")
    A("s_waitcnt vmcnt(0)")
    for i in range(4):
        t = O + 16 * i
        mfma(A, t, K0T, Qreg(i, 0), None)
        mfma(A, t, K0T + 4, Qreg(i, 1), t)
    A("s_nop 7")
    A("s_nop 7")
    for i in range(4):
        t = O + 16 * i
        for k in range(0, 16, 2):
            A(f"v_max3_f32 v{M+i}, v{M+i}, v{t+k}, v{t+k+1}")
    A("s_add_u32 s31, s31, 4096")
    A("s_cmp_lt_u32 s31, 65536")
    A("s_cbranch_scc1 L_MAXLOOP")
    for i in range(4):
        A(f"v_mov_b32 v{M+4+i}, v{M+i}")
    A("s_nop 1")
    for i in range(4):
        A(f"v_permlane32_swap_b32 v{M+i}, v{M+4+i}")
    A("s_nop 1")
    for i in range(4):
        A(f"v_max_f32 v{M+i}, v{M+i}, v{M+4+i}")
    A(f"v_and_b32 v{M+8}, 31, v2")
    A(f"v_lshlrev_b32 v{M+8}, 2, v{M+8}")
    for i in range(4):
        A(f"s_add_u32 s26, s3, {i}")
        A("s_and_b32 s26, s26, 3")
        A("s_lshl_b32 s26, s26, 9")
        A(f"s_add_u32 s26, s26, {L2_MX}")
        A(f"v_add_u32 v{M+9+i}, s26, v{M+8}")
        A("s_lshl_b32 s27, s3, 7")
        A(f"v_add_u32 v{M+13}, s27, v{M+9+i}")
        A(f"ds_write_b32 v{M+13}, v{M+i}")
    A("s_waitcnt lgkmcnt(0)")
    A("s_barrier")
    for i in range(4):
        for w in range(4):
            A(f"ds_read_b32 v{O+4*i+w}, v{M+9+i} offset:{128*w}")
            if (4 * i + w) % 8 == 7:
                A("s_waitcnt lgkmcnt(0)")
    for i in range(4):
        t = O + 4 * i
        A(f"v_max3_f32 v{t}, v{t}, v{t+1}, v{t+2}")
        A(f"v_max_f32 v{t}, v{t}, v{t+3}")
        A(f"v_sub_f32 v{t}, 0, v{t}")
        A(f"v_cvt_pk_bf16_f32 v{t+1}, v{t}, 0")
        A(f"v_lshlrev_b32 v{t+2}, 16, v{t+1}")
        A(f"v_sub_f32 v{t}, v{t}, v{t+2}")
        A(f"v_cvt_pk_bf16_f32 v{t+2}, v{t}, 0")
        A(f"v_lshlrev_b32 v{t+3}, 16, v{t+2}")
        A(f"v_sub_f32 v{t}, v{t}, v{t+3}")
        A(f"v_or_b32 v{t+1}, v{t+1}, v{t+3}")
        A(f"v_cvt_pk_bf16_f32 v{t+2}, v{t}, 0")
    A("s_mov_b64 exec, s[28:29]")
    for i in range(4):
        t = O + 4 * i
        A(f"v_mov_b32 v{Qreg(i,1)+2}, v{t+1}")
        A(f"v_mov_b32 v{Qreg(i,1)+3}, v{t+2}")
    A("s_mov_b64 exec, -1")
    kv_prologue_loads()
    zero_state()
    A("s_branch L_MAIN")

    A.label("L_END")
    stamp_flush(A)
    A.label("L_EXIT")
    A("s_endpgm")


HEADER = """; MHA block (B=1, S=2048, D=448, H=16) for gfx950, one persistent launch:
"""


def main(out):
    A = Asm()
    A.raw(HEADER.rstrip())
    A.raw(f"; @launch grid=(256,1,1) block=(512,1,1) lds={LDS_TOTAL}")
    A.raw('.amdgcn_target "amdgcn-amd-amdhsa--gfx950"')
    A.raw(".text")
    gen(A)
    A.raw('.section .rodata,"a"')
    A.raw(f""".p2align 6
.amdhsa_kernel {NAME}
  .amdhsa_next_free_vgpr 256
  .amdhsa_next_free_sgpr {102 if STAMP else 64}
  .amdhsa_accum_offset 256
  .amdhsa_group_segment_fixed_size 0
  .amdhsa_kernarg_size 48
  .amdhsa_user_sgpr_count 2
  .amdhsa_user_sgpr_kernarg_segment_ptr 1
  .amdhsa_system_sgpr_workgroup_id_x 1
.end_amdhsa_kernel""")
    open(out, "w").write(A.text())


if __name__ == "__main__":
    out = sys.argv[1] if len(sys.argv) > 1 else "standalone__mha_block__prompt.s"
    for a in sys.argv[2:]:
        if a == "stamp":
            STAMP = True
        elif "=" in a:
            k, v = a.split("=", 1)
            OPT[k] = v
    main(out)
```

```python
import sys, math, struct

S_TOK, D, H, DH = 2048, 448, 16, 28
QF_OFF = 0
KV_OFF = 2 << 20
OF_OFF = 6 << 20
C1_OFF = 8 << 20
C2_OFF = (8 << 20) + 65536
WS_USED = (8 << 20) + 131072
QSCALE = math.log2(math.e) / math.sqrt(DH)
SPIN_MAX = 40000

OPT = dict(ldsc="sc1", pretouch="", stgprio="3", stgsleep="3", stgdelay="32", pollsleep="4")


def f32bits(x):
    return struct.unpack("<I", struct.pack("<f", x))[0]


class Asm:
    def __init__(self):
        self.l = []

    def __call__(self, s):
        self.l.append("  " + s)

    def label(self, s):
        self.l.append(s + ":")

    def raw(self, s):
        self.l.append(s)

    def text(self):
        return "\n".join(self.l) + "\n"


def vr(a, n):
    return f"v[{a}:{a+n-1}]"


STAMP = False
STAMP_OFF = 16 << 20
NSTAMP = 16


def stamp_init(A):
    if not STAMP:
        return
    for k in range(NSTAMP):
        A(f"s_mov_b32 s{64+2*k}, 0")
    A("s_memrealtime s[64:65]")


def stamp(A, slot):
    if STAMP:
        A(f"s_memrealtime s[{64+2*slot}:{65+2*slot}]")


def cstamp(A, slot):
    if STAMP:
        A(f"s_memtime s[{64+2*slot}:{65+2*slot}]")


def stamp_flush(A):
    if not STAMP:
        return
    A("s_waitcnt vmcnt(0)")
    A(f"s_memrealtime s[{64+2*(NSTAMP-1)}:{65+2*(NSTAMP-1)}]")
    A("s_waitcnt lgkmcnt(0)")
    A(f"s_add_u32 s96, s6, {STAMP_OFF}")
    A("s_addc_u32 s97, s7, 0")
    A("s_mov_b32 s98, 0x100000")
    A("s_mov_b32 s99, 0x00020000")
    A("s_lshl_b32 s100, s2, 10")
    A("s_lshl_b32 s101, s3, 6")
    A("s_add_u32 s100, s100, s101")
    A("s_mov_b64 exec, 1")
    A("v_mov_b32 v0, 0")
    for k in range(NSTAMP):
        A(f"v_mov_b32 v1, s{64+2*k}")
        A(f"buffer_store_dword v1, v0, s[96:99], s100 offen offset:{4*k}")
        A("s_nop 1")


def mfma(A, d, a, b, c):
    cs = "0" if c is None else vr(c, 16)
    A(f"v_mfma_f32_32x32x16_bf16 {vr(d,16)}, {vr(a,4)}, {vr(b,4)}, {cs}")


L1_W = 0
L1_X = 65536
L3_STG = 0
L2_FLAG = 61440
L2_MX = 61440 + 256
L2_CMB = 65536
L3_RED = 114688
LDS_TOTAL = 163840

NAME = "standalone__mha_block__prompt_kernel"


STEPS = [(0, [(0, 0), (1, 0)]), (1, [(0, 1), (1, 1)]), (2, [(0, 2), (1, 2)]), (3, [(0, 3), (1, 3)]),
         (4, [(0, 4)]), (5, [(0, 5)]), (6, [(0, 6)]),
         (None, [(1, 4), (1, 5), (1, 6)]), (None, [(2, 0), (2, 1), (2, 2), (2, 3)]), (None, [(2, 4), (2, 5), (2, 6)])]
EPI_AFTER = {6: 0, 7: 1, 9: 2}


def gen(A):
    LD = OPT["ldsc"]
    A.raw(f".globl {NAME}")
    A.raw(".p2align 8")
    A.raw(f".type {NAME},@function")
    A.label(NAME)
    A("s_cmp_ge_u32 s2, 256")
    A("s_cbranch_scc1 L_EXIT")
    stamp_init(A)
    A("s_load_dwordx4 s[16:19], s[0:1], 0")
    A("s_load_dwordx4 s[52:55], s[0:1], 16")
    A("s_load_dwordx4 s[4:7], s[0:1], 32")
    A("v_lshrrev_b32 v1, 6, v0")
    A("v_and_b32 v2, 63, v0")
    A("v_readfirstlane_b32 s3, v1")
    A("s_and_b32 s20, s2, 7")
    A("s_mul_i32 s20, s20, 31")
    A("s_lshr_b32 s21, s2, 3")
    A("s_add_u32 s20, s20, s21")
    A("s_cmp_lt_u32 s2, 248")
    A("s_cselect_b32 s20, s20, 255")
    A("s_cmp_ge_u32 s20, 132")
    A("s_cbranch_scc1 L_RIGHT")
    A("s_mul_i32 s21, s20, 171")
    A("s_lshr_b32 s21, s21, 10")
    A("s_mul_i32 s23, s21, 6")
    A("s_sub_u32 s22, s20, s23")
    A("s_branch L_MAPPED")
    A.label("L_RIGHT")
    A("s_sub_u32 s23, s20, 132")
    A("s_mul_i32 s21, s23, 205")
    A("s_lshr_b32 s21, s21, 10")
    A("s_mul_i32 s24, s21, 5")
    A("s_sub_u32 s22, s23, s24")
    A("s_add_u32 s22, s22, 6")
    A.label("L_MAPPED")
    A("s_and_b32 s24, s2, 7")
    A("s_lshl_b32 s24, s24, 1")
    A("s_bfe_u32 s25, s2, 0x10003")
    A("s_add_u32 s24, s24, s25")
    A("s_lshr_b32 s25, s2, 4")
    A("s_waitcnt lgkmcnt(0)")
    A("s_mov_b32 s8, s6"); A("s_mov_b32 s9, s7"); A(f"s_mov_b32 s10, {WS_USED}"); A("s_mov_b32 s11, 0x00020000")
    A("s_cmp_lt_u32 s3, 4")
    A("s_cbranch_scc1 L_CWAVE")

    A("s_sub_u32 s26, s3, 4")
    A("s_setprio 3")
    A("s_mov_b32 s56, s4"); A("s_mov_b32 s57, s5"); A("s_mov_b32 s58, 256"); A("s_mov_b32 s59, 0x00020000")
    A("s_cmp_lg_u32 s2, 207")
    A("s_cbranch_scc1 L_NOINIT")
    A("s_cmp_lg_u32 s26, 3")
    A("s_cbranch_scc1 L_NOINIT")
    A("v_lshlrev_b32 v3, 8, v2")
    A("v_mov_b32 v4, 0")
    for i in range(8):
        if i == 3:
            continue
        A(f"s_mov_b32 s27, {C1_OFF + i * 16384}")
        A("buffer_store_dword v4, v3, s[8:11], s27 offen sc1")
    A("s_waitcnt vmcnt(0)")
    A("v_mov_b32 v5, 1")
    A("s_mov_b64 exec, 1")
    A("buffer_store_dword v5, v4, s[56:59], 0 offen sc1")
    A("s_mov_b64 exec, -1")
    A("s_waitcnt vmcnt(0)")
    A.label("L_NOINIT")
    A("s_cmp_ge_u32 s20, 242")
    A("s_cbranch_scc1 L_LP1DONE")
    A("s_mov_b32 s28, s16"); A("s_mov_b32 s29, s17"); A(f"s_mov_b32 s30, {S_TOK*D*2}"); A("s_mov_b32 s31, 0x00020000")
    A("s_mov_b32 s32, s18"); A("s_mov_b32 s33, s19"); A(f"s_mov_b32 s34, {D*3*D*2}"); A("s_mov_b32 s35, 0x00020000")
    A("s_lshl_b32 s39, s21, 1")
    A("s_add_u32 s39, s39, s22")
    A("s_mul_i32 s27, s39, 37")
    A("s_lshr_b32 s27, s27, 8")
    A("s_mul_i32 s27, s27, 7")
    A("s_sub_u32 s39, s39, s27")
    A("v_lshrrev_b32 v3, 3, v2")
    A("v_and_b32 v4, 7, v2")
    A("v_lshrrev_b32 v5, 1, v3")
    A("s_and_b32 s27, s26, 1")
    A("s_lshl_b32 s27, s27, 2")
    A("v_add_u32 v5, s27, v5")
    A("v_and_b32 v5, 7, v5")
    A("v_xor_b32 v4, v4, v5")
    A("v_mul_u32_u24 v3, 896, v3")
    A("v_lshl_add_u32 v3, v4, 4, v3")
    A("v_lshrrev_b32 v6, 4, v2")
    A("v_and_b32 v7, 15, v2")
    A("v_lshlrev_b32 v8, 2, v6")
    A("v_xor_b32 v7, v7, v8")
    A("v_mul_u32_u24 v6, 2688, v6")
    A("v_lshl_add_u32 v6, v7, 4, v6")
    A("s_lshl_b32 s27, s22, 4")
    A("v_add_u32 v7, s27, v7")
    A("v_mov_b32 v8, 0x40000000")
    A("v_cmp_le_u32 vcc, 168, v7")
    A("s_nop 1")
    A("v_cndmask_b32 v6, v6, v8, vcc")
    A("s_mul_i32 s36, s21, 96")
    A("s_lshl_b32 s27, s26, 3")
    A("s_add_u32 s36, s36, s27")
    A("s_mul_i32 s36, s36, 896")
    A(f"s_mul_i32 s37, s26, {4*2688}")
    A("s_lshl_b32 s27, s22, 8")
    A("s_add_u32 s37, s37, s27")
    A("s_lshl_b32 s38, s26, 10")

    def chunk_of(tau):
        A(f"s_add_u32 s40, s39, {tau}")
        A("s_cmp_ge_u32 s40, 7")
        A("s_cselect_b32 s41, 7, 0")
        A("s_sub_u32 s40, s40, s41")

    def load_w(tau):
        chunk_of(tau)
        A(f"s_mul_i32 s41, s40, {64*2688}")
        A("s_add_u32 s41, s41, s37")
        for i in range(4):
            A(f"s_add_u32 s42, s38, {L1_W + (tau % 4) * 16384 + i * 4096}")
            A("s_mov_b32 m0, s42")
            A(f"s_add_u32 s43, s41, {i * 16 * 2688}")
            A("buffer_load_dwordx4 v6, s[32:35], s43 offen lds")

    def load_x(items):
        last = None
        for rt, tau in items:
            if tau != last:
                chunk_of(tau)
                A("s_lshl_b32 s41, s40, 7")
                A("s_add_u32 s41, s41, s36")
                last = tau
            A(f"s_add_u32 s42, s38, {L1_X + tau * 12288 + rt * 4096}")
            A("s_mov_b32 m0, s42")
            A(f"s_add_u32 s43, s41, {rt * 32 * 896}")
            A("buffer_load_dwordx4 v3, s[28:31], s43 offen lds")

    def step_loads(k):
        w, xs = STEPS[k]
        if w is not None:
            load_w(w)
        load_x(xs)
        return (4 if w is not None else 0) + len(xs)

    plan = [[0, 1, 2], [3], [4], [5], [6], [7, 8], [9], [], [], []]
    cnt = {}
    issued = []
    for k in range(10):
        for st in plan[k]:
            cnt[st] = step_loads(st)
            issued.append(st)
        if k == 6:
            A("v_mov_b32 v4, 0")
            A("buffer_load_dword v5, v4, s[56:59], 0 offen sc1")
            cnt[10] = 1
            issued.append(10)
        if k == 9:
            A("s_mov_b32 s27, 0")
            A("s_waitcnt vmcnt(0)")
            A.label("L_INITPOLL")
            A("v_readfirstlane_b32 s40, v5")
            A("s_add_u32 s27, s27, 1")
            A(f"s_cmp_gt_u32 s27, {SPIN_MAX}")
            A("s_cbranch_scc1 L_INITSEEN")
            A("s_cmp_lg_u32 s40, 0")
            A("s_cbranch_scc1 L_INITSEEN")
            A("buffer_load_dword v5, v4, s[56:59], 0 offen sc1")
            A("s_waitcnt vmcnt(0)")
            A("s_branch L_INITPOLL")
            A.label("L_INITSEEN")
        else:
            left = sum(cnt[st] for st in issued if st > k)
            A(f"s_waitcnt vmcnt({left})")
        A("s_barrier")
        if k == 0:
            stamp(A, 1)
        if k == 6:
            stamp(A, 2)
    A.label("L_LP1DONE")
    stamp(A, 3)
    A("s_barrier")
    A("s_lshr_b32 s44, s2, 2")
    A("s_and_b32 s45, s2, 3")
    A("s_mov_b32 s28, s52"); A("s_mov_b32 s29, s53"); A(f"s_mov_b32 s30, {D*D*2}"); A("s_mov_b32 s31, 0x00020000")
    A("s_mov_b32 s32, s54"); A("s_mov_b32 s33, s55"); A(f"s_mov_b32 s34, {S_TOK*D*2}"); A("s_mov_b32 s35, 0x00020000")
    A("v_lshrrev_b32 v6, 4, v2")
    A("v_and_b32 v7, 15, v2")
    A("v_lshlrev_b32 v8, 2, v6")
    A("v_xor_b32 v7, v7, v8")
    A("v_mul_u32_u24 v6, 896, v6")
    A("v_lshl_add_u32 v6, v7, 4, v6")
    A("s_lshl_b32 s27, s45, 4")
    A("v_add_u32 v7, s27, v7")
    A("v_mov_b32 v8, 0x40000000")
    A("v_cmp_le_u32 vcc, 56, v7")
    A("s_nop 1")
    A("v_cndmask_b32 v6, v6, v8, vcc")
    A(f"s_mul_i32 s36, s26, {112*896}")
    A("s_lshl_b32 s27, s45, 8")
    A("s_add_u32 s36, s36, s27")
    A("s_mul_i32 s38, s26, 15360")
    A(f"s_add_u32 s38, s38, {L3_STG}")
    A("v_and_b32 v5, 15, v2")
    A("v_lshrrev_b32 v3, 2, v5")
    A("v_bfe_u32 v4, v2, 4, 1")
    A("v_lshlrev_b32 v4, 1, v4")
    A("v_bfe_u32 v7, v5, 1, 1")
    A("v_add_u32 v4, v4, v7")
    A("v_lshrrev_b32 v12, 5, v2")
    A("v_lshl_add_u32 v7, v12, 2, v3")
    A("v_lshlrev_b32 v13, 8, v7")
    A("v_lshl_add_u32 v13, v4, 4, v13")
    A("v_and_b32 v7, 1, v5")
    A("v_lshl_add_u32 v13, v7, 3, v13")
    A("v_add_u32 v13, s38, v13")
    for i in range(4):
        A(f"s_add_u32 s27, s26, {i}")
        A("s_and_b32 s27, s27, 3")
        A("v_xor_b32 v7, s27, v3")
        A(f"v_lshl_add_u32 v{8+i}, v7, 6, v13")
    WF = 16
    OFR = 144
    ACC3 = 176
    A("v_lshlrev_b32 v240, 4, v2")
    for i in range(1, 4):
        A(f"s_add_u32 s27, s26, {i}")
        A("s_and_b32 s27, s27, 3")
        A("s_mul_i32 s27, s27, 12288")
        A(f"s_add_u32 s27, s27, {L3_RED + (i-1)*4096}")
        A(f"v_add_u32 v{240+i}, s27, v240")
    A("s_mul_i32 s27, s26, 12288")
    A(f"s_add_u32 s27, s27, {L3_RED}")
    A("v_add_u32 v244, s27, v240")
    A("v_add_u32 v245, 4096, v240")
    A("s_lshl_b32 s46, s44, 15")
    A("s_lshl_b32 s27, s26, 13")
    A("s_add_u32 s46, s46, s27")
    A(f"s_add_u32 s46, s46, {OF_OFF}")
    A("s_lshl_b32 s47, s44, 2")
    A("s_add_u32 s47, s47, s26")
    A("s_lshl_b32 s47, s47, 8")
    A(f"s_add_u32 s47, s47, {C2_OFF}")
    A("v_and_b32 v246, 31, v2")
    A("v_mul_u32_u24 v246, 896, v246")
    A("v_lshl_add_u32 v246, v12, 4, v246")
    A(f"s_mul_i32 s48, s44, {32*896}")
    A("s_lshl_b32 s27, s45, 8")
    A("s_add_u32 s48, s48, s27")
    A("s_lshl_b32 s27, s26, 6")
    A("s_add_u32 s48, s48, s27")
    A(f"v_mov_b32 v247, {L2_FLAG}")
    A("v_mov_b32 v248, 0")
    if OPT["stgdelay"]:
        A(f"v_mov_b32 v249, {L2_FLAG}")
        A("s_mov_b32 s27, 0")
        A.label("L_STGWAIT")
        A("s_sleep 8")
        A("ds_read_b32 v250, v249 offset:4")
        A("s_waitcnt lgkmcnt(0)")
        A("v_readfirstlane_b32 s40, v250")
        A("s_add_u32 s27, s27, 1")
        A(f"s_cmp_gt_u32 s27, {SPIN_MAX*8}")
        A("s_cbranch_scc1 L_STGGO")
        A("s_cmp_eq_u32 s40, 0")
        A("s_cbranch_scc1 L_STGWAIT")
        A.label("L_STGGO")
        A(f"s_setprio {OPT['stgprio']}")
        A(f"s_sleep {OPT['stgdelay']}")
    for rho in range(2):
        for i in range(15):
            A(f"s_add_u32 s42, s38, {i*1024}")
            A("s_mov_b32 m0, s42")
            A(f"s_add_u32 s43, s36, {(56*rho + 4*i)*896}")
            A("buffer_load_dwordx4 v6, s[28:31], s43 offen lds")
            if OPT["stgsleep"]:
                A(f"s_sleep {OPT['stgsleep']}")
        A("s_waitcnt vmcnt(0)")
        n = 0
        for hh in range(2):
            for s in range(2):
                for i in range(4):
                    for rd in range(2):
                        j = (2 * rho + hh) * 2 + s
                        A(f"ds_read_b64_tr_b16 {vr(WF+16*j+4*i+2*rd,2)}, v{8+i} offset:{(28*hh+16*s+8*rd)*256}")
                        n += 1
                        if n % 8 == 0:
                            A("s_waitcnt lgkmcnt(4)")
        A("s_waitcnt lgkmcnt(0)")
    stamp(A, 5)
    A("s_setprio 3")
    A("s_barrier")
    A("ds_read_b32 v13, v247")
    A("s_waitcnt lgkmcnt(0)")
    A("v_readfirstlane_b32 s27, v13")
    A("s_nop 3")
    A("s_cmp_eq_u32 s27, 0")
    A("s_cbranch_scc1 L_NOFB")
    A("s_barrier")
    A("s_barrier")
    A.label("L_NOFB")
    stamp(A, 6)
    A("s_mov_b32 s27, 0")
    A.label("L_C2POLL")
    A("buffer_load_dword v13, v248, s[8:11], s47 offen sc1")
    A("s_waitcnt vmcnt(0)")
    A("v_readfirstlane_b32 s40, v13")
    A("s_add_u32 s27, s27, 1")
    A(f"s_cmp_gt_u32 s27, {SPIN_MAX}")
    A("s_cbranch_scc1 L_C2OUT")
    A("s_cmp_lg_u32 s40, 4")
    A("s_cbranch_scc1 L_C2POLL")
    A.label("L_C2OUT")
    stamp(A, 7)
    for j in range(8):
        A(f"buffer_load_dwordx4 {vr(OFR+4*j,4)}, v{240 if j < 4 else 245}, s[8:11], s46 offen offset:{(j%4)*1024} {LD}")
    for j in range(8):
        A(f"s_waitcnt vmcnt({7-j})")
        for i in range(4):
            mfma(A, ACC3 + 16 * i, WF + 16 * j + 4 * i, OFR + 4 * j, None if j == 0 else ACC3 + 16 * i)
    stamp(A, 8)
    A("s_nop 7")
    A("s_nop 3")
    for i in (1, 2, 3):
        for g in range(4):
            A(f"ds_write_b128 v{240+i}, {vr(ACC3+16*i+4*g,4)} offset:{1024*g}")
    A("s_waitcnt lgkmcnt(0)")
    A("s_barrier")
    R = WF
    for sl in range(3):
        for g in range(4):
            A(f"ds_read_b128 {vr(R+16*sl+4*g,4)}, v244 offset:{4096*sl+1024*g}")
    for sl in range(3):
        for g in range(4):
            A(f"s_waitcnt lgkmcnt({11-4*sl-g})")
            for p in range(2):
                A(f"v_pk_add_f32 {vr(ACC3+4*g+2*p,2)}, {vr(ACC3+4*g+2*p,2)}, {vr(R+16*sl+4*g+2*p,2)}")
    for p in range(8):
        A(f"v_cvt_pk_bf16_f32 v{OFR+p}, v{ACC3+2*p}, v{ACC3+2*p+1}")
    A("s_lshl_b32 s27, s45, 2")
    A("s_add_u32 s27, s27, s26")
    A("s_cmp_ge_u32 s27, 14")
    A("s_cbranch_scc1 L_END")
    for g in (0, 2):
        b = OFR + 2 * g
        A(f"v_permlane32_swap_b32 v{b}, v{b+2}")
        A(f"v_permlane32_swap_b32 v{b+1}, v{b+3}")
    for g in (0, 2):
        b = OFR + 2 * g
        A(f"buffer_store_dwordx4 {vr(b,4)}, v246, s[32:35], s48 offen offset:{16*g}")
    A("s_branch L_END")

    A.label("L_CWAVE")
    A("s_cmp_ge_u32 s20, 242")
    A("s_cbranch_scc1 L_NOTILE")
    A("s_lshl_b32 s26, s22, 2")
    A("s_add_u32 s26, s26, s3")
    A("v_and_b32 v3, 31, v2")
    A("v_lshrrev_b32 v4, 5, v2")
    A("v_bfe_u32 v5, v3, 1, 3")
    for ks in range(4):
        A(f"v_add_u32 v6, {2*ks}, v4")
        A("v_xor_b32 v6, v6, v5")
        A("v_lshlrev_b32 v6, 4, v6")
        A(f"v_lshl_add_u32 v{8+ks}, v3, 7, v6")
        A(f"v_add_u32 v{8+ks}, {L1_X}, v{8+ks}")
        A(f"v_add_u32 v{140+ks}, {4*12288}, v{8+ks}")
    A("v_and_b32 v5, 15, v2")
    A("v_lshrrev_b32 v6, 2, v5")
    A("v_bfe_u32 v7, v2, 4, 1")
    A("v_lshlrev_b32 v7, 1, v7")
    A("v_bfe_u32 v13, v5, 1, 1")
    A("v_add_u32 v7, v7, v13")
    A("s_lshl_b32 s27, s3, 2")
    A("v_add_u32 v7, s27, v7")
    A("v_lshlrev_b32 v13, 2, v6")
    A("v_xor_b32 v7, v7, v13")
    A("v_lshl_add_u32 v6, v4, 3, v6")
    A("v_lshlrev_b32 v12, 8, v6")
    A("v_lshl_add_u32 v12, v7, 4, v12")
    A("v_and_b32 v13, 1, v5")
    A("v_lshl_add_u32 v12, v13, 3, v12")
    ACC = 16
    for r in range(48):
        A(f"v_mov_b32 v{ACC+r}, 0")
    XF = 64
    EO = 96
    EA = 128
    WR = 144
    A("s_mul_i32 s27, s21, 96")
    A("s_lshr_b32 s40, s27, 9")
    A("s_add_u32 s27, s27, 95")
    A("s_min_u32 s27, s27, 2047")
    A("s_lshr_b32 s41, s27, 9")
    A("s_cmp_lg_u32 s40, s41")
    A("s_cselect_b32 s46, 3, 1")
    A("s_mov_b32 s47, 0")
    A("s_lshl_b32 s27, s26, 2")
    A("s_add_u32 s27, s27, s40")
    A(f"v_add_u32 v{EA+10}, s27, v2")
    A(f"v_lshlrev_b32 v{EA+10}, 8, v{EA+10}")
    A(f"v_mov_b32 v{EA+11}, 1")
    A("s_mul_i32 s40, s21, 3")
    A("s_mov_b32 s60, 1")
    A("s_mov_b32 s61, 1")
    A("s_cmp_ge_u32 s26, 42")
    A("s_cbranch_scc1 L_IDLE")
    A("s_cmp_ge_u32 s26, 28")
    A("s_cbranch_scc1 L_VPART")

    def flag_init():
        A(f"v_mov_b32 v5, {L2_FLAG}")
        A("v_mov_b32 v6, 0")
        A("v_mov_b32 v7, 0")
        A("ds_write_b64 v5, v[6:7]")
        A("s_waitcnt lgkmcnt(0)")

    def mainloop(transposed, epilogue):
        for k, (w, xs) in enumerate(STEPS):
            A("s_barrier")
            jobs = []
            for n, (rt, tau) in enumerate(xs):
                for ks in range(4):
                    jobs.append((rt, tau, ks))
            if w is not None:
                jobs.sort(key=lambda j: (j[2], j[0]))
            pend = []
            nxt = 0
            wdone = set()

            def issue(ji):
                rt, tau, ks = jobs[ji]
                n = 0
                if w is not None and ks not in wdone:
                    wdone.add(ks)
                    for rd in range(2):
                        A(f"ds_read_b64_tr_b16 {vr(WR+16*tau+4*ks+2*rd,2)}, v12 offset:{(tau%4)*16384 + ks*4096 + rd*1024}")
                        pend.append(ji)
                base = 8 + ks if tau < 4 else 140 + ks
                tx = tau if tau < 4 else tau - 4
                A(f"ds_read_b128 {vr(XF+4*(ji%8),4)}, v{base} offset:{tx*12288 + rt*4096}")
                pend.append(ji)
            DEPTH = 5
            for ji in range(len(jobs)):
                while nxt < len(jobs) and nxt < ji + DEPTH:
                    issue(nxt)
                    nxt += 1
                left = sum(1 for p in pend if p > ji)
                assert left <= 15
                A(f"s_waitcnt lgkmcnt({left})")
                rt, tau, ks = jobs[ji]
                wreg = WR + 16 * tau + 4 * ks
                xreg = XF + 4 * (ji % 8)
                if transposed:
                    mfma(A, ACC + 16 * rt, wreg, xreg, ACC + 16 * rt)
                else:
                    mfma(A, ACC + 16 * rt, xreg, wreg, ACC + 16 * rt)
            if k == 8:
                flag_init()
            if k == 9:
                stamp(A, 1)
                A("s_barrier")
            if k in EPI_AFTER:
                A("s_nop 7")
                A("s_nop 1")
                epilogue(EPI_AFTER[k])
                if k < 9:
                    stamp(A, 14) if k == 7 else None

    A("s_cmp_ge_u32 s26, 14")
    A("s_cselect_b32 s27, 14, 0")
    A(f"s_cselect_b32 s36, {KV_OFF}, {QF_OFF}")
    A("s_cselect_b32 s37, 12, 11")
    A(f"s_cselect_b32 s38, 1.0, {f32bits(QSCALE):#x}")
    A("s_cselect_b32 s42, 0x3f803f80, 0")
    A("s_cselect_b32 s43, 0x3f80, 0")
    A("s_sub_u32 s27, s26, s27")
    A("s_lshl_b32 s27, s27, 2")
    A("s_add_u32 s39, s37, 6")
    A("s_lshl_b32 s44, 1, s39")
    for gi, g in enumerate((0, 2)):
        A(f"v_add_u32 v5, {g}, v4")
        A("v_add_u32 v5, s27, v5")
        A("v_mul_u32_u24 v6, 37, v5")
        A("v_lshrrev_b32 v6, 8, v6")
        A("v_mul_u32_u24 v7, 7, v6")
        A("v_sub_u32 v5, v5, v7")
        A(f"v_cmp_eq_u32 s[{48+2*gi}:{49+2*gi}], 3, v5")
        A("v_lshrrev_b32 v7, 2, v5")
        A("v_lshl_add_u32 v6, v6, 1, v7")
        A("v_and_b32 v5, 3, v5")
        A(f"v_lshlrev_b32 v{EA+gi}, s39, v6")
        A(f"v_lshl_add_u32 v{EA+gi}, v5, 9, v{EA+gi}")
        A(f"v_lshl_add_u32 v{EA+gi}, v3, 4, v{EA+gi}")
        A(f"v_add_u32 v{EA+2+gi}, s44, v{EA+gi}")
    A("v_mov_b32 v14, s38")
    A("v_mov_b32 v15, s38")

    def epi_qk(rt):
        if rt >= 1:
            A("s_cmp_eq_u32 s21, 21")
            A(f"s_cbranch_scc1 L_SKIPQK_{rt}")
        A(f"s_add_u32 s41, s40, {rt}")
        A("s_lshl_b32 s41, s41, s37")
        A("s_add_u32 s41, s41, s36")
        a = ACC + 16 * rt
        o = EO + 16 * (rt % 2)
        for p in range(8):
            A(f"v_pk_mul_f32 {vr(a+2*p,2)}, {vr(a+2*p,2)}, v[14:15]")
        for p in range(8):
            A(f"v_cvt_pk_bf16_f32 v{o+p}, v{a+2*p}, v{a+2*p+1}")
        A("s_nop 1")
        for g in (0, 2):
            b = o + 2 * g
            A(f"v_permlane32_swap_b32 v{b}, v{b+2}")
            A(f"v_permlane32_swap_b32 v{b+1}, v{b+3}")
        for gi, g in enumerate((0, 2)):
            b = o + 2 * g
            T = o + 8 + 4 * gi
            lab = f"L_NOMIX_{rt}_{gi}"
            A(f"s_mov_b64 exec, s[{48+2*gi}:{49+2*gi}]")
            A(f"s_cbranch_execz {lab}")
            A(f"v_mov_b32 v{T}, v{b+2}")
            A(f"v_mov_b32 v{T+1}, v{b+3}")
            A(f"v_mov_b32 v{T+2}, s42")
            A(f"v_mov_b32 v{T+3}, s43")
            A(f"v_mov_b32 v{b+2}, s42")
            A(f"v_mov_b32 v{b+3}, s43")
            A(f"buffer_store_dwordx4 {vr(T,4)}, v{EA+2+gi}, s[8:11], s41 offen sc1")
            A.label(lab)
            A("s_mov_b64 exec, -1")
            A(f"buffer_store_dwordx4 {vr(b,4)}, v{EA+gi}, s[8:11], s41 offen sc1")
        if rt >= 1:
            A.label(f"L_SKIPQK_{rt}")
    mainloop(True, epi_qk)
    A("s_branch L_SIGNAL")

    A.label("L_VPART")
    A("s_sub_u32 s27, s26, 28")
    A("s_lshl_b32 s27, s27, 5")
    A("v_add_u32 v5, s27, v3")
    A("v_mul_u32_u24 v6, 2341, v5")
    A("v_lshrrev_b32 v6, 16, v6")
    A("v_mul_u32_u24 v7, 28, v6")
    A("v_sub_u32 v5, v5, v7")
    A("v_cmp_le_u32 s[48:49], 24, v5")
    A("v_cmp_eq_u32 vcc, 24, v5")
    A(f"v_lshlrev_b32 v{EA}, 18, v6")
    A("v_lshl_add_u32 v5, v4, 5, v5")
    A(f"v_lshl_add_u32 v{EA}, v5, 4, v{EA}")
    A("v_mov_b32 v5, 0x3f803f80")
    A(f"v_cndmask_b32 v{EA+4}, 0, v5, vcc")
    for r in range(1, 4):
        A(f"v_mov_b32 v{EA+4+r}, v{EA+4}")

    def epi_v(rt):
        if rt >= 1:
            A("s_cmp_eq_u32 s21, 21")
            A(f"s_cbranch_scc1 L_SKIPV_{rt}")
        A(f"s_add_u32 s41, s40, {rt}")
        A("s_lshl_b32 s41, s41, 12")
        A(f"s_add_u32 s41, s41, {KV_OFF}")
        a = ACC + 16 * rt
        o = EO + 16 * (rt % 2)
        for p in range(8):
            A(f"v_cvt_pk_bf16_f32 v{o+p}, v{a+2*p}, v{a+2*p+1}")
        for tt in range(2):
            A(f"buffer_store_dwordx4 {vr(o+4*tt,4)}, v{EA}, s[8:11], s41 offen offset:{2048+1024*tt} sc1")
        A("s_mov_b64 exec, s[48:49]")
        for tt in range(2):
            A(f"buffer_store_dwordx4 {vr(EA+4,4)}, v{EA}, s[8:11], s41 offen offset:{2048+1024*tt+64} sc1")
        A("s_mov_b64 exec, -1")
        if rt >= 1:
            A.label(f"L_SKIPV_{rt}")
    mainloop(False, epi_v)
    A.label("L_SIGNAL")
    stamp(A, 2)
    A("s_waitcnt vmcnt(0)")
    stamp(A, 3)
    A(f"s_mov_b32 s41, {C1_OFF}")
    A("s_mov_b64 exec, s[46:47]")
    A(f"buffer_atomic_add v{EA+11}, v{EA+10}, s[8:11], s41 offen sc1")
    A("s_mov_b64 exec, -1")
    A("s_branch L_P2")
    A.label("L_IDLE")
    for tau in range(10):
        A("s_barrier")
    A("s_branch L_B10")
    A.label("L_NOTILE")
    flag_init()
    A.label("L_B10")
    A("s_barrier")

    A.label("L_P2")
    Q = 8
    O = 40
    SB = [104, 120]
    P = 136
    KVB = 144
    K0T = 208
    T2, T3 = 216, 232
    VOFF = 248

    def Kreg(b, s): return KVB + 16 * b + 4 * s
    def Vreg(b, t): return KVB + 16 * b + 8 + 4 * t
    def Qreg(i, s): return Q + 8 * i + 4 * s

    A("v_lshlrev_b32 v3, 4, v2")
    for j in range(4):
        A(f"v_add_u32 v{VOFF+j}, {j*4096}, v3")
    A("s_mov_b32 s34, 0")
    A("s_lshl_b32 s23, s24, 18")
    A(f"s_add_u32 s23, s23, {KV_OFF}")
    A("s_lshl_b32 s26, s3, 16")
    A("s_add_u32 s26, s26, s23")
    A("s_add_u32 s12, s6, s26"); A("s_addc_u32 s13, s7, 0"); A("s_mov_b32 s14, 65536"); A("s_mov_b32 s15, 0x00020000")
    A("s_lshl_b32 s27, s24, 17")
    A("s_lshl_b32 s26, s25, 13")
    A("s_add_u32 s27, s27, s26")
    for i in range(4):
        A(f"s_add_u32 s26, s3, {i+1}")
        A("s_and_b32 s26, s26, 3")
        A("s_lshl_b32 s26, s26, 11")
        A(f"s_add_u32 s{36+i}, s26, s27")

    def kv_prologue_loads():
        for b in range(4):
            for s in range(2):
                A(f"buffer_load_dwordx4 {vr(Kreg(b,s),4)}, v{VOFF+b}, s[12:15], 0 offen offset:{1024*s} {LD}")
            if b < 3:
                for t in range(2):
                    A(f"buffer_load_dwordx4 {vr(Vreg(b,t),4)}, v{VOFF+b}, s[12:15], 0 offen offset:{2048+1024*t} {LD}")

    def zero_state():
        for r in range(64):
            A(f"v_mov_b32 v{O+r}, 0")
        for r in range(4):
            A(f"v_mov_b32 v{P+4+r}, 0")
            A(f"v_mov_b32 v{Vreg(3,1)+r}, 0")

    zero_state()
    for i in range(3):
        A(f"s_add_u32 s26, s3, {i+1}")
        A("s_and_b32 s26, s26, 3")
        A("s_mul_i32 s26, s26, 12288")
        A(f"s_add_u32 s26, s26, {L2_CMB + i*4096}")
        A(f"v_add_u32 v{4+i}, s26, v3")
    A("s_mul_i32 s26, s3, 12288")
    A(f"s_add_u32 s26, s26, {L2_CMB}")
    A("v_add_u32 v7, s26, v3")
    A("s_mov_b32 s28, 0")
    A("s_mov_b32 s29, -1")
    A("s_lshl_b32 s26, s25, 2")
    A("s_add_u32 s26, s26, s3")
    A("s_lshl_b32 s35, s26, 4")
    A("s_add_u32 s35, s35, s24")
    A("s_lshl_b32 s35, s35, 11")
    A(f"s_add_u32 s35, s35, {OF_OFF}")
    A("s_lshl_b32 s33, s26, 2")
    A("s_lshr_b32 s26, s24, 2")
    A("s_add_u32 s33, s33, s26")
    A("s_lshl_b32 s33, s33, 8")
    A(f"s_add_u32 s33, s33, {C2_OFF}")
    A(f"v_mov_b32 v{T2}, {L2_FLAG}")
    A(f"v_mov_b32 v{T2+1}, 0")
    stamp(A, 4)
    A("s_cmp_lg_u32 s3, 0")
    A("s_cbranch_scc1 L_LDSWAIT")
    A("s_cmp_lt_u32 s20, 242")
    A("s_cbranch_scc1 L_INITSEEN2")
    A("s_mov_b32 s56, s4"); A("s_mov_b32 s57, s5"); A("s_mov_b32 s58, 256"); A("s_mov_b32 s59, 0x00020000")
    A("s_mov_b32 s27, 0")
    A.label("L_INITPOLL2")
    A(f"buffer_load_dword v{T2+2}, v{T2+1}, s[56:59], 0 offen sc1")
    A("s_waitcnt vmcnt(0)")
    A(f"v_readfirstlane_b32 s40, v{T2+2}")
    A("s_add_u32 s27, s27, 1")
    A(f"s_cmp_gt_u32 s27, {SPIN_MAX}")
    A("s_cbranch_scc1 L_INITSEEN2")
    A("s_cmp_eq_u32 s40, 0")
    A("s_cbranch_scc1 L_INITPOLL2")
    A.label("L_INITSEEN2")
    a, b, c, d, e = T2 + 2, T2 + 3, T2 + 4, T2 + 5, T2 + 6
    A(f"v_lshrrev_b32 v{a}, 3, v2")
    A(f"v_add_u32 v{a}, 1, v{a}")
    A(f"v_bfe_u32 v{b}, v2, 2, 1")
    A(f"v_and_b32 v{c}, 3, v2")
    A("v_cmp_le_u32 vcc, 16, v2")
    A(f"v_and_b32 v{d}, 1, v2")
    A("s_lshr_b32 s27, s25, 2")
    A(f"v_mov_b32 v{e}, s27")
    A(f"v_cndmask_b32 v{a}, v{a}, 0, vcc")
    A(f"v_cndmask_b32 v{b}, v{b}, v{d}, vcc")
    A(f"v_cndmask_b32 v{c}, v{c}, v{e}, vcc")
    A("s_mul_i32 s27, s24, 28")
    A(f"v_mul_u32_u24 v{b}, 27, v{b}")
    A(f"v_add_u32 v{b}, s27, v{b}")
    A(f"v_lshrrev_b32 v{b}, 5, v{b}")
    A(f"v_mul_u32_u24 v{a}, 14, v{a}")
    A(f"v_add_u32 v{a}, v{a}, v{b}")
    A(f"v_lshl_add_u32 v{a}, v{a}, 2, v{c}")
    A(f"v_lshlrev_b32 v{a}, 8, v{a}")
    A("s_mov_b64 exec, 0x3ffff")
    A("s_mov_b32 s27, 0")
    A(f"s_mov_b32 s41, {C1_OFF}")
    A.label("L_C1POLL")
    A(f"buffer_load_dword v{b}, v{a}, s[8:11], s41 offen sc1")
    A("s_waitcnt vmcnt(0)")
    A(f"v_cmp_ne_u32 vcc, 6, v{b}")
    A("s_add_u32 s27, s27, 1")
    A(f"s_cmp_gt_u32 s27, {SPIN_MAX}")
    A("s_cbranch_scc1 L_C1OUT")
    A("s_cmp_lg_u64 vcc, 0")
    if OPT["pollsleep"]:
        A("s_cbranch_scc0 L_C1OUT")
        A(f"s_sleep {OPT['pollsleep']}")
        A("s_branch L_C1POLL")
    else:
        A("s_cbranch_scc1 L_C1POLL")
    A.label("L_C1OUT")
    A("s_mov_b64 exec, -1")
    A(f"v_mov_b32 v{T2+1}, 1")
    A(f"ds_write_b32 v{T2}, v{T2+1} offset:4")
    A("s_branch L_C1DONE")
    A.label("L_LDSWAIT")
    A("s_waitcnt vmcnt(0)")
    A("s_mov_b32 s27, 0")
    A.label("L_LDSPOLL")
    A(f"ds_read_b32 v{T2+1}, v{T2} offset:4")
    A("s_waitcnt lgkmcnt(0)")
    A(f"v_readfirstlane_b32 s40, v{T2+1}")
    A("s_add_u32 s27, s27, 1")
    A(f"s_cmp_gt_u32 s27, {SPIN_MAX*64}")
    A("s_cbranch_scc1 L_C1DONE")
    A("s_cmp_eq_u32 s40, 0")
    A("s_cbranch_scc1 L_LDSPOLL")
    A.label("L_C1DONE")
    stamp(A, 5)
    for i in range(4):
        for s in range(2):
            A(f"buffer_load_dwordx4 {vr(Qreg(i,s),4)}, v3, s[8:11], s{36+i} offen offset:{1024*s} {LD}")
    for s in range(2):
        A(f"buffer_load_dwordx4 {vr(K0T+4*s,4)}, v3, s[8:11], s23 offen offset:{1024*s} {LD}")
    kv_prologue_loads()
    A("s_waitcnt vmcnt(14)")
    stamp(A, 6)
    A("s_mov_b64 exec, s[28:29]")
    for i in range(4):
        A(f"v_mov_b32 v{Qreg(i,1)+2}, 0")
        A(f"v_mov_b32 v{Qreg(i,1)+3}, 0")
    A("s_mov_b64 exec, -1")
    A("s_nop 1")
    TMP = [SB[0], SB[1], T2, T3]
    for i in range(4):
        mfma(A, TMP[i], K0T, Qreg(i, 0), None)
        mfma(A, TMP[i], K0T + 4, Qreg(i, 1), TMP[i])
    A("s_nop 7")
    for i in range(4):
        t = TMP[i]
        A(f"v_max3_f32 v{t}, v{t}, v{t+1}, v{t+2}")
        for k in range(3, 15, 2):
            A(f"v_max3_f32 v{t}, v{t}, v{t+k}, v{t+k+1}")
        A(f"v_max_f32 v{t}, v{t}, v{t+15}")
    A("s_mov_b64 exec, s[28:29]")
    for i in range(4):
        A(f"v_cvt_pk_bf16_f32 v{Qreg(i,1)+2}, -v{TMP[i]}, 0")
    A("s_mov_b64 exec, -1")

    A.label("L_MAIN")
    A("s_mov_b32 s30, 16384")
    A("s_mov_b32 s31, 0")
    A("s_waitcnt vmcnt(10)")
    mfma(A, SB[0], Kreg(0, 0), Qreg(0, 0), None)
    mfma(A, SB[0], Kreg(0, 1), Qreg(0, 1), SB[0])
    A("s_nop 7")
    A("s_nop 3")
    stamp(A, 7)
    cstamp(A, 12)
    L = SB[0]

    def body(last):
        for tb in range(4):
            for qt in range(4):
                u = tb * 4 + qt
                sc = SB[u % 2]
                sn = SB[(u + 1) % 2]
                ntb, nqt = (tb, qt + 1) if qt < 3 else ((tb + 1) % 4, 0)
                ptb, pqt = (tb, qt - 1) if qt > 0 else ((tb + 3) % 4, 3)
                fin = last and tb == 3 and qt == 3

                def ex(k, extra=()):
                    extra = list(extra)
                    for j in range(4):
                        A(f"v_exp_f32 v{sc+4*k+j}, v{sc+4*k+j}")
                        if extra:
                            A(extra.pop(0))
                    assert not extra
                    A(f"v_cvt_pk_bf16_f32 v{P+2*k}, v{sc+4*k}, v{sc+4*k+1}")
                    A(f"v_cvt_pk_bf16_f32 v{P+2*k+1}, v{sc+4*k+2}, v{sc+4*k+3}")
                aft = [None, None, None, None]
                if qt == 3 and not last:
                    for s in range(2):
                        aft[s] = f"buffer_load_dwordx4 {vr(Kreg(tb,s),4)}, v{VOFF+tb}, s[12:15], s30 offen offset:{1024*s} {LD}"
                if qt == 1 and (not last or tb == 0):
                    b = (tb + 3) % 4
                    so = "s30" if tb >= 1 else "s31"
                    for t in range(2):
                        aft[t] = f"buffer_load_dwordx4 {vr(Vreg(b,t),4)}, v{VOFF+b}, s[12:15], {so} offen offset:{2048+1024*t} {LD}"
                if qt == 2:
                    if not last:
                        aft[3] = "s_waitcnt vmcnt(8)"
                    elif tb < 3:
                        aft[3] = f"s_waitcnt vmcnt({[8, 4, 0][tb]})"
                if last and tb == 3 and qt >= 2:
                    i = qt - 2
                    for g in range(4):
                        aft[g] = f"ds_write_b128 v{4+i}, {vr(O+16*i+4*g,4)} offset:{1024*g}"
                if not fin:
                    mfma(A, sn, Kreg(ntb, 0), Qreg(nqt, 0), None)
                if aft[0]:
                    A(aft[0])
                ex(0)
                mfma(A, O + 16 * pqt, Vreg(ptb, 1), P + 4, O + 16 * pqt)
                if aft[1]:
                    A(aft[1])
                ex(1)
                if not fin:
                    mfma(A, sn, Kreg(ntb, 1), Qreg(nqt, 1), sn)
                if aft[2]:
                    A(aft[2])
                ex(2)
                mfma(A, O + 16 * qt, Vreg(tb, 0), P, O + 16 * qt)
                if aft[3]:
                    A(aft[3])
                e = []
                if tb == 3 and qt == 3 and not last:
                    e = ["s_add_u32 s31, s31, 16384", "s_add_u32 s30, s30, 16384", "s_cmp_lt_u32 s31, 49152"]
                ex(3, e)

    A.raw(".p2align 6")
    A.label("L_LOOP")
    body(False)
    A("s_cbranch_scc1 L_LOOP")
    body(True)
    A("s_nop 1")
    mfma(A, O + 48, Vreg(3, 1), P + 4, O + 48)
    stamp(A, 8)
    cstamp(A, 13)
    for g in range(4):
        A(f"ds_write_b128 v6, {vr(O+32+4*g,4)} offset:{1024*g}")
    A(f"v_mov_b32 v{L}, {f32bits(2.0**40):#x}")
    A(f"v_mov_b32 v{L+1}, {f32bits(2.0**-40):#x}")
    A("s_nop 3")
    A("s_cmp_lg_u32 s34, 0")
    A("s_cbranch_scc1 L_NOFLAG")
    A(f"v_min3_f32 v{L+3}, v{O+12}, v{O+28}, v{O+44}")
    A(f"v_add_f32 v{L+4}, v{O+12}, v{O+28}")
    A(f"v_add_f32 v{L+5}, v{O+44}, v{O+60}")
    A(f"v_min_f32 v{L+3}, v{L+3}, v{O+60}")
    A(f"v_add_f32 v{L+4}, v{L+4}, v{L+5}")
    A(f"v_cmp_nlt_f32 vcc, v{L+4}, v{L}")
    A(f"v_cmp_nge_f32 s[40:41], v{L+3}, v{L+1}")
    A("s_cmp_eq_u32 s3, 0")
    A("s_cselect_b32 s41, s41, 0")
    A("s_or_b32 s41, s41, vcc_hi")
    A("s_cbranch_scc0 L_NOFLAG")
    A(f"v_mov_b32 v{L+5}, {L2_FLAG}")
    A(f"v_mov_b32 v{L+6}, 1")
    A(f"ds_write_b32 v{L+5}, v{L+6}")
    A.label("L_NOFLAG")
    A(f"v_mov_b32 v{L+5}, {L2_FLAG}")
    A("s_waitcnt lgkmcnt(0)")
    A("s_barrier")
    stamp(A, 9)
    R = KVB
    A(f"ds_read_b32 v{L+6}, v{L+5}")
    for sl in range(3):
        for g in range(4):
            A(f"ds_read_b128 {vr(R+16*sl+4*g,4)}, v7 offset:{4096*sl+1024*g}")
    A("s_waitcnt lgkmcnt(12)")
    A(f"v_readfirstlane_b32 s26, v{L+6}")
    OO = O + 48
    for sl in range(3):
        for g in range(4):
            A(f"s_waitcnt lgkmcnt({11-4*sl-g})")
            for p in range(2):
                A(f"v_pk_add_f32 {vr(OO+4*g+2*p,2)}, {vr(OO+4*g+2*p,2)}, {vr(R+16*sl+4*g+2*p,2)}")
    A("s_cmp_gt_u32 s26, s34")
    A("s_cbranch_scc1 L_FALLBACK")
    A(f"v_mov_b32 v{L}, v{OO+12}")
    A(f"v_mov_b32 v{L+1}, v{OO+12}")
    A("s_nop 1")
    A(f"v_permlane32_swap_b32 v{L}, v{L+1}")
    A("s_nop 0")
    A(f"v_rcp_f32 v{L+2}, v{L+1}")
    A("s_nop 0")
    A(f"v_mov_b32 v{L+3}, v{L+2}")
    for p in range(8):
        A(f"v_pk_mul_f32 {vr(OO+2*p,2)}, {vr(OO+2*p,2)}, {vr(L+2,2)}")
    for p in range(8):
        A(f"v_cvt_pk_bf16_f32 v{R+p}, v{OO+2*p}, v{OO+2*p+1}")
    A("s_mov_b64 exec, s[28:29]")
    A(f"v_mov_b32 v{R+6}, 0")
    A(f"v_mov_b32 v{R+7}, 0")
    A("s_mov_b64 exec, -1")
    for s in range(2):
        A(f"buffer_store_dwordx4 {vr(R+4*s,4)}, v3, s[8:11], s35 offen offset:{1024*s} sc1")
    A(f"v_mov_b32 v{L}, 0")
    A(f"v_mov_b32 v{L+1}, 1")
    stamp(A, 10)
    A("s_waitcnt vmcnt(0)")
    stamp(A, 11)
    A("s_mov_b64 exec, 1")
    A(f"buffer_atomic_add v{L+1}, v{L}, s[8:11], s33 offen sc1")
    A("s_branch L_END")

    A.label("L_FALLBACK")
    A("s_mov_b32 s34, 1")
    A("s_waitcnt vmcnt(0)")
    A("s_mov_b64 exec, s[28:29]")
    for i in range(4):
        A(f"v_mov_b32 v{Qreg(i,1)+2}, 0")
        A(f"v_mov_b32 v{Qreg(i,1)+3}, 0")
    A("s_mov_b64 exec, -1")
    M = T2
    for i in range(4):
        A(f"v_mov_b32 v{M+i}, 0xff800000")
    A("s_mov_b32 s31, 0")
    A.label("L_MAXLOOP")
    for s in range(2):
        A(f"buffer_load_dwordx4 {vr(K0T+4*s,4)}, v3, s[12:15], s31 offen offset:{1024*s} {LD}")
    A("s_waitcnt vmcnt(0)")
    for i in range(4):
        t = O + 16 * i
        mfma(A, t, K0T, Qreg(i, 0), None)
        mfma(A, t, K0T + 4, Qreg(i, 1), t)
    A("s_nop 7")
    A("s_nop 7")
    for i in range(4):
        t = O + 16 * i
        for k in range(0, 16, 2):
            A(f"v_max3_f32 v{M+i}, v{M+i}, v{t+k}, v{t+k+1}")
    A("s_add_u32 s31, s31, 4096")
    A("s_cmp_lt_u32 s31, 65536")
    A("s_cbranch_scc1 L_MAXLOOP")
    for i in range(4):
        A(f"v_mov_b32 v{M+4+i}, v{M+i}")
    A("s_nop 1")
    for i in range(4):
        A(f"v_permlane32_swap_b32 v{M+i}, v{M+4+i}")
    A("s_nop 1")
    for i in range(4):
        A(f"v_max_f32 v{M+i}, v{M+i}, v{M+4+i}")
    A(f"v_and_b32 v{M+8}, 31, v2")
    A(f"v_lshlrev_b32 v{M+8}, 2, v{M+8}")
    for i in range(4):
        A(f"s_add_u32 s26, s3, {i+1}")
        A("s_and_b32 s26, s26, 3")
        A("s_lshl_b32 s26, s26, 9")
        A(f"s_add_u32 s26, s26, {L2_MX}")
        A(f"v_add_u32 v{M+9+i}, s26, v{M+8}")
        A("s_lshl_b32 s27, s3, 7")
        A(f"v_add_u32 v{M+13}, s27, v{M+9+i}")
        A(f"ds_write_b32 v{M+13}, v{M+i}")
    A("s_waitcnt lgkmcnt(0)")
    A("s_barrier")
    for i in range(4):
        for w in range(4):
            A(f"ds_read_b32 v{O+4*i+w}, v{M+9+i} offset:{128*w}")
            if (4 * i + w) % 8 == 7:
                A("s_waitcnt lgkmcnt(0)")
    for i in range(4):
        t = O + 4 * i
        A(f"v_max3_f32 v{t}, v{t}, v{t+1}, v{t+2}")
        A(f"v_max_f32 v{t}, v{t}, v{t+3}")
        A(f"v_sub_f32 v{t}, 0, v{t}")
        A(f"v_cvt_pk_bf16_f32 v{t+1}, v{t}, 0")
        A(f"v_lshlrev_b32 v{t+2}, 16, v{t+1}")
        A(f"v_sub_f32 v{t}, v{t}, v{t+2}")
        A(f"v_cvt_pk_bf16_f32 v{t+2}, v{t}, 0")
        A(f"v_lshlrev_b32 v{t+3}, 16, v{t+2}")
        A(f"v_sub_f32 v{t}, v{t}, v{t+3}")
        A(f"v_or_b32 v{t+1}, v{t+1}, v{t+3}")
        A(f"v_cvt_pk_bf16_f32 v{t+2}, v{t}, 0")
    A("s_mov_b64 exec, s[28:29]")
    for i in range(4):
        t = O + 4 * i
        A(f"v_mov_b32 v{Qreg(i,1)+2}, v{t+1}")
        A(f"v_mov_b32 v{Qreg(i,1)+3}, v{t+2}")
    A("s_mov_b64 exec, -1")
    kv_prologue_loads()
    zero_state()
    A("s_branch L_MAIN")

    A.label("L_END")
    stamp_flush(A)
    A.label("L_EXIT")
    A("s_endpgm")


HEADER = """; MHA block (B=1, S=2048, D=448, H=16) for gfx950, one persistent launch:
"""


def main(out):
    A = Asm()
    A.raw(HEADER.rstrip())
    A.raw(f"; @launch grid=(256,1,1) block=(512,1,1) lds={LDS_TOTAL}")
    A.raw('.amdgcn_target "amdgcn-amd-amdhsa--gfx950"')
    A.raw(".text")
    gen(A)
    A.raw('.section .rodata,"a"')
    A.raw(f""".p2align 6
.amdhsa_kernel {NAME}
  .amdhsa_next_free_vgpr 256
  .amdhsa_next_free_sgpr {102 if STAMP else 64}
  .amdhsa_accum_offset 256
  .amdhsa_group_segment_fixed_size 0
  .amdhsa_kernarg_size 48
  .amdhsa_user_sgpr_count 2
  .amdhsa_user_sgpr_kernarg_segment_ptr 1
  .amdhsa_system_sgpr_workgroup_id_x 1
.end_amdhsa_kernel""")
    open(out, "w").write(A.text())


if __name__ == "__main__":
    out = sys.argv[1] if len(sys.argv) > 1 else "standalone__mha_block__prompt.s"
    for a in sys.argv[2:]:
        if a == "stamp":
            STAMP = True
        elif "=" in a:
            k, v = a.split("=", 1)
            OPT[k] = v
    main(out)
```

```python
import sys, math, struct

S_TOK, D, H, DH = 2048, 448, 16, 28
QF_OFF = 0
KV_OFF = 2 << 20
OF_OFF = 6 << 20
C1_OFF = 8 << 20
C2_OFF = (8 << 20) + 65536
WS_USED = (8 << 20) + 131072
QSCALE = math.log2(math.e) / math.sqrt(DH)
SPIN_MAX = 40000
INIT_WG = 231

OPT = dict(ldsc="sc1", ldq="", outsc="", stgprio="3", stgsleep="3", stgdelay="32", pollsleep="4", hint="b8")


def f32bits(x):
    return struct.unpack("<I", struct.pack("<f", x))[0]


class Asm:
    def __init__(self):
        self.l = []

    def __call__(self, s):
        self.l.append("  " + s)

    def label(self, s):
        self.l.append(s + ":")

    def raw(self, s):
        self.l.append(s)

    def text(self):
        return "\n".join(self.l) + "\n"


def vr(a, n):
    return f"v[{a}:{a+n-1}]"


STAMP = False
STAMP_OFF = 16 << 20
NSTAMP = 16


def stamp_init(A):
    if not STAMP:
        return
    for k in range(NSTAMP):
        A(f"s_mov_b32 s{64+2*k}, 0")
    A("s_memrealtime s[64:65]")


def stamp(A, slot):
    if STAMP:
        A(f"s_memrealtime s[{64+2*slot}:{65+2*slot}]")


def cstamp(A, slot):
    if STAMP:
        A(f"s_memtime s[{64+2*slot}:{65+2*slot}]")


DBGSTAMP = False


def stamp_flush(A):
    if not STAMP:
        return
    A("s_waitcnt vmcnt(0)")
    A(f"s_memrealtime s[{64+2*(NSTAMP-1)}:{65+2*(NSTAMP-1)}]")
    A("s_waitcnt lgkmcnt(0)")
    if DBGSTAMP:
        A("s_and_b32 s100, s3, 3")
        A("s_cmp_lg_u32 s100, 0")
        A("s_cbranch_scc1 L_EXIT")
        A("s_mov_b32 s96, s4"); A("s_mov_b32 s97, s5"); A("s_mov_b32 s98, 256"); A("s_mov_b32 s99, 0x00020000")
        A("s_mov_b64 exec, 1")
        A("v_mov_b32 v0, 0")
        A("s_not_b32 s100, s64")
        A("v_mov_b32 v1, s100")
        A("buffer_atomic_umax v1, v0, s[96:99], 0 offen offset:4 sc1")
        A("s_cmp_lt_u32 s3, 4")
        A("s_cbranch_scc0 L_DBGL")
        for w, sl in ((2, 0), (3, 1), (4, 3), (5, 5), (6, 7), (7, 8), (8, 10)):
            A(f"v_mov_b32 v1, s{64+2*sl}")
            A(f"buffer_atomic_umax v1, v0, s[96:99], 0 offen offset:{4*w} sc1")
            A("s_nop 1")
        A("s_branch L_EXIT")
        A.label("L_DBGL")
        for w, sl in ((9, 4), (10, 1), (11, 2), (12, 5), (13, 8), (14, 15)):
            A(f"v_mov_b32 v1, s{64+2*sl}")
            A(f"buffer_atomic_umax v1, v0, s[96:99], 0 offen offset:{4*w} sc1")
            A("s_nop 1")
        return
    A(f"s_add_u32 s96, s6, {STAMP_OFF}")
    A("s_addc_u32 s97, s7, 0")
    A("s_mov_b32 s98, 0x100000")
    A("s_mov_b32 s99, 0x00020000")
    A("s_lshl_b32 s100, s2, 10")
    A("s_lshl_b32 s101, s3, 6")
    A("s_add_u32 s100, s100, s101")
    A("s_mov_b64 exec, 1")
    A("v_mov_b32 v0, 0")
    for k in range(NSTAMP):
        A(f"v_mov_b32 v1, s{64+2*k}")
        A(f"buffer_store_dword v1, v0, s[96:99], s100 offen offset:{4*k}")
        A("s_nop 1")


def mfma(A, d, a, b, c):
    cs = "0" if c is None else vr(c, 16)
    A(f"v_mfma_f32_32x32x16_bf16 {vr(d,16)}, {vr(a,4)}, {vr(b,4)}, {cs}")


def srd(A, d, lo, hi, size):
    A(f"s_mov_b32 s{d}, {lo}")
    A(f"s_mov_b32 s{d+1}, {hi}")
    A(f"s_mov_b32 s{d+2}, {size}")
    A(f"s_mov_b32 s{d+3}, 0x00020000")


L1_A, L1_B, L1_C = 0, 57344, 114688
L3_STG = 0
L2_FLAG = 61440
L2_MX = 61440 + 256
L2_CMB = 65536
L3_RED = 114688
LDS_TOTAL = 163840


def x_item_base(phase, tau):
    if phase == 0:
        return L1_B + tau * 8192
    if phase == 1:
        return L1_C + tau * 8192 if tau < 6 else L1_B
    return L1_A + tau * 8192


STEPS = [(0, [t], True) for t in range(7)] + [(1, [0, 1, 2, 3], False), (1, [4, 5, 6], False),
                                              (2, [0, 1, 2, 3], False), (2, [4, 5], False), (2, [6], False)]
NSTEP = len(STEPS)
PLAN = [[0, 1, 2, 3], [4], [5], [6], [7], [8], [], [9], [10, 11], [], [], []]

NAME = "standalone__mha_block__prompt_kernel"


def gen(A):
    LD = OPT["ldsc"]
    A.raw(f".globl {NAME}")
    A.raw(".p2align 8")
    A.raw(f".type {NAME},@function")
    A.label(NAME)
    A("s_cmp_ge_u32 s2, 256")
    A("s_cbranch_scc1 L_EXIT")
    stamp_init(A)
    A("s_load_dwordx4 s[16:19], s[0:1], 0")
    A("s_load_dwordx4 s[4:7], s[0:1], 32")
    A("s_load_dwordx4 s[52:55], s[0:1], 16")
    A("v_lshrrev_b32 v1, 6, v0")
    A("v_and_b32 v2, 63, v0")
    A("v_readfirstlane_b32 s3, v1")
    A("s_and_b32 s20, s2, 7")
    A("s_mul_i32 s20, s20, 29")
    A("s_lshr_b32 s21, s2, 3")
    A("s_add_u32 s20, s20, s21")
    A("s_cmp_lt_u32 s21, 29")
    A("s_cselect_b32 s20, s20, 255")
    A("s_mul_i32 s22, s20, 852")
    A("s_lshr_b32 s22, s22, 16")
    A("s_mul_i32 s23, s22, 77")
    A("s_sub_u32 s23, s20, s23")
    A("s_mul_i32 s21, s23, 147")
    A("s_lshr_b32 s21, s21, 10")
    A("s_mul_i32 s24, s21, 7")
    A("s_sub_u32 s23, s23, s24")
    A("s_mul_i32 s22, s22, 7")
    A("s_add_u32 s22, s22, s23")
    A("s_lshl_b32 s39, s21, 1")
    A("s_add_u32 s39, s39, s23")
    A("s_mul_i32 s24, s39, 37")
    A("s_lshr_b32 s24, s24, 8")
    A("s_mul_i32 s24, s24, 7")
    A("s_sub_u32 s39, s39, s24")
    A("s_mul_i32 s24, s23, 11")
    A("s_lshr_b32 s24, s24, 5")
    A("s_mul_i32 s24, s24, 3")
    A("s_sub_u32 s23, s23, s24")
    for ph in range(3):
        A(f"s_add_u32 s24, s23, {ph}")
        A("s_cmp_ge_u32 s24, 3")
        A("s_cselect_b32 s25, 3, 0")
        A("s_sub_u32 s24, s24, s25")
        A("s_lshl_b32 s24, s24, 1")
        A("s_mul_i32 s25, s21, 6")
        A(f"s_add_u32 s{60+ph}, s24, s25")
    A("s_and_b32 s24, s2, 7")
    A("s_lshl_b32 s24, s24, 1")
    A("s_bfe_u32 s25, s2, 0x10003")
    A("s_add_u32 s24, s24, s25")
    A("s_lshr_b32 s25, s2, 4")
    A("s_cmp_lt_u32 s3, 4")
    A("s_cbranch_scc1 L_CWAVE")

    A("s_setprio 3")
    A("s_sub_u32 s26, s3, 4")
    A("v_lshrrev_b32 v3, 3, v2")
    A("v_and_b32 v4, 7, v2")
    A("v_lshrrev_b32 v5, 1, v3")
    A("s_and_b32 s27, s26, 1")
    A("s_lshl_b32 s27, s27, 2")
    A("v_add_u32 v7, s27, v5")
    A("v_and_b32 v7, 7, v7")
    A("v_xor_b32 v7, v4, v7")
    A("v_and_b32 v5, 1, v5")
    A("v_lshlrev_b32 v5, 2, v5")
    A("v_xor_b32 v5, v4, v5")
    A("v_mul_u32_u24 v6, 2688, v3")
    A("v_lshl_add_u32 v6, v5, 4, v6")
    A("v_mul_u32_u24 v3, 896, v3")
    A("v_lshl_add_u32 v3, v7, 4, v3")
    for ph, sr in enumerate((36, 37, 45)):
        A(f"s_lshl_b32 s{sr}, s{60+ph}, 5")
        A("s_lshl_b32 s27, s26, 3")
        A(f"s_add_u32 s{sr}, s{sr}, s27")
        A(f"s_mul_i32 s{sr}, s{sr}, 896")
    XB = {0: 36, 1: 37, 2: 45}
    A(f"s_mul_i32 s44, s26, {8*2688}")
    A("s_lshl_b32 s27, s22, 7")
    A("s_add_u32 s44, s44, s27")
    A("s_lshl_b32 s38, s26, 10")
    A("s_waitcnt lgkmcnt(0)")
    srd(A, 8, "s6", "s7", WS_USED)
    srd(A, 56, "s4", "s5", 256)
    A("s_cmp_ge_u32 s20, 231")
    A("s_cbranch_scc1 L_LNOTILE")
    srd(A, 28, "s16", "s17", S_TOK * D * 2)
    srd(A, 32, "s18", "s19", D * 3 * D * 2)

    def chunk_of(tau):
        A(f"s_add_u32 s40, s39, {tau}")
        A("s_cmp_ge_u32 s40, 7")
        A("s_cselect_b32 s41, 7, 0")
        A("s_sub_u32 s40, s40, s41")

    def step_loads(k):
        ph, taus, withw = STEPS[k]
        n = 0
        for tau in taus:
            chunk_of(tau)
            if withw:
                A(f"s_mul_i32 s41, s40, {64*2688}")
                A("s_add_u32 s41, s41, s44")
                for i in range(2):
                    A(f"s_add_u32 s42, s38, {L1_A + tau * 8192 + i * 4096}")
                    A("s_mov_b32 m0, s42")
                    A(f"s_add_u32 s43, s41, {i * 32 * 2688}")
                    A("buffer_load_dwordx4 v6, s[32:35], s43 offen lds")
                    n += 1
            A("s_lshl_b32 s41, s40, 7")
            A(f"s_add_u32 s41, s41, s{XB[ph]}")
            for p in range(2):
                A(f"s_add_u32 s42, s38, {x_item_base(ph, tau) + p * 4096}")
                A("s_mov_b32 m0, s42")
                A(f"s_add_u32 s43, s41, {p * 32 * 896}")
                A("buffer_load_dwordx4 v3, s[28:31], s43 offen lds")
                n += 1
        return n

    stamp(A, 4)
    cnt = {}
    issued = []
    for k in range(NSTEP):
        for st in PLAN[k]:
            cnt[st] = step_loads(st)
            issued.append(st)
        if k == 8:
            A("v_mov_b32 v4, 0")
            A("buffer_load_dword v5, v4, s[56:59], 0 offen sc1")
            cnt[99] = 1
            issued.append(99)
        if k == NSTEP - 1:
            A("s_mov_b32 s27, 0")
            A("s_waitcnt vmcnt(0)")
            A.label("L_INITPOLL")
            A("v_readfirstlane_b32 s40, v5")
            A("s_add_u32 s27, s27, 1")
            A(f"s_cmp_gt_u32 s27, {SPIN_MAX}")
            A("s_cbranch_scc1 L_INITSEEN")
            A("s_cmp_lg_u32 s40, 0")
            A("s_cbranch_scc1 L_INITSEEN")
            A("buffer_load_dword v5, v4, s[56:59], 0 offen sc1")
            A("s_waitcnt vmcnt(0)")
            A("s_branch L_INITPOLL")
            A.label("L_INITSEEN")
        else:
            left = sum(cnt[st] for st in issued if st > k)
            A(f"s_waitcnt vmcnt({left})")
        A("s_barrier")
        if k == 0:
            stamp(A, 1)
        if k == 6:
            stamp(A, 2)
    A("s_branch L_LP1DONE")
    A.label("L_LNOTILE")
    A(f"s_cmp_lg_u32 s20, {INIT_WG}")
    A("s_cbranch_scc1 L_LP1DONE")
    A("s_cmp_lg_u32 s26, 3")
    A("s_cbranch_scc1 L_LP1DONE")
    A("v_lshlrev_b32 v3, 8, v2")
    A("v_mov_b32 v4, 0")
    for i in range(8):
        if i == 3:
            continue
        A(f"s_mov_b32 s27, {C1_OFF + i * 16384}")
        A("buffer_store_dword v4, v3, s[8:11], s27 offen sc1")
    A("s_waitcnt vmcnt(0)")
    A("v_mov_b32 v5, 1")
    A("s_mov_b64 exec, 1")
    A("buffer_store_dword v5, v4, s[56:59], 0 offen sc1")
    A("s_mov_b64 exec, -1")
    A("s_waitcnt vmcnt(0)")
    A.label("L_LP1DONE")
    stamp(A, 3)
    A("s_barrier")

    A("s_lshr_b32 s44, s2, 2")
    A("s_and_b32 s45, s2, 3")
    srd(A, 28, "s52", "s53", D * D * 2)
    srd(A, 32, "s54", "s55", S_TOK * D * 2)
    A("v_lshrrev_b32 v6, 4, v2")
    A("v_and_b32 v7, 15, v2")
    A("v_lshlrev_b32 v8, 2, v6")
    A("v_xor_b32 v7, v7, v8")
    A("v_mul_u32_u24 v6, 896, v6")
    A("v_lshl_add_u32 v6, v7, 4, v6")
    A("s_lshl_b32 s27, s45, 4")
    A("v_add_u32 v7, s27, v7")
    A("v_mov_b32 v8, 0x40000000")
    A("v_cmp_le_u32 vcc, 56, v7")
    A("s_nop 1")
    A("v_cndmask_b32 v6, v6, v8, vcc")
    A(f"s_mul_i32 s36, s26, {112*896}")
    A("s_lshl_b32 s27, s45, 8")
    A("s_add_u32 s36, s36, s27")
    A("s_mul_i32 s38, s26, 15360")
    A(f"s_add_u32 s38, s38, {L3_STG}")
    A("v_and_b32 v5, 15, v2")
    A("v_lshrrev_b32 v3, 2, v5")
    A("v_bfe_u32 v4, v2, 4, 1")
    A("v_lshlrev_b32 v4, 1, v4")
    A("v_bfe_u32 v7, v5, 1, 1")
    A("v_add_u32 v4, v4, v7")
    A("v_lshrrev_b32 v12, 5, v2")
    A("v_lshl_add_u32 v7, v12, 2, v3")
    A("v_lshlrev_b32 v13, 8, v7")
    A("v_lshl_add_u32 v13, v4, 4, v13")
    A("v_and_b32 v7, 1, v5")
    A("v_lshl_add_u32 v13, v7, 3, v13")
    A("v_add_u32 v13, s38, v13")
    for i in range(4):
        A(f"s_add_u32 s27, s26, {i}")
        A("s_and_b32 s27, s27, 3")
        A("v_xor_b32 v7, s27, v3")
        A(f"v_lshl_add_u32 v{8+i}, v7, 6, v13")
    WF = 16
    OFR = 144
    ACC3 = 176
    A("v_lshlrev_b32 v240, 4, v2")
    for i in range(1, 4):
        A(f"s_add_u32 s27, s26, {i}")
        A("s_and_b32 s27, s27, 3")
        A("s_mul_i32 s27, s27, 12288")
        A(f"s_add_u32 s27, s27, {L3_RED + (i-1)*4096}")
        A(f"v_add_u32 v{240+i}, s27, v240")
    A("s_mul_i32 s27, s26, 12288")
    A(f"s_add_u32 s27, s27, {L3_RED}")
    A("v_add_u32 v244, s27, v240")
    A("v_add_u32 v245, 4096, v240")
    A("s_lshl_b32 s46, s44, 15")
    A("s_lshl_b32 s27, s26, 13")
    A("s_add_u32 s46, s46, s27")
    A(f"s_add_u32 s46, s46, {OF_OFF}")
    A("s_lshl_b32 s47, s44, 2")
    A("s_add_u32 s47, s47, s26")
    A("s_lshl_b32 s47, s47, 8")
    A(f"s_add_u32 s47, s47, {C2_OFF}")
    A("v_and_b32 v246, 31, v2")
    A("v_mul_u32_u24 v246, 896, v246")
    A("v_lshl_add_u32 v246, v12, 4, v246")
    A(f"s_mul_i32 s48, s44, {32*896}")
    A("s_lshl_b32 s27, s45, 8")
    A("s_add_u32 s48, s48, s27")
    A("s_lshl_b32 s27, s26, 6")
    A("s_add_u32 s48, s48, s27")
    A(f"v_mov_b32 v247, {L2_FLAG}")
    A("v_mov_b32 v248, 0")
    for r in range(64):
        A(f"v_mov_b32 v{ACC3+r}, 0")
    A("s_mov_b32 s27, 0")
    A.label("L_STGWAIT")
    A("s_sleep 8")
    A("ds_read_b32 v250, v247 offset:4")
    A("s_waitcnt lgkmcnt(0)")
    A("v_readfirstlane_b32 s40, v250")
    A("s_add_u32 s27, s27, 1")
    A(f"s_cmp_gt_u32 s27, {SPIN_MAX*8}")
    A("s_cbranch_scc1 L_STGGO")
    A("s_cmp_eq_u32 s40, 0")
    A("s_cbranch_scc1 L_STGWAIT")
    A.label("L_STGGO")
    A(f"s_setprio {OPT['stgprio']}")
    A(f"s_sleep {OPT['stgdelay']}")
    for rho in range(2):
        for i in range(15):
            A(f"s_add_u32 s42, s38, {i*1024}")
            A("s_mov_b32 m0, s42")
            A(f"s_add_u32 s43, s36, {(56*rho + 4*i)*896}")
            A("buffer_load_dwordx4 v6, s[28:31], s43 offen lds")
            if OPT["stgsleep"]:
                A(f"s_sleep {OPT['stgsleep']}")
        A("s_waitcnt vmcnt(0)")
        n = 0
        for hh in range(2):
            for s in range(2):
                for i in range(4):
                    for rd in range(2):
                        j = (2 * rho + hh) * 2 + s
                        A(f"ds_read_b64_tr_b16 {vr(WF+16*j+4*i+2*rd,2)}, v{8+i} offset:{(28*hh+16*s+8*rd)*256}")
                        n += 1
                        if n % 8 == 0:
                            A("s_waitcnt lgkmcnt(4)")
        A("s_waitcnt lgkmcnt(0)")
    stamp(A, 5)
    A("s_setprio 3")
    A("s_mov_b32 s27, 0")
    A.label("L_C2POLL")
    A("buffer_load_dword v13, v248, s[8:11], s47 offen sc1")
    A("s_waitcnt vmcnt(0)")
    A("v_readfirstlane_b32 s40, v13")
    A("s_add_u32 s27, s27, 1")
    A(f"s_cmp_gt_u32 s27, {SPIN_MAX}")
    A("s_cbranch_scc1 L_C2OUT")
    A("s_and_b32 s40, s40, 0xff")
    A("s_cmp_lg_u32 s40, 4")
    A("s_cbranch_scc1 L_C2POLL")
    A.label("L_C2OUT")
    A("s_barrier")
    A("buffer_load_dword v15, v248, s[8:11], s47 offen sc1")
    A("ds_read_b32 v13, v247")
    A("s_waitcnt lgkmcnt(0)")
    A("v_readfirstlane_b32 s27, v13")
    A("s_nop 3")
    A("s_cmp_eq_u32 s27, 0")
    A("s_cbranch_scc1 L_NOFB")
    A("s_barrier")
    A("s_barrier")
    A.label("L_NOFB")
    stamp(A, 6)
    A("s_mov_b32 s27, 0")
    A("s_mov_b32 s41, 15")
    A("s_mov_b32 s43, 0")
    A.label("L_OPOLL")
    A("s_add_u32 s27, s27, 1")
    A(f"s_cmp_gt_u32 s27, {SPIN_MAX}")
    A("s_cselect_b32 s42, 0, -1")
    A("s_mov_b32 s49, 0")
    A("s_waitcnt vmcnt(0)")
    A("v_readfirstlane_b32 s50, v15")
    for hh in range(4):
        o = OFR + 8 * hh
        A(f"s_bitcmp0_b32 s43, {hh}")
        A(f"s_cbranch_scc1 L_OC{hh}")
        A(f"v_max3_u32 v13, v{o}, v{o+1}, v{o+2}")
        A(f"v_max3_u32 v14, v{o+3}, v{o+4}, v{o+5}")
        A(f"v_max3_u32 v13, v13, v{o+6}, v{o+7}")
        A("v_max_u32 v13, v13, v14")
        A("v_cmp_eq_u32 vcc, -1, v13")
        A("s_nop 1")
        A("s_or_b32 s40, vcc_lo, vcc_hi")
        A("s_and_b32 s40, s40, s42")
        A(f"s_cbranch_scc1 L_OC{hh}")
        A(f"s_bitset0_b32 s41, {hh}")
        A(f"s_bitset1_b32 s49, {hh}")
        A.label(f"L_OC{hh}")
    A("s_lshr_b32 s40, s50, 8")
    A("s_orn2_b32 s40, s40, s42")
    A("s_and_b32 s43, s40, s41")
    for hh in range(4):
        A(f"s_bitcmp0_b32 s43, {hh}")
        A(f"s_cbranch_scc1 L_OI{hh}")
        for sx in range(2):
            j = 2 * hh + sx
            A(f"buffer_load_dwordx4 {vr(OFR+4*j,4)}, v{240 if j < 4 else 245}, s[8:11], s46 offen offset:{(j%4)*1024} sc1")
        A.label(f"L_OI{hh}")
    A("s_cmp_eq_u32 s43, s41")
    A("s_cbranch_scc1 L_ONOPOLL")
    A("buffer_load_dword v15, v248, s[8:11], s47 offen sc1")
    A.label("L_ONOPOLL")
    for hh in range(4):
        A(f"s_bitcmp0_b32 s49, {hh}")
        A(f"s_cbranch_scc1 L_OM{hh}")
        for sx in range(2):
            j = 2 * hh + sx
            for i in range(4):
                mfma(A, ACC3 + 16 * i, WF + 16 * j + 4 * i, OFR + 4 * j, ACC3 + 16 * i)
        A.label(f"L_OM{hh}")
    A("s_cmp_lg_u32 s41, 0")
    A("s_cbranch_scc1 L_OPOLL")
    stamp(A, 8)
    A("s_nop 7")
    A("s_nop 3")
    for i in (1, 2, 3):
        for g in range(4):
            A(f"ds_write_b128 v{240+i}, {vr(ACC3+16*i+4*g,4)} offset:{1024*g}")
    A("s_waitcnt lgkmcnt(0)")
    A("s_barrier")
    R = WF
    for sl in range(3):
        for g in range(4):
            A(f"ds_read_b128 {vr(R+16*sl+4*g,4)}, v244 offset:{4096*sl+1024*g}")
    for sl in range(3):
        for g in range(4):
            A(f"s_waitcnt lgkmcnt({11-4*sl-g})")
            for p in range(2):
                A(f"v_pk_add_f32 {vr(ACC3+4*g+2*p,2)}, {vr(ACC3+4*g+2*p,2)}, {vr(R+16*sl+4*g+2*p,2)}")
    for p in range(8):
        A(f"v_cvt_pk_bf16_f32 v{OFR+p}, v{ACC3+2*p}, v{ACC3+2*p+1}")
    A("s_lshl_b32 s27, s45, 2")
    A("s_add_u32 s27, s27, s26")
    A("s_cmp_ge_u32 s27, 14")
    A("s_cbranch_scc1 L_END")
    for g in (0, 2):
        b = OFR + 2 * g
        A(f"v_permlane32_swap_b32 v{b}, v{b+2}")
        A(f"v_permlane32_swap_b32 v{b+1}, v{b+3}")
    for g in (0, 2):
        b = OFR + 2 * g
        A(f"buffer_store_dwordx4 {vr(b,4)}, v246, s[32:35], s48 offen offset:{16*g} {OPT['outsc']}")
    A("s_branch L_END")

    A.label("L_CWAVE")
    A("s_lshl_b32 s26, s25, 2")
    A("s_add_u32 s26, s26, s3")
    A("s_lshl_b32 s35, s26, 4")
    A("s_add_u32 s35, s35, s24")
    A("s_lshl_b32 s35, s35, 11")
    A(f"s_add_u32 s35, s35, {OF_OFF}")
    A("s_lshl_b32 s33, s26, 2")
    A("s_lshr_b32 s26, s24, 2")
    A("s_add_u32 s33, s33, s26")
    A("s_lshl_b32 s33, s33, 8")
    A(f"s_add_u32 s33, s33, {C2_OFF}")
    A("s_waitcnt lgkmcnt(0)")
    srd(A, 8, "s6", "s7", WS_USED)

    def marker_store():
        A("v_lshlrev_b32 v5, 4, v2")
        for r in range(4):
            A(f"v_mov_b32 v{96+r}, -1")
        for sx in range(2):
            A(f"buffer_store_dwordx4 v[96:99], v5, s[8:11], s35 offen offset:{1024*sx} sc1")

    def flag_init():
        A(f"v_mov_b32 v5, {L2_FLAG}")
        A("v_mov_b32 v6, 0")
        A("v_mov_b32 v7, 0")
        A("ds_write_b64 v5, v[6:7]")
        A("s_waitcnt lgkmcnt(0)")

    A("s_cmp_ge_u32 s20, 231")
    A("s_cbranch_scc1 L_NOTILE")
    A("s_and_b32 s27, s3, 1")
    A("s_lshr_b32 s28, s3, 1")
    A("s_lshl_b32 s26, s22, 1")
    A("s_add_u32 s26, s26, s27")
    for ph in range(3):
        A(f"s_add_u32 s{60+ph}, s{60+ph}, s28")
    A("v_and_b32 v3, 31, v2")
    A("v_lshrrev_b32 v4, 5, v2")
    A("v_bfe_u32 v5, v3, 1, 3")
    A("s_lshl_b32 s29, s28, 12")
    XA, XBv, XC = 8, 132, 136
    for ks in range(4):
        A(f"v_add_u32 v6, {2*ks}, v4")
        A("v_xor_b32 v6, v6, v5")
        A("v_lshlrev_b32 v6, 4, v6")
        A(f"v_lshl_add_u32 v6, v3, 7, v6")
        A(f"v_add_u32 v{XA+ks}, s29, v6")
        A(f"v_add_u32 v{XBv+ks}, {L1_B}, v{XA+ks}")
        A(f"v_add_u32 v{XC+ks}, {L1_C}, v{XA+ks}")
    A("v_and_b32 v5, 15, v2")
    A("v_lshrrev_b32 v6, 2, v5")
    A("v_bfe_u32 v7, v2, 4, 1")
    A("v_lshlrev_b32 v7, 1, v7")
    A("v_bfe_u32 v13, v5, 1, 1")
    A("v_add_u32 v7, v7, v13")
    A("s_lshl_b32 s29, s27, 2")
    A("v_add_u32 v7, s29, v7")
    A("v_bfe_u32 v13, v5, 3, 1")
    A("v_lshlrev_b32 v13, 2, v13")
    A("v_xor_b32 v7, v7, v13")
    A("v_lshl_add_u32 v6, v4, 3, v6")
    A("v_lshlrev_b32 v12, 7, v6")
    A("v_lshl_add_u32 v12, v7, 4, v12")
    A("v_and_b32 v13, 1, v5")
    A("v_lshl_add_u32 v12, v13, 3, v12")
    ACC = 16
    XF = 64
    EO = 96
    EA = 128
    WR = 144
    A("v_mov_b32 v5, s60")
    A("v_mov_b32 v6, s61")
    A("v_mov_b32 v7, s62")
    A("v_cmp_eq_u32 vcc, 1, v2")
    A("v_cmp_eq_u32 s[46:47], 2, v2")
    A("s_nop 1")
    A("v_cndmask_b32 v5, v5, v6, vcc")
    A("v_cndmask_b32 v5, v5, v7, s[46:47]")
    A("v_cmp_gt_u32 vcc, 64, v5")
    A("v_lshrrev_b32 v5, 4, v5")
    A("s_lshl_b32 s29, s26, 2")
    A("v_add_u32 v5, s29, v5")
    A("v_lshlrev_b32 v140, 8, v5")
    A("v_mov_b32 v141, 1")
    A("s_and_b32 s46, vcc_lo, 7")
    A("s_mov_b32 s47, 0")
    A("s_cmp_ge_u32 s26, 28")
    A("s_cbranch_scc1 L_VPART")

    def mainloop(transposed, epilogue):
        for k, (ph, taus, withw) in enumerate(STEPS):
            A("s_barrier")
            jobs = [(tau, ks) for tau in taus for ks in range(4)]
            pend = []
            nxt = 0
            acc = ACC + 16 * (ph % 2)

            def issue(ji):
                tau, ks = jobs[ji]
                if withw:
                    for rd in range(2):
                        A(f"ds_read_b64_tr_b16 {vr(WR+16*tau+4*ks+2*rd,2)}, v12 offset:{L1_A + tau*8192 + ks*2048 + rd*512}")
                        pend.append(ji)
                base = x_item_base(ph, tau)
                if base >= L1_C:
                    reg, off = XC + ks, base - L1_C
                elif base >= L1_B:
                    reg, off = XBv + ks, base - L1_B
                else:
                    reg, off = XA + ks, base
                A(f"ds_read_b128 {vr(XF+4*(ji%8),4)}, v{reg} offset:{off}")
                pend.append(ji)
            DEPTH = 4 if withw else 6
            for ji in range(len(jobs)):
                while nxt < len(jobs) and nxt < ji + DEPTH:
                    issue(nxt)
                    nxt += 1
                left = sum(1 for p in pend if p > ji)
                A(f"s_waitcnt lgkmcnt({left})")
                tau, ks = jobs[ji]
                wreg = WR + 16 * tau + 4 * ks
                xreg = XF + 4 * (ji % 8)
                first = (tau == 0 and ks == 0)
                if transposed:
                    mfma(A, acc, wreg, xreg, None if first else acc)
                else:
                    mfma(A, acc, xreg, wreg, None if first else acc)
            if k == 2:
                marker_store()
            if k == NSTEP - 2:
                flag_init()
            if k == NSTEP - 1:
                stamp(A, 1)
            if taus[-1] == 6:
                A("s_nop 7")
                A("s_nop 1")
                epilogue(ph)
                if ph == 1:
                    stamp(A, 14)

    A("s_cmp_ge_u32 s26, 14")
    A("s_cselect_b32 s27, 14, 0")
    A(f"s_cselect_b32 s36, {KV_OFF}, {QF_OFF}")
    A("s_cselect_b32 s37, 12, 11")
    A(f"s_cselect_b32 s38, 1.0, {f32bits(QSCALE):#x}")
    A("s_cselect_b32 s42, 0x3f803f80, 0")
    A("s_cselect_b32 s43, 0x3f80, 0")
    A("s_sub_u32 s27, s26, s27")
    A("s_lshl_b32 s27, s27, 2")
    A("s_add_u32 s39, s37, 6")
    A("s_lshl_b32 s44, 1, s39")
    for gi, g in enumerate((0, 2)):
        A(f"v_add_u32 v5, {g}, v4")
        A("v_add_u32 v5, s27, v5")
        A("v_mul_u32_u24 v6, 37, v5")
        A("v_lshrrev_b32 v6, 8, v6")
        A("v_mul_u32_u24 v7, 7, v6")
        A("v_sub_u32 v5, v5, v7")
        A(f"v_cmp_eq_u32 s[{48+2*gi}:{49+2*gi}], 3, v5")
        A("v_lshrrev_b32 v7, 2, v5")
        A("v_lshl_add_u32 v6, v6, 1, v7")
        A("v_and_b32 v5, 3, v5")
        A(f"v_lshlrev_b32 v{EA+gi}, s39, v6")
        A(f"v_lshl_add_u32 v{EA+gi}, v5, 9, v{EA+gi}")
        A(f"v_lshl_add_u32 v{EA+gi}, v3, 4, v{EA+gi}")
        A(f"v_add_u32 v{EA+2+gi}, s44, v{EA+gi}")
    A("v_mov_b32 v14, s38")
    A("v_mov_b32 v15, s38")

    def epi_qk(ph):
        A(f"s_cmp_ge_u32 s{60+ph}, 64")
        A(f"s_cbranch_scc1 L_SKIPQK_{ph}")
        A(f"s_lshl_b32 s41, s{60+ph}, s37")
        A("s_add_u32 s41, s41, s36")
        a = ACC + 16 * (ph % 2)
        o = EO + 16 * (ph % 2)
        for p in range(8):
            A(f"v_pk_mul_f32 {vr(a+2*p,2)}, {vr(a+2*p,2)}, v[14:15]")
        for p in range(8):
            A(f"v_cvt_pk_bf16_f32 v{o+p}, v{a+2*p}, v{a+2*p+1}")
        A("s_nop 1")
        for g in (0, 2):
            b = o + 2 * g
            A(f"v_permlane32_swap_b32 v{b}, v{b+2}")
            A(f"v_permlane32_swap_b32 v{b+1}, v{b+3}")
        for gi, g in enumerate((0, 2)):
            b = o + 2 * g
            T = o + 8 + 4 * gi
            lab = f"L_NOMIX_{ph}_{gi}"
            A(f"s_mov_b64 exec, s[{48+2*gi}:{49+2*gi}]")
            A(f"s_cbranch_execz {lab}")
            A(f"v_mov_b32 v{T}, v{b+2}")
            A(f"v_mov_b32 v{T+1}, v{b+3}")
            A(f"v_mov_b32 v{T+2}, s42")
            A(f"v_mov_b32 v{T+3}, s43")
            A(f"v_mov_b32 v{b+2}, s42")
            A(f"v_mov_b32 v{b+3}, s43")
            A(f"buffer_store_dwordx4 {vr(T,4)}, v{EA+2+gi}, s[8:11], s41 offen sc1")
            A.label(lab)
            A("s_mov_b64 exec, -1")
            A(f"buffer_store_dwordx4 {vr(b,4)}, v{EA+gi}, s[8:11], s41 offen sc1")
        A.label(f"L_SKIPQK_{ph}")
    mainloop(True, epi_qk)
    A("s_branch L_SIGNAL")

    A.label("L_VPART")
    A("s_sub_u32 s27, s26, 28")
    A("s_lshl_b32 s27, s27, 5")
    A("v_add_u32 v5, s27, v3")
    A("v_mul_u32_u24 v6, 2341, v5")
    A("v_lshrrev_b32 v6, 16, v6")
    A("v_mul_u32_u24 v7, 28, v6")
    A("v_sub_u32 v5, v5, v7")
    A("v_cmp_le_u32 s[48:49], 24, v5")
    A("v_cmp_eq_u32 vcc, 24, v5")
    A(f"v_lshlrev_b32 v{EA}, 18, v6")
    A("v_lshl_add_u32 v5, v4, 5, v5")
    A(f"v_lshl_add_u32 v{EA}, v5, 4, v{EA}")
    A("v_mov_b32 v5, 0x3f803f80")
    A("v_cndmask_b32 v48, 0, v5, vcc")
    for r in range(1, 4):
        A(f"v_mov_b32 v{48+r}, v48")

    def epi_v(ph):
        A(f"s_cmp_ge_u32 s{60+ph}, 64")
        A(f"s_cbranch_scc1 L_SKIPV_{ph}")
        A(f"s_lshl_b32 s41, s{60+ph}, 12")
        A(f"s_add_u32 s41, s41, {KV_OFF}")
        a = ACC + 16 * (ph % 2)
        o = EO + 16 * (ph % 2)
        for p in range(8):
            A(f"v_cvt_pk_bf16_f32 v{o+p}, v{a+2*p}, v{a+2*p+1}")
        for tt in range(2):
            A(f"buffer_store_dwordx4 {vr(o+4*tt,4)}, v{EA}, s[8:11], s41 offen offset:{2048+1024*tt} sc1")
        A("s_mov_b64 exec, s[48:49]")
        for tt in range(2):
            A(f"buffer_store_dwordx4 v[48:51], v{EA}, s[8:11], s41 offen offset:{2048+1024*tt+64} sc1")
        A("s_mov_b64 exec, -1")
        A.label(f"L_SKIPV_{ph}")
    mainloop(False, epi_v)
    A.label("L_SIGNAL")
    stamp(A, 2)
    A("s_barrier")
    A("s_waitcnt vmcnt(0)")
    stamp(A, 3)
    A(f"s_mov_b32 s41, {C1_OFF}")
    A("s_mov_b64 exec, s[46:47]")
    A("buffer_atomic_add v141, v140, s[8:11], s41 offen sc1")
    A("s_mov_b64 exec, -1")
    A("s_branch L_P2")
    A.label("L_NOTILE")
    marker_store()
    flag_init()
    A("s_barrier")

    A.label("L_P2")
    Q = 8
    O = 40
    SB = [104, 120]
    P = 136
    KVB = 144
    K0T = 208
    T2, T3 = 216, 232
    VOFF = 248

    def Kreg(b, s): return KVB + 16 * b + 4 * s
    def Vreg(b, t): return KVB + 16 * b + 8 + 4 * t
    def Qreg(i, s): return Q + 8 * i + 4 * s

    A("v_lshlrev_b32 v3, 4, v2")
    for j in range(4):
        A(f"v_add_u32 v{VOFF+j}, {j*4096}, v3")
    A("s_mov_b32 s34, 0")
    A("s_lshl_b32 s23, s24, 18")
    A(f"s_add_u32 s23, s23, {KV_OFF}")
    A("s_lshl_b32 s26, s3, 16")
    A("s_add_u32 s26, s26, s23")
    A("s_add_u32 s12, s6, s26"); A("s_addc_u32 s13, s7, 0"); A("s_mov_b32 s14, 65536"); A("s_mov_b32 s15, 0x00020000")
    A("s_lshl_b32 s27, s24, 17")
    A("s_lshl_b32 s26, s25, 13")
    A("s_add_u32 s27, s27, s26")
    for i in range(4):
        A(f"s_add_u32 s26, s3, {i+1}")
        A("s_and_b32 s26, s26, 3")
        A("s_lshl_b32 s26, s26, 11")
        A(f"s_add_u32 s{36+i}, s26, s27")

    def kv_prologue_loads(b0=0, b1=4):
        for b in range(b0, b1):
            for s in range(2):
                A(f"buffer_load_dwordx4 {vr(Kreg(b,s),4)}, v{VOFF+b}, s[12:15], 0 offen offset:{1024*s} {LD}")
            if b < 3:
                for t in range(2):
                    A(f"buffer_load_dwordx4 {vr(Vreg(b,t),4)}, v{VOFF+b}, s[12:15], 0 offen offset:{2048+1024*t} {LD}")

    def zero_state():
        for r in range(64):
            A(f"v_mov_b32 v{O+r}, 0")
        for r in range(4):
            A(f"v_mov_b32 v{P+4+r}, 0")
            A(f"v_mov_b32 v{Vreg(3,1)+r}, 0")

    A(f"v_mov_b32 v{T2}, {L2_FLAG}")
    A(f"v_mov_b32 v{T2+1}, 0")
    a, b, c, d, e = T2 + 2, T2 + 3, T2 + 4, T2 + 5, T2 + 6
    A(f"v_lshrrev_b32 v{a}, 3, v2")
    A(f"v_add_u32 v{a}, 1, v{a}")
    A(f"v_bfe_u32 v{b}, v2, 2, 1")
    A(f"v_and_b32 v{c}, 3, v2")
    A("v_cmp_le_u32 vcc, 16, v2")
    A(f"v_and_b32 v{d}, 1, v2")
    A("s_lshr_b32 s27, s25, 2")
    A(f"v_mov_b32 v{e}, s27")
    A(f"v_cndmask_b32 v{a}, v{a}, 0, vcc")
    A(f"v_cndmask_b32 v{b}, v{b}, v{d}, vcc")
    A(f"v_cndmask_b32 v{c}, v{c}, v{e}, vcc")
    A("s_mul_i32 s27, s24, 28")
    A(f"v_mul_u32_u24 v{b}, 27, v{b}")
    A(f"v_add_u32 v{b}, s27, v{b}")
    A(f"v_lshrrev_b32 v{b}, 5, v{b}")
    A(f"v_mul_u32_u24 v{a}, 14, v{a}")
    A(f"v_add_u32 v{a}, v{a}, v{b}")
    A(f"v_lshl_add_u32 v{a}, v{a}, 2, v{c}")
    A(f"v_lshlrev_b32 v{a}, 8, v{a}")
    zero_state()
    for i in range(3):
        A(f"s_add_u32 s26, s3, {i+1}")
        A("s_and_b32 s26, s26, 3")
        A("s_mul_i32 s26, s26, 12288")
        A(f"s_add_u32 s26, s26, {L2_CMB + i*4096}")
        A(f"v_add_u32 v{4+i}, s26, v3")
    A("s_mul_i32 s26, s3, 12288")
    A(f"s_add_u32 s26, s26, {L2_CMB}")
    A("v_add_u32 v7, s26, v3")
    A("s_mov_b32 s28, 0")
    A("s_mov_b32 s29, -1")
    stamp(A, 4)
    A("s_cmp_lg_u32 s3, 0")
    A("s_cbranch_scc1 L_LDSWAIT")
    A("s_cmp_lt_u32 s20, 231")
    A("s_cbranch_scc1 L_INITSEEN2")
    srd(A, 56, "s4", "s5", 256)
    A("s_mov_b32 s27, 0")
    A.label("L_INITPOLL2")
    A("s_sleep 16")
    A(f"buffer_load_dword v{b}, v{T2+1}, s[56:59], 0 offen sc1")
    A("s_waitcnt vmcnt(0)")
    A(f"v_readfirstlane_b32 s40, v{b}")
    A("s_add_u32 s27, s27, 1")
    A(f"s_cmp_gt_u32 s27, {SPIN_MAX}")
    A("s_cbranch_scc1 L_INITSEEN2")
    A("s_cmp_eq_u32 s40, 0")
    A("s_cbranch_scc1 L_INITPOLL2")
    A.label("L_INITSEEN2")
    A("s_mov_b64 exec, 0x3ffff")
    A("s_mov_b32 s27, 0")
    A(f"s_mov_b32 s41, {C1_OFF}")
    A.label("L_C1POLL")
    A(f"buffer_load_dword v{b}, v{a}, s[8:11], s41 offen sc1")
    A("s_waitcnt vmcnt(0)")
    A(f"v_cmp_ne_u32 vcc, 16, v{b}")
    A("s_add_u32 s27, s27, 1")
    A(f"s_cmp_gt_u32 s27, {SPIN_MAX}")
    A("s_cbranch_scc1 L_C1OUT")
    A("s_cmp_lg_u64 vcc, 0")
    A("s_cbranch_scc0 L_C1OUT")
    if OPT["pollsleep"]:
        A(f"s_sleep {OPT['pollsleep']}")
    A("s_branch L_C1POLL")
    A.label("L_C1OUT")
    A("s_mov_b64 exec, -1")
    A(f"v_mov_b32 v{T2+1}, 1")
    A(f"ds_write_b32 v{T2}, v{T2+1} offset:4")
    A("s_branch L_C1DONE")
    A.label("L_LDSWAIT")
    A("s_waitcnt vmcnt(0)")
    A("s_mov_b32 s27, 0")
    A.label("L_LDSPOLL")
    A(f"ds_read_b32 v{T2+1}, v{T2} offset:4")
    A("s_waitcnt lgkmcnt(0)")
    A(f"v_readfirstlane_b32 s40, v{T2+1}")
    A("s_add_u32 s27, s27, 1")
    A(f"s_cmp_gt_u32 s27, {SPIN_MAX*64}")
    A("s_cbranch_scc1 L_C1DONE")
    A("s_cmp_eq_u32 s40, 0")
    A("s_cbranch_scc1 L_LDSPOLL")
    A.label("L_C1DONE")
    stamp(A, 5)
    LQ = OPT["ldq"]
    for s in range(2):
        A(f"buffer_load_dwordx4 {vr(K0T+4*s,4)}, v3, s[8:11], s23 offen offset:{1024*s} {LQ}")
    for i in range(4):
        for s in range(2):
            A(f"buffer_load_dwordx4 {vr(Qreg(i,s),4)}, v3, s[8:11], s{36+i} offen offset:{1024*s} {LQ}")
    kv_prologue_loads(0, 1)
    TMP = [SB[0], SB[1], T2, T3]
    for i in range(4):
        A(f"s_waitcnt vmcnt({4 + 2*(3-i)})")
        if i == 3:
            stamp(A, 6)
        A("s_mov_b64 exec, s[28:29]")
        A(f"v_mov_b32 v{Qreg(i,1)+2}, 0")
        A(f"v_mov_b32 v{Qreg(i,1)+3}, 0")
        A("s_mov_b64 exec, -1")
        mfma(A, TMP[i], K0T, Qreg(i, 0), None)
        mfma(A, TMP[i], K0T + 4, Qreg(i, 1), TMP[i])
    kv_prologue_loads(1, 4)
    A(f"v_mov_b32 v{K0T}, 0")
    A(f"v_mov_b32 v{K0T+1}, 1")
    A("s_mov_b64 exec, 1")
    A(f"buffer_atomic_add v{K0T+1}, v{K0T}, s[8:11], s33 offen sc1")
    A("s_mov_b64 exec, -1")
    for i in range(4):
        t = TMP[i]
        A(f"v_max3_f32 v{t}, v{t}, v{t+1}, v{t+2}")
        for k in range(3, 15, 2):
            A(f"v_max3_f32 v{t}, v{t}, v{t+k}, v{t+k+1}")
        A(f"v_max_f32 v{t}, v{t}, v{t+15}")
    A("s_mov_b64 exec, s[28:29]")
    for i in range(4):
        A(f"v_cvt_pk_bf16_f32 v{Qreg(i,1)+2}, -v{TMP[i]}, 0")
    A("s_mov_b64 exec, -1")
    A("s_waitcnt vmcnt(11)")
    A("s_branch L_MAIN2")

    A.label("L_MAIN")
    A("s_waitcnt vmcnt(10)")
    A.label("L_MAIN2")
    A("s_mov_b32 s30, 16384")
    A("s_mov_b32 s31, 0")
    mfma(A, SB[0], Kreg(0, 0), Qreg(0, 0), None)
    mfma(A, SB[0], Kreg(0, 1), Qreg(0, 1), SB[0])
    A("s_nop 7")
    A("s_nop 3")
    stamp(A, 7)
    cstamp(A, 12)
    L = SB[0]

    def body(last):
        for tb in range(4):
            for qt in range(4):
                u = tb * 4 + qt
                sc = SB[u % 2]
                sn = SB[(u + 1) % 2]
                ntb, nqt = (tb, qt + 1) if qt < 3 else ((tb + 1) % 4, 0)
                ptb, pqt = (tb, qt - 1) if qt > 0 else ((tb + 3) % 4, 3)
                fin = last and tb == 3 and qt == 3

                def ex(k, extra=()):
                    extra = list(extra)
                    for j in range(4):
                        A(f"v_exp_f32 v{sc+4*k+j}, v{sc+4*k+j}")
                        if extra:
                            A(extra.pop(0))
                    assert not extra
                    A(f"v_cvt_pk_bf16_f32 v{P+2*k}, v{sc+4*k}, v{sc+4*k+1}")
                    A(f"v_cvt_pk_bf16_f32 v{P+2*k+1}, v{sc+4*k+2}, v{sc+4*k+3}")
                aft = [None, None, None, None]
                if qt == 3 and not last:
                    for s in range(2):
                        aft[s] = f"buffer_load_dwordx4 {vr(Kreg(tb,s),4)}, v{VOFF+tb}, s[12:15], s30 offen offset:{1024*s} {LD}"
                if qt == 1 and (not last or tb == 0):
                    b_ = (tb + 3) % 4
                    so = "s30" if tb >= 1 else "s31"
                    for t in range(2):
                        aft[t] = f"buffer_load_dwordx4 {vr(Vreg(b_,t),4)}, v{VOFF+b_}, s[12:15], {so} offen offset:{2048+1024*t} {LD}"
                if qt == 2:
                    if not last:
                        aft[3] = "s_waitcnt vmcnt(8)"
                    elif tb < 3:
                        aft[3] = f"s_waitcnt vmcnt({[8, 4, 0][tb]})"
                if last and tb == 3 and qt >= 2:
                    i = qt - 2
                    for g in range(4):
                        aft[g] = f"ds_write_b128 v{4+i}, {vr(O+16*i+4*g,4)} offset:{1024*g}"
                if not fin:
                    mfma(A, sn, Kreg(ntb, 0), Qreg(nqt, 0), None)
                if aft[0]:
                    A(aft[0])
                ex(0)
                mfma(A, O + 16 * pqt, Vreg(ptb, 1), P + 4, O + 16 * pqt)
                if aft[1]:
                    A(aft[1])
                ex(1)
                if not fin:
                    mfma(A, sn, Kreg(ntb, 1), Qreg(nqt, 1), sn)
                if aft[2]:
                    A(aft[2])
                ex(2)
                mfma(A, O + 16 * qt, Vreg(tb, 0), P, O + 16 * qt)
                if aft[3]:
                    A(aft[3])
                e_ = []
                if tb == 3 and qt == 3 and not last:
                    e_ = ["s_add_u32 s31, s31, 16384", "s_add_u32 s30, s30, 16384", "s_cmp_lt_u32 s31, 49152"]
                ex(3, e_)

    A.raw(".p2align 6")
    A.label("L_LOOP")
    body(False)
    A("s_cbranch_scc1 L_LOOP")
    body(True)
    A("s_nop 1")
    mfma(A, O + 48, Vreg(3, 1), P + 4, O + 48)
    stamp(A, 8)
    cstamp(A, 13)
    for g in range(4):
        A(f"ds_write_b128 v6, {vr(O+32+4*g,4)} offset:{1024*g}")
    A(f"v_mov_b32 v{L}, {f32bits(2.0**40):#x}")
    A(f"v_mov_b32 v{L+1}, {f32bits(2.0**-40):#x}")
    A("s_and_b32 s26, s24, 3")
    A("s_lshl_b32 s26, 0x100, s26")
    A(f"v_mov_b32 v{L+8}, 0")
    A(f"v_mov_b32 v{L+9}, s26")
    A("s_cmp_lg_u32 s34, 0")
    A("s_cbranch_scc1 L_NOFLAG")
    A(f"v_min3_f32 v{L+3}, v{O+12}, v{O+28}, v{O+44}")
    A(f"v_add_f32 v{L+4}, v{O+12}, v{O+28}")
    A(f"v_add_f32 v{L+5}, v{O+44}, v{O+60}")
    A(f"v_min_f32 v{L+3}, v{L+3}, v{O+60}")
    A(f"v_add_f32 v{L+4}, v{L+4}, v{L+5}")
    A(f"v_cmp_nlt_f32 vcc, v{L+4}, v{L}")
    A(f"v_cmp_nge_f32 s[40:41], v{L+3}, v{L+1}")
    A("s_cmp_eq_u32 s3, 0")
    A("s_cselect_b32 s41, s41, 0")
    A("s_or_b32 s41, s41, vcc_hi")
    A("s_cbranch_scc0 L_NOFLAG")
    A(f"v_mov_b32 v{L+5}, {L2_FLAG}")
    A(f"v_mov_b32 v{L+6}, 1")
    A(f"ds_write_b32 v{L+5}, v{L+6}")
    A.label("L_NOFLAG")
    A(f"v_mov_b32 v{L+5}, {L2_FLAG}")
    A("s_waitcnt lgkmcnt(0)")
    A("s_barrier")
    stamp(A, 9)
    R = KVB
    A(f"ds_read_b32 v{L+6}, v{L+5}")
    for sl in range(3):
        for g in range(4):
            A(f"ds_read_b128 {vr(R+16*sl+4*g,4)}, v7 offset:{4096*sl+1024*g}")
    A("s_waitcnt lgkmcnt(12)")
    A(f"v_readfirstlane_b32 s26, v{L+6}")
    A("s_nop 3")
    A("s_cmp_gt_u32 s26, s34")
    A("s_cbranch_scc1 L_FALLBACK")

    def hint():
        A("s_mov_b64 exec, 1")
        A(f"buffer_atomic_add v{L+9}, v{L+8}, s[8:11], s33 offen sc1")
        A("s_mov_b64 exec, -1")
    if OPT["hint"] == "b8":
        hint()
    OO = O + 48
    for sl in range(3):
        for g in range(4):
            A(f"s_waitcnt lgkmcnt({11-4*sl-g})")
            for p in range(2):
                A(f"v_pk_add_f32 {vr(OO+4*g+2*p,2)}, {vr(OO+4*g+2*p,2)}, {vr(R+16*sl+4*g+2*p,2)}")
    A(f"v_mov_b32 v{L}, v{OO+12}")
    A(f"v_mov_b32 v{L+1}, v{OO+12}")
    A("s_nop 1")
    A(f"v_permlane32_swap_b32 v{L}, v{L+1}")
    A("s_nop 0")
    A(f"v_rcp_f32 v{L+2}, v{L+1}")
    A("s_nop 0")
    A(f"v_mov_b32 v{L+3}, v{L+2}")
    for p in range(8):
        A(f"v_pk_mul_f32 {vr(OO+2*p,2)}, {vr(OO+2*p,2)}, {vr(L+2,2)}")
    for p in range(8):
        A(f"v_cvt_pk_bf16_f32 v{R+p}, v{OO+2*p}, v{OO+2*p+1}")
    A("s_mov_b64 exec, s[28:29]")
    A(f"v_mov_b32 v{R+6}, 0")
    A(f"v_mov_b32 v{R+7}, 0")
    A("s_mov_b64 exec, -1")
    for p in range(8):
        A(f"v_min_u32 v{R+p}, -2, v{R+p}")
        if p % 4 == 3:
            A(f"buffer_store_dwordx4 {vr(R+p-3,4)}, v3, s[8:11], s35 offen offset:{1024*(p//4)} sc1")
    if OPT["hint"] != "b8":
        hint()
    stamp(A, 10)
    A("s_branch L_END")

    A.label("L_FALLBACK")
    A("s_mov_b32 s34, 1")
    A("s_waitcnt vmcnt(0) lgkmcnt(0)")
    A("s_mov_b64 exec, s[28:29]")
    for i in range(4):
        A(f"v_mov_b32 v{Qreg(i,1)+2}, 0")
        A(f"v_mov_b32 v{Qreg(i,1)+3}, 0")
    A("s_mov_b64 exec, -1")
    M = T2
    for i in range(4):
        A(f"v_mov_b32 v{M+i}, 0xff800000")
    A("s_mov_b32 s31, 0")
    A.label("L_MAXLOOP")
    for s in range(2):
        A(f"buffer_load_dwordx4 {vr(K0T+4*s,4)}, v3, s[12:15], s31 offen offset:{1024*s} {LD}")
    A("s_waitcnt vmcnt(0)")
    for i in range(4):
        t = O + 16 * i
        mfma(A, t, K0T, Qreg(i, 0), None)
        mfma(A, t, K0T + 4, Qreg(i, 1), t)
    A("s_nop 7")
    A("s_nop 7")
    for i in range(4):
        t = O + 16 * i
        for k in range(0, 16, 2):
            A(f"v_max3_f32 v{M+i}, v{M+i}, v{t+k}, v{t+k+1}")
    A("s_add_u32 s31, s31, 4096")
    A("s_cmp_lt_u32 s31, 65536")
    A("s_cbranch_scc1 L_MAXLOOP")
    for i in range(4):
        A(f"v_mov_b32 v{M+4+i}, v{M+i}")
    A("s_nop 1")
    for i in range(4):
        A(f"v_permlane32_swap_b32 v{M+i}, v{M+4+i}")
    A("s_nop 1")
    for i in range(4):
        A(f"v_max_f32 v{M+i}, v{M+i}, v{M+4+i}")
    A(f"v_and_b32 v{M+8}, 31, v2")
    A(f"v_lshlrev_b32 v{M+8}, 2, v{M+8}")
    for i in range(4):
        A(f"s_add_u32 s26, s3, {i+1}")
        A("s_and_b32 s26, s26, 3")
        A("s_lshl_b32 s26, s26, 9")
        A(f"s_add_u32 s26, s26, {L2_MX}")
        A(f"v_add_u32 v{M+9+i}, s26, v{M+8}")
        A("s_lshl_b32 s27, s3, 7")
        A(f"v_add_u32 v{M+13}, s27, v{M+9+i}")
        A(f"ds_write_b32 v{M+13}, v{M+i}")
    A("s_waitcnt lgkmcnt(0)")
    A("s_barrier")
    for i in range(4):
        for w in range(4):
            A(f"ds_read_b32 v{O+4*i+w}, v{M+9+i} offset:{128*w}")
            if (4 * i + w) % 8 == 7:
                A("s_waitcnt lgkmcnt(0)")
    for i in range(4):
        t = O + 4 * i
        A(f"v_max3_f32 v{t}, v{t}, v{t+1}, v{t+2}")
        A(f"v_max_f32 v{t}, v{t}, v{t+3}")
        A(f"v_sub_f32 v{t}, 0, v{t}")
        A(f"v_cvt_pk_bf16_f32 v{t+1}, v{t}, 0")
        A(f"v_lshlrev_b32 v{t+2}, 16, v{t+1}")
        A(f"v_sub_f32 v{t}, v{t}, v{t+2}")
        A(f"v_cvt_pk_bf16_f32 v{t+2}, v{t}, 0")
        A(f"v_lshlrev_b32 v{t+3}, 16, v{t+2}")
        A(f"v_sub_f32 v{t}, v{t}, v{t+3}")
        A(f"v_or_b32 v{t+1}, v{t+1}, v{t+3}")
        A(f"v_cvt_pk_bf16_f32 v{t+2}, v{t}, 0")
    A("s_mov_b64 exec, s[28:29]")
    for i in range(4):
        t = O + 4 * i
        A(f"v_mov_b32 v{Qreg(i,1)+2}, v{t+1}")
        A(f"v_mov_b32 v{Qreg(i,1)+3}, v{t+2}")
    A("s_mov_b64 exec, -1")
    kv_prologue_loads()
    zero_state()
    A("s_branch L_MAIN")

    A.label("L_END")
    stamp_flush(A)
    A.label("L_EXIT")
    A("s_endpgm")


HEADER = """; MHA block (B=1, S=2048, D=448, H=16) for gfx950, one persistent launch:
;   P1 QKV projection -> (counters) -> P2 attention -> (hint + marker check) -> P3 output projection.
"""


def main(out):
    A = Asm()
    A.raw(HEADER.rstrip())
    A.raw(f"; @launch grid=(256,1,1) block=(512,1,1) lds={LDS_TOTAL}")
    A.raw('.amdgcn_target "amdgcn-amd-amdhsa--gfx950"')
    A.raw(".text")
    gen(A)
    A.raw('.section .rodata,"a"')
    A.raw(f""".p2align 6
.amdhsa_kernel {NAME}
  .amdhsa_next_free_vgpr 256
  .amdhsa_next_free_sgpr {102 if STAMP else 64}
  .amdhsa_accum_offset 256
  .amdhsa_group_segment_fixed_size 0
  .amdhsa_kernarg_size 48
  .amdhsa_user_sgpr_count 2
  .amdhsa_user_sgpr_kernarg_segment_ptr 1
  .amdhsa_system_sgpr_workgroup_id_x 1
.end_amdhsa_kernel""")
    open(out, "w").write(A.text())


if __name__ == "__main__":
    out = sys.argv[1] if len(sys.argv) > 1 else "standalone__mha_block__prompt.s"
    for a in sys.argv[2:]:
        if a == "stamp":
            STAMP = True
        elif a == "dbgstamp":
            STAMP = True
            DBGSTAMP = True
        elif "=" in a:
            k, v = a.split("=", 1)
            assert k in OPT, k
            OPT[k] = v
    main(out)
```

```python
import sys, math, struct

S_TOK, D, H, DH = 2048, 448, 16, 28
WQF_OFF = 0
KV_OFF = 2 << 20
OF_OFF = 6 << 20
C1_OFF = 8 << 20
C2_OFF = (8 << 20) + 65536
EP_OFF = (8 << 20) + 196608 + 1024
C3_OFF = (8 << 20) + 196608 + 4096
WS_USED = (8 << 20) + 196608 + 8192
TAGSTEP = 0x9E3779B8
QSCALE = math.log2(math.e) / math.sqrt(DH)
SPIN_MAX = 40000
KVB_OF_HEAD = [0, 1, 14, 2, 3, 4, 5, 6, 7, 8, 9, 10, 11, 15, 12, 13]
KVB_LO = sum(v << (4 * i) for i, v in enumerate(KVB_OF_HEAD[:8]))
KVB_HI = sum(v << (4 * i) for i, v in enumerate(KVB_OF_HEAD[8:]))
INIT_HEAD = 2

OPT = dict(ldsc="sc1", ldq="", outsc="", stgprio="3", stgsleep="3", stgdelay="32", pollsleep="4", hint="b8", plan="d", wqp="7", bsleep="8", bdelay="16")


def f32bits(x):
    return struct.unpack("<I", struct.pack("<f", x))[0]


class Asm:
    def __init__(self):
        self.l = []

    def __call__(self, s):
        self.l.append("  " + s)

    def label(self, s):
        self.l.append(s + ":")

    def raw(self, s):
        self.l.append(s)

    def text(self):
        return "\n".join(self.l) + "\n"


def vr(a, n):
    return f"v[{a}:{a+n-1}]"


STAMP = False
STAMP_OFF = 16 << 20
NSTAMP = 16


def stamp_init(A):
    if not STAMP:
        return
    for k in range(NSTAMP):
        A(f"s_mov_b32 s{64+2*k}, 0")
    A("s_memrealtime s[64:65]")


def stamp(A, slot):
    if STAMP:
        A(f"s_memrealtime s[{64+2*slot}:{65+2*slot}]")


def cstamp(A, slot):
    if STAMP:
        A(f"s_memtime s[{64+2*slot}:{65+2*slot}]")


DBGSTAMP = False


def stamp_flush(A):
    if not STAMP:
        return
    A("s_waitcnt vmcnt(0)")
    A(f"s_memrealtime s[{64+2*(NSTAMP-1)}:{65+2*(NSTAMP-1)}]")
    A("s_waitcnt lgkmcnt(0)")
    if DBGSTAMP:
        A("s_and_b32 s100, s3, 3")
        A("s_cmp_lg_u32 s100, 0")
        A("s_cbranch_scc1 L_EXIT")
        A("s_mov_b32 s96, s4"); A("s_mov_b32 s97, s5"); A("s_mov_b32 s98, 256"); A("s_mov_b32 s99, 0x00020000")
        A("s_mov_b64 exec, 1")
        A("v_mov_b32 v0, 0")
        A("s_not_b32 s100, s64")
        A("v_mov_b32 v1, s100")
        A("buffer_atomic_umax v1, v0, s[96:99], 0 offen offset:4 sc1")
        A("s_cmp_lt_u32 s3, 4")
        A("s_cbranch_scc0 L_DBGL")
        for w, sl in ((2, 0), (3, 1), (4, 3), (5, 5), (6, 7), (7, 8), (8, 10)):
            A(f"v_mov_b32 v1, s{64+2*sl}")
            A(f"buffer_atomic_umax v1, v0, s[96:99], 0 offen offset:{4*w} sc1")
            A("s_nop 1")
        A("s_branch L_EXIT")
        A.label("L_DBGL")
        for w, sl in ((9, 4), (10, 1), (11, 2), (12, 5), (13, 8), (14, 15)):
            A(f"v_mov_b32 v1, s{64+2*sl}")
            A(f"buffer_atomic_umax v1, v0, s[96:99], 0 offen offset:{4*w} sc1")
            A("s_nop 1")
        return
    A(f"s_add_u32 s96, s6, {STAMP_OFF}")
    A("s_addc_u32 s97, s7, 0")
    A("s_mov_b32 s98, 0x100000")
    A("s_mov_b32 s99, 0x00020000")
    A("s_lshl_b32 s100, s2, 10")
    A("s_lshl_b32 s101, s3, 6")
    A("s_add_u32 s100, s100, s101")
    A("s_mov_b64 exec, 1")
    A("v_mov_b32 v0, 0")
    for k in range(NSTAMP):
        A(f"v_mov_b32 v1, s{64+2*k}")
        A(f"buffer_store_dword v1, v0, s[96:99], s100 offen offset:{4*k}")
        A("s_nop 1")


def mfma(A, d, a, b, c):
    cs = "0" if c is None else vr(c, 16)
    A(f"v_mfma_f32_32x32x16_bf16 {vr(d,16)}, {vr(a,4)}, {vr(b,4)}, {cs}")


def epoch_load(A):
    A(f"s_add_u32 s56, s6, {EP_OFF}")
    A("s_addc_u32 s57, s7, 0")
    A("s_load_dword s63, s[56:57], 0")


def srd(A, d, lo, hi, size):
    A(f"s_mov_b32 s{d}, {lo}")
    A(f"s_mov_b32 s{d+1}, {hi}")
    A(f"s_mov_b32 s{d+2}, {size}")
    A(f"s_mov_b32 s{d+3}, 0x00020000")


L1_X = 0
L1_R = 114688
L_QX = L1_R + 4 * 8192
L_FLAG = 155648
L2_MX = L_FLAG + 256
L3_STG = 0
L2_CMB = 65536
L3_RED = 0
LDS_TOTAL = 163840
L2_FLAG = L_FLAG


def wq_base(tau):
    return L1_R + 2 * 8192 + tau * 4096 if tau < 4 else L1_R + (tau - 4) * 4096


STEPS = [("A", [t]) for t in range(7)] + [("B", [0, 1, 2, 3]), ("B", [4, 5, 6]), ("Q", [0, 1, 2, 3]), ("Q", [4, 5, 6])]
NSTEP = len(STEPS)
PLANS = {"a": [[0, 1, 2, 3], [4], [5], [6], [7], [8], [9], [], [10], [], []],
         "b": [[0, 1, 2, 3], [4], [5], [6], [7], [8], [], [], [9, 10], [], []],
         "c": [[0, 1, 2, 3], [4], [5], [6], [7], [], [8], [], [9, 10], [], []],
         "d": [[0, 1, 2, 3], [4], [5], [6], [7], [], [], [], [8, 9], [10], []]}

NAME = "standalone__mha_block__prompt_kernel"


def gen(A):
    LD = OPT["ldsc"]
    A.raw(f".globl {NAME}")
    A.raw(".p2align 8")
    A.raw(f".type {NAME},@function")
    A.label(NAME)
    A("s_cmp_ge_u32 s2, 256")
    A("s_cbranch_scc1 L_EXIT")
    stamp_init(A)
    A("s_load_dwordx4 s[16:19], s[0:1], 0")
    A("s_load_dwordx4 s[4:7], s[0:1], 32")
    A("s_load_dwordx4 s[52:55], s[0:1], 16")
    A("v_lshrrev_b32 v1, 6, v0")
    A("v_and_b32 v2, 63, v0")
    A("v_readfirstlane_b32 s3, v1")
    A("s_and_b32 s24, s2, 3")
    A("s_lshl_b32 s24, s24, 2")
    A("s_bfe_u32 s25, s2, 0x20003")
    A("s_add_u32 s24, s24, s25")
    A("s_bfe_u32 s25, s2, 0x10002")
    A("s_lshl_b32 s25, s25, 3")
    A("s_lshr_b32 s20, s2, 5")
    A("s_add_u32 s25, s25, s20")
    A("s_cmp_ge_u32 s24, 8")
    A(f"s_mov_b32 s20, {KVB_LO:#x}")
    A(f"s_cselect_b32 s20, {KVB_HI:#x}, s20")
    A("s_and_b32 s21, s24, 7")
    A("s_lshl_b32 s21, s21, 2")
    A("s_lshr_b32 s22, s20, s21")
    A("s_and_b32 s22, s22, 15")
    A("s_and_b32 s39, s24, 3")
    A("s_lshl_b32 s39, s39, 1")
    A("s_add_u32 s39, s39, s25")
    A("s_mul_i32 s20, s39, 37")
    A("s_lshr_b32 s20, s20, 8")
    A("s_mul_i32 s20, s20, 7")
    A("s_sub_u32 s39, s39, s20")
    A("s_cmp_lt_u32 s3, 4")
    A("s_cbranch_scc1 L_CWAVE")

    A("s_setprio 3")
    A("s_sub_u32 s26, s3, 4")
    A("v_lshrrev_b32 v3, 3, v2")
    A("v_and_b32 v4, 7, v2")
    A("v_lshrrev_b32 v5, 1, v3")
    A("s_and_b32 s27, s26, 1")
    A("s_lshl_b32 s27, s27, 2")
    A("v_add_u32 v7, s27, v5")
    A("v_and_b32 v7, 7, v7")
    A("v_xor_b32 v7, v4, v7")
    A("v_and_b32 v5, 1, v5")
    A("v_lshlrev_b32 v5, 2, v5")
    A("v_xor_b32 v5, v4, v5")
    A("v_mul_u32_u24 v6, 2688, v3")
    A("v_lshl_add_u32 v6, v5, 4, v6")
    A("v_mul_u32_u24 v3, 896, v3")
    A("v_lshl_add_u32 v3, v7, 4, v3")
    A("v_lshlrev_b32 v9, 4, v2")
    A("s_cmp_ge_u32 s22, 14")
    A("s_cselect_b64 vcc, -1, 0")
    A("s_cselect_b32 s58, 0x40000000, 0")
    A("v_cndmask_b32 v6, v6, v9, vcc")
    A("s_lshl_b32 s36, s25, 7")
    A("s_lshl_b32 s27, s26, 3")
    A("s_add_u32 s36, s36, s27")
    A("s_mul_i32 s36, s36, 896")
    A(f"s_mul_i32 s44, s26, {8*2688}")
    A("s_min_u32 s27, s22, 13")
    A("s_lshl_b32 s27, s27, 7")
    A("s_add_u32 s44, s44, s27")
    A("s_add_u32 s44, s44, 896")
    A(f"s_mul_i32 s45, s24, {28*1024}")
    A("s_lshl_b32 s27, s26, 10")
    A("s_add_u32 s45, s45, s27")
    A("s_sub_u32 s59, s22, 14")
    A("s_lshl_b32 s59, s59, 4")
    A("s_add_u32 s59, s59, s25")
    A("s_and_b32 s59, s59, 31")
    A("s_mov_b32 s37, s59")
    A("s_min_u32 s59, s59, 27")
    A("s_lshl_b32 s59, s59, 4")
    A("s_add_u32 s59, s59, s26")
    A("s_mul_i32 s59, s59, 2688")
    A("s_lshl_b32 s38, s26, 10")
    A("s_waitcnt lgkmcnt(0)")
    epoch_load(A)
    srd(A, 28, "s16", "s17", S_TOK * D * 2)
    srd(A, 32, "s18", "s19", D * 3 * D * 2)
    srd(A, 8, "s6", "s7", WS_USED)

    def chunk_of(tau):
        A(f"s_add_u32 s40, s39, {tau}")
        A("s_cmp_ge_u32 s40, 7")
        A("s_cselect_b32 s41, 7, 0")
        A("s_sub_u32 s40, s40, s41")

    def step_loads(k):
        kind, taus = STEPS[k]
        n = 0
        for tau in taus:
            chunk_of(tau)
            if kind == "A":
                A(f"s_mul_i32 s41, s40, {64*2688}")
                A("s_add_u32 s41, s41, s44")
                for i in range(2):
                    A(f"s_add_u32 s42, s38, {L1_R + (tau % 5) * 8192 + i * 4096}")
                    if tau == 5:
                        A("s_lshr_b32 s27, s58, 15")
                        A("s_add_u32 s42, s42, s27")
                    A("s_mov_b32 m0, s42")
                    A(f"s_add_u32 s43, s41, {i * 32 * 2688}")
                    if tau < 2:
                        A(f"s_add_u32 s27, s59, {(8 * tau + 4 * i) * 2688}")
                        A("s_cmp_ge_u32 s22, 14")
                        A("s_cselect_b32 s43, s27, s43")
                    A("buffer_load_dwordx4 v6, s[32:35], s43 offen lds")
                    n += 1
                if tau == 1:
                    A("v_add_u32 v6, s58, v6")
            if kind == "Q":
                A("s_lshl_b32 s41, s40, 12")
                A(f"s_add_u32 s42, s38, {wq_base(tau)}")
                A("s_mov_b32 m0, s42")
                A("s_add_u32 s43, s41, s45")
                A("buffer_load_dwordx4 v9, s[8:11], s43 offen sc1 lds")
                n += 1
            else:
                A("s_lshl_b32 s41, s40, 7")
                A("s_add_u32 s41, s41, s36")
                for p in range(2):
                    rt = p + (2 if kind == "B" else 0)
                    A(f"s_add_u32 s42, s38, {L1_X + tau * 16384 + rt * 4096}")
                    A("s_mov_b32 m0, s42")
                    A(f"s_add_u32 s43, s41, {rt * 32 * 896}")
                    A("buffer_load_dwordx4 v3, s[28:31], s43 offen lds")
                    n += 1
        return n

    WF = 16
    OFR = 144
    ACC3 = 176

    def l_setup():
        a, b, c, d, e, hi = 16, 17, 18, 19, 20, 21
        A("s_lshr_b32 s20, s2, 2")
        A("s_and_b32 s21, s2, 3")
        A("s_waitcnt lgkmcnt(0)")
        A(f"s_add_u32 s63, s63, {TAGSTEP:#x}")
        A(f"v_bfe_u32 v{a}, v2, 5, 1")
        A(f"v_bfe_u32 v{b}, v2, 4, 1")
        A(f"v_and_b32 v{c}, 15, v2")
        A("s_mul_i32 s27, s24, 28")
        A(f"v_mul_u32_u24 v{b}, 27, v{b}")
        A(f"v_add_u32 v{b}, s27, v{b}")
        A(f"v_lshrrev_b32 v{b}, 6, v{b}")
        A(f"v_mul_u32_u24 v{a}, 7, v{a}")
        A(f"v_add_u32 v{a}, v{a}, v{b}")
        A(f"v_lshl_add_u32 v{a}, v{a}, 4, v{c}")
        A(f"v_lshlrev_b32 v249, 8, v{a}")
        A(f"v_and_b32 v{b}, 31, v2")
        A(f"v_add_u32 v{b}, 224, v{b}")
        A(f"v_lshlrev_b32 v11, 8, v{b}")
        A("v_mov_b32 v10, 1")
        A("v_mov_b32 v12, s63")
        A("v_and_b32 v14, 3, v2")
        A("v_lshlrev_b32 v14, 7, v14")
        A("v_and_b32 v15, 7, v2")
        A("v_lshlrev_b32 v15, 9, v15")
        A("s_lshl_b32 s49, s26, 7")
        A(f"s_add_u32 s49, s49, {C3_OFF}")
        A("s_lshl_b32 s51, s22, 4")
        A("s_add_u32 s51, s51, s25")
        A("s_lshl_b32 s51, s51, 8")
        A(f"s_add_u32 s51, s51, {C1_OFF}")
        A(f"v_lshrrev_b32 v{a}, 4, v2")
        A(f"v_and_b32 v{b}, 15, v2")
        A(f"v_lshlrev_b32 v{c}, 2, v{a}")
        A(f"v_xor_b32 v{b}, v{b}, v{c}")
        A(f"v_mul_u32_u24 v{a}, 896, v{a}")
        A(f"v_lshl_add_u32 v{a}, v{b}, 4, v{a}")
        A("s_lshl_b32 s27, s21, 4")
        A(f"v_add_u32 v{b}, s27, v{b}")
        A(f"v_mov_b32 v{c}, 0x40000000")
        A(f"v_cmp_le_u32 vcc, 56, v{b}")
        A("s_nop 1")
        A(f"v_cndmask_b32 v251, v{a}, v{c}, vcc")
        A("s_mul_i32 s46, s26, 15360")
        A(f"s_add_u32 s46, s46, {L3_STG}")
        A(f"v_and_b32 v{a}, 15, v2")
        A(f"v_lshrrev_b32 v{b}, 2, v{a}")
        A(f"v_bfe_u32 v{c}, v2, 4, 1")
        A(f"v_lshlrev_b32 v{c}, 1, v{c}")
        A(f"v_bfe_u32 v{d}, v{a}, 1, 1")
        A(f"v_add_u32 v{c}, v{c}, v{d}")
        A(f"v_lshrrev_b32 v{hi}, 5, v2")
        A(f"v_lshl_add_u32 v{d}, v{hi}, 2, v{b}")
        A(f"v_lshlrev_b32 v{e}, 8, v{d}")
        A(f"v_lshl_add_u32 v{e}, v{c}, 4, v{e}")
        A(f"v_and_b32 v{d}, 1, v{a}")
        A(f"v_lshl_add_u32 v{e}, v{d}, 3, v{e}")
        A(f"v_add_u32 v{e}, s46, v{e}")
        for i in range(4):
            A(f"s_add_u32 s27, s26, {i}")
            A("s_and_b32 s27, s27, 3")
            A(f"v_xor_b32 v{d}, s27, v{b}")
            A(f"v_lshl_add_u32 v{252+i}, v{d}, 6, v{e}")
        A("v_lshlrev_b32 v240, 4, v2")
        for i in range(1, 4):
            A(f"s_add_u32 s27, s26, {i}")
            A("s_and_b32 s27, s27, 3")
            A("s_mul_i32 s27, s27, 12288")
            A(f"s_add_u32 s27, s27, {L3_RED + (i-1)*4096}")
            A(f"v_add_u32 v{240+i}, s27, v240")
        A("s_mul_i32 s27, s26, 12288")
        A(f"s_add_u32 s27, s27, {L3_RED}")
        A("v_add_u32 v244, s27, v240")
        A("v_add_u32 v245, 4096, v240")
        A("s_lshl_b32 s46, s20, 15")
        A("s_lshl_b32 s27, s26, 13")
        A("s_add_u32 s46, s46, s27")
        A(f"s_add_u32 s46, s46, {OF_OFF}")
        A("s_lshl_b32 s47, s20, 2")
        A("s_add_u32 s47, s47, s26")
        A("s_lshl_b32 s47, s47, 9")
        A(f"s_add_u32 s47, s47, {C2_OFF}")
        A("v_and_b32 v246, 31, v2")
        A("v_mul_u32_u24 v246, 896, v246")
        A(f"v_lshl_add_u32 v246, v{hi}, 4, v246")
        A(f"s_mul_i32 s48, s20, {32*896}")
        A("s_lshl_b32 s27, s21, 8")
        A("s_add_u32 s48, s48, s27")
        A("s_lshl_b32 s27, s26, 6")
        A("s_add_u32 s48, s48, s27")
        A(f"v_mov_b32 v247, {L_FLAG}")
        A("v_mov_b32 v248, 0")
        for r in range(64):
            A(f"v_mov_b32 v{ACC3+r}, 0")

    stamp(A, 4)
    order = []
    for k in range(NSTEP):
        for st in PLANS[OPT["plan"]][k]:
            if st == 9:
                A("s_mov_b32 s27, 0")
                A.label("L_WQPOLL")
                A("v_cmp_ne_u32 vcc, s63, v5")
                A("s_add_u32 s27, s27, 1")
                A(f"s_cmp_gt_u32 s27, {SPIN_MAX}")
                A("s_cbranch_scc1 L_WQOK")
                A("s_and_b32 s40, vcc_lo, 0x7f")
                A("s_cbranch_scc0 L_WQOK")
                A("s_mov_b64 exec, 0x7f")
                A("buffer_load_dword v5, v15, s[8:11], s49 offen sc1")
                A("s_mov_b64 exec, -1")
                A("s_waitcnt vmcnt(0)")
                A("s_branch L_WQPOLL")
                A.label("L_WQOK")
            order.append((st, step_loads(st)))
        if k == int(OPT["wqp"]):
            A("s_mov_b64 exec, 0x7f")
            A("buffer_load_dword v5, v15, s[8:11], s49 offen sc1")
            A("s_mov_b64 exec, -1")
            order.append((max(st for kk in range(k + 1) for st in PLANS[OPT["plan"]][kk]) - 0.5 if False else 7, 1))
        if k == 0:
            l_setup()
        left = sum(c for key, c in order if key > k)
        A(f"s_waitcnt vmcnt({left})")
        A("s_barrier")
        if k == 0:
            stamp(A, 1)
        if k == 6:
            stamp(A, 2)
        if k == 8:
            stamp(A, 3)
        if k == 2:
            A("s_cmp_lt_u32 s22, 14")
            A("s_cbranch_scc1 L_NOPUB2")
            A("s_cmp_lg_u32 s26, 3")
            A("s_cbranch_scc1 L_NOPUB2")
            A("s_lshl_b32 s27, s37, 7")
            A(f"s_add_u32 s27, s27, {C3_OFF}")
            A("s_mov_b64 exec, 1")
            A("buffer_store_dword v12, v248, s[8:11], s27 offen sc1")
            A("s_mov_b64 exec, -1")
            A.label("L_NOPUB2")
        if k in (8, 10):
            A("s_cmp_lg_u32 s26, 3")
            A(f"s_cbranch_scc1 L_NOPUB{k}")
            A("s_mov_b64 exec, 1")
            A(f"buffer_store_dword v12, v248, s[8:11], s51 offen offset:{0 if k == 8 else 128} sc1")
            A("s_mov_b64 exec, -1")
            A.label(f"L_NOPUB{k}")

    def poll_flags(name, areg):
        A("s_mov_b32 s27, 0")
        A(f"s_mov_b32 s41, {C1_OFF + 128}")
        A.label(f"L_POLL{name}")
        A(f"buffer_load_dword v4, v{areg}, s[8:11], s41 offen sc1")
        A("s_waitcnt vmcnt(0)")
        A("v_cmp_ne_u32 vcc, s63, v4")
        A("s_add_u32 s27, s27, 1")
        A(f"s_cmp_gt_u32 s27, {SPIN_MAX}")
        A(f"s_cbranch_scc1 L_POUT{name}")
        A("s_cmp_lg_u64 vcc, 0")
        A(f"s_cbranch_scc0 L_POUT{name}")
        A(f"s_sleep {OPT['bsleep']}")
        A(f"s_branch L_POLL{name}")
        A.label(f"L_POUT{name}")
    stamp(A, 7)
    A("s_barrier")
    A("s_cmp_lg_u32 s26, 0")
    A("s_cbranch_scc1 L_NOPOLLB")
    A(f"s_sleep {OPT['bdelay']}")
    poll_flags("B", 249)
    A("ds_write_b32 v247, v10 offset:8")
    A("s_waitcnt lgkmcnt(0)")
    A.label("L_NOPOLLB")
    stamp(A, 9)

    srd(A, 28, "s52", "s53", D * D * 2)
    srd(A, 32, "s54", "s55", S_TOK * D * 2)
    A(f"s_mul_i32 s36, s26, {112*896}")
    A("s_lshl_b32 s27, s21, 8")
    A("s_add_u32 s36, s36, s27")
    A("s_mul_i32 s38, s26, 15360")
    A(f"s_add_u32 s38, s38, {L3_STG}")
    A("s_mov_b32 s27, 0")
    A.label("L_STGWAIT")
    A("s_sleep 8")
    A("ds_read_b32 v250, v247 offset:8")
    A("s_waitcnt lgkmcnt(0)")
    A("v_readfirstlane_b32 s40, v250")
    A("s_add_u32 s27, s27, 1")
    A(f"s_cmp_gt_u32 s27, {SPIN_MAX*8}")
    A("s_cbranch_scc1 L_STGGO")
    A("s_cmp_eq_u32 s40, 0")
    A("s_cbranch_scc1 L_STGWAIT")
    A.label("L_STGGO")
    A(f"s_setprio {OPT['stgprio']}")
    A(f"s_sleep {OPT['stgdelay']}")
    for rho in range(2):
        for i in range(15):
            A(f"s_add_u32 s42, s38, {i*1024}")
            A("s_mov_b32 m0, s42")
            A(f"s_add_u32 s43, s36, {(56*rho + 4*i)*896}")
            A("buffer_load_dwordx4 v251, s[28:31], s43 offen lds")
            if OPT["stgsleep"]:
                A(f"s_sleep {OPT['stgsleep']}")
        A("s_waitcnt vmcnt(0)")
        n = 0
        for hh in range(2):
            for s in range(2):
                for i in range(4):
                    for rd in range(2):
                        j = (2 * rho + hh) * 2 + s
                        A(f"ds_read_b64_tr_b16 {vr(WF+16*j+4*i+2*rd,2)}, v{252+i} offset:{(28*hh+16*s+8*rd)*256}")
                        n += 1
                        if n % 8 == 0:
                            A("s_waitcnt lgkmcnt(4)")
        A("s_waitcnt lgkmcnt(0)")
    stamp(A, 5)
    A("s_setprio 3")
    A("s_cmp_lg_u32 s2, 0")
    A("s_cbranch_scc1 L_NOEP1")
    A("s_cmp_lg_u32 s26, 1")
    A("s_cbranch_scc1 L_NOEP1")
    poll_flags("N", 11)
    A.label("L_NOEP1")
    A("s_mov_b32 s27, 0")
    A.label("L_C2POLL")
    A("buffer_load_dword v4, v14, s[8:11], s47 offen sc1")
    A("s_waitcnt vmcnt(0)")
    A("v_subrev_u32 v4, s63, v4")
    A("v_cmp_lt_u32 vcc, 1, v4")
    A("s_add_u32 s27, s27, 1")
    A(f"s_cmp_gt_u32 s27, {SPIN_MAX}")
    A("s_cbranch_scc1 L_C2OUT")
    A("s_cmp_lg_u64 vcc, 0")
    A("s_cbranch_scc1 L_C2POLL")
    A.label("L_C2OUT")
    A("s_barrier")
    A("s_mov_b64 exec, 15")
    A("buffer_load_dword v4, v14, s[8:11], s47 offen sc1")
    A("s_mov_b64 exec, -1")
    A("ds_read_b32 v13, v247")
    A("s_waitcnt lgkmcnt(0)")
    A("v_readfirstlane_b32 s27, v13")
    A("s_nop 3")
    A("s_cmp_eq_u32 s27, 0")
    A("s_cbranch_scc1 L_NOFB")
    A("s_barrier")
    A("s_barrier")
    A.label("L_NOFB")
    stamp(A, 6)
    A("s_mov_b32 s27, 0")
    A("s_mov_b32 s41, 15")
    A("s_mov_b32 s43, 0")
    A.label("L_OPOLL")
    A("s_add_u32 s27, s27, 1")
    A(f"s_cmp_gt_u32 s27, {SPIN_MAX}")
    A("s_cselect_b32 s42, 0, -1")
    A("s_mov_b32 s49, 0")
    A("s_waitcnt vmcnt(0)")
    A("v_cmp_ne_u32 vcc, s63, v4")
    A("s_nop 1")
    A("s_and_b32 s50, vcc_lo, 15")
    for hh in range(4):
        o = OFR + 8 * hh
        A(f"s_bitcmp0_b32 s43, {hh}")
        A(f"s_cbranch_scc1 L_OC{hh}")
        A(f"v_max3_u32 v13, v{o}, v{o+1}, v{o+2}")
        A(f"v_max3_u32 v15, v{o+3}, v{o+4}, v{o+5}")
        A(f"v_max3_u32 v13, v13, v{o+6}, v{o+7}")
        A("v_max_u32 v13, v13, v15")
        A("v_cmp_eq_u32 vcc, -1, v13")
        A("s_nop 1")
        A("s_or_b32 s40, vcc_lo, vcc_hi")
        A("s_and_b32 s40, s40, s42")
        A(f"s_cbranch_scc1 L_OC{hh}")
        A(f"s_bitset0_b32 s41, {hh}")
        A(f"s_bitset1_b32 s49, {hh}")
        A.label(f"L_OC{hh}")
    A("s_orn2_b32 s40, s50, s42")
    A("s_and_b32 s43, s40, s41")
    for hh in range(4):
        A(f"s_bitcmp0_b32 s43, {hh}")
        A(f"s_cbranch_scc1 L_OI{hh}")
        for sx in range(2):
            j = 2 * hh + sx
            A(f"buffer_load_dwordx4 {vr(OFR+4*j,4)}, v{240 if j < 4 else 245}, s[8:11], s46 offen offset:{(j%4)*1024} sc1")
        A.label(f"L_OI{hh}")
    A("s_cmp_eq_u32 s43, s41")
    A("s_cbranch_scc1 L_ONOPOLL")
    A("s_mov_b64 exec, 15")
    A("buffer_load_dword v4, v14, s[8:11], s47 offen sc1")
    A("s_mov_b64 exec, -1")
    A.label("L_ONOPOLL")
    for hh in range(4):
        A(f"s_bitcmp0_b32 s49, {hh}")
        A(f"s_cbranch_scc1 L_OM{hh}")
        for sx in range(2):
            j = 2 * hh + sx
            for i in range(4):
                mfma(A, ACC3 + 16 * i, WF + 16 * j + 4 * i, OFR + 4 * j, ACC3 + 16 * i)
        A.label(f"L_OM{hh}")
    A("s_cmp_lg_u32 s41, 0")
    A("s_cbranch_scc1 L_OPOLL")
    stamp(A, 8)
    A("s_nop 7")
    A("s_nop 3")
    for i in (1, 2, 3):
        for g in range(4):
            A(f"ds_write_b128 v{240+i}, {vr(ACC3+16*i+4*g,4)} offset:{1024*g}")
    A("s_waitcnt lgkmcnt(0)")
    A("s_barrier")
    A("s_cmp_lg_u32 s2, 0")
    A("s_cbranch_scc1 L_NOEP2")
    A("s_cmp_lg_u32 s26, 1")
    A("s_cbranch_scc1 L_NOEP2")
    A("v_mov_b32 v4, s63")
    A(f"s_mov_b32 s27, {EP_OFF}")
    A("s_mov_b64 exec, 1")
    A("buffer_store_dword v4, v248, s[8:11], s27 offen sc1")
    A("s_mov_b64 exec, -1")
    A.label("L_NOEP2")
    R = WF
    for sl in range(3):
        for g in range(4):
            A(f"ds_read_b128 {vr(R+16*sl+4*g,4)}, v244 offset:{4096*sl+1024*g}")
    for sl in range(3):
        for g in range(4):
            A(f"s_waitcnt lgkmcnt({11-4*sl-g})")
            for p in range(2):
                A(f"v_pk_add_f32 {vr(ACC3+4*g+2*p,2)}, {vr(ACC3+4*g+2*p,2)}, {vr(R+16*sl+4*g+2*p,2)}")
    for p in range(8):
        A(f"v_cvt_pk_bf16_f32 v{OFR+p}, v{ACC3+2*p}, v{ACC3+2*p+1}")
    A("s_lshl_b32 s27, s21, 2")
    A("s_add_u32 s27, s27, s26")
    A("s_cmp_ge_u32 s27, 14")
    A("s_cbranch_scc1 L_END")
    for g in (0, 2):
        b = OFR + 2 * g
        A(f"v_permlane32_swap_b32 v{b}, v{b+2}")
        A(f"v_permlane32_swap_b32 v{b+1}, v{b+3}")
    for g in (0, 2):
        b = OFR + 2 * g
        A(f"buffer_store_dwordx4 {vr(b,4)}, v246, s[32:35], s48 offen offset:{16*g} {OPT['outsc']}")
    A("s_branch L_END")

    A.label("L_CWAVE")
    A("s_lshl_b32 s26, s25, 2")
    A("s_add_u32 s26, s26, s3")
    A("s_lshl_b32 s35, s26, 4")
    A("s_add_u32 s35, s35, s24")
    A("s_lshl_b32 s35, s35, 11")
    A(f"s_add_u32 s35, s35, {OF_OFF}")
    A("s_lshl_b32 s33, s26, 4")
    A("s_add_u32 s33, s33, s24")
    A("s_lshl_b32 s33, s33, 7")
    A(f"s_add_u32 s33, s33, {C2_OFF}")
    A("s_waitcnt lgkmcnt(0)")
    epoch_load(A)
    srd(A, 8, "s6", "s7", WS_USED)

    Q = 8
    O = 40
    SB = [104, 120]
    P = 136
    KVB = 144
    K0T = 208
    T2, T3 = 216, 232
    VOFF = 248

    def Kreg(b, s): return KVB + 16 * b + 4 * s
    def Vreg(b, t): return KVB + 16 * b + 8 + 4 * t
    def Qreg(i, s): return Q + 8 * i + 4 * s

    ACC = 16
    XF = 64
    EO = 96
    EA = 128
    XL, XH = 8, 132
    WR = 144
    A(f"v_mov_b32 v5, {L_FLAG}")
    for r in range(4):
        A(f"v_mov_b32 v{64+r}, 0")
    A("ds_write_b128 v5, v[64:67]")
    A("s_and_b32 s27, s3, 1")
    A("s_lshr_b32 s28, s3, 1")
    A("s_lshl_b32 s26, s22, 1")
    A("s_add_u32 s26, s26, s27")
    A("s_lshr_b32 s60, s25, 2")
    A("s_lshl_b32 s60, s60, 4")
    A("s_and_b32 s29, s25, 3")
    A("s_lshl_b32 s29, s29, 1")
    A("s_add_u32 s60, s60, s29")
    A("s_add_u32 s60, s60, s28")
    A("s_lshl_b32 s60, s60, 12")
    A(f"s_add_u32 s60, s60, {KV_OFF}")
    A("s_add_u32 s61, s60, 32768")
    A("v_and_b32 v3, 31, v2")
    A("v_lshrrev_b32 v4, 5, v2")
    A("v_bfe_u32 v5, v3, 1, 3")
    A("s_lshl_b32 s29, s28, 12")
    for ks in range(4):
        A(f"v_add_u32 v6, {2*ks}, v4")
        A("v_xor_b32 v6, v6, v5")
        A("v_lshlrev_b32 v6, 4, v6")
        A("v_lshl_add_u32 v6, v3, 7, v6")
        A(f"v_add_u32 v{XL+ks}, s29, v6")
        A(f"v_add_u32 v{XH+ks}, 0x10000, v{XL+ks}")
    A("v_and_b32 v5, 15, v2")
    A("v_lshrrev_b32 v6, 2, v5")
    A("v_bfe_u32 v7, v2, 4, 1")
    A("v_lshlrev_b32 v7, 1, v7")
    A("v_bfe_u32 v13, v5, 1, 1")
    A("v_add_u32 v7, v7, v13")
    A("s_lshl_b32 s29, s27, 2")
    A("v_add_u32 v7, s29, v7")
    A("v_bfe_u32 v13, v5, 3, 1")
    A("v_lshlrev_b32 v13, 2, v13")
    A("v_xor_b32 v7, v7, v13")
    A("v_lshl_add_u32 v6, v4, 3, v6")
    A("v_lshlrev_b32 v12, 7, v6")
    A("v_lshl_add_u32 v12, v7, 4, v12")
    A("v_and_b32 v13, 1, v5")
    A("v_lshl_add_u32 v12, v13, 3, v12")
    A(f"v_add_u32 v12, {L1_R}, v12")
    A("v_bfe_u32 v7, v2, 4, 1")
    A("v_lshl_add_u32 v7, v7, 1, v13")
    A("v_bfe_u32 v13, v5, 1, 1")
    A("v_cmp_eq_u32 vcc, 3, v7")
    A("v_lshl_add_u32 v7, v7, 1, v13")
    A("v_add_u32 v13, 1, v7")
    A("v_lshlrev_b32 v136, 10, v6")
    A(f"s_mul_i32 s29, s3, {4*56}")
    A(f"s_add_u32 s29, s29, {L1_R}")
    A("v_add_u32 v136, s29, v136")
    A("v_cndmask_b32 v7, v7, 6, vcc")
    A("v_cndmask_b32 v13, v13, 0, vcc")
    A("v_lshl_add_u32 v141, v7, 3, v136")
    A("v_lshl_add_u32 v142, v13, 3, v136")
    A("v_mov_b32 v137, 0")
    A("v_lshlrev_b32 v139, 4, v2")
    A(f"v_add_u32 v136, {L1_R}, v139")
    A("v_bfe_u32 v5, v2, 3, 1")
    A("v_bfe_u32 v6, v2, 2, 1")
    A("s_mul_i32 s29, s24, 28")
    A("v_mul_u32_u24 v6, 27, v6")
    A("v_add_u32 v6, s29, v6")
    A("v_lshrrev_b32 v6, 6, v6")
    A("v_mul_u32_u24 v5, 7, v5")
    A("v_add_u32 v5, v5, v6")
    A("v_cmp_gt_u32 vcc, 16, v2")
    A("v_and_b32 v6, 3, v2")
    A("s_lshl_b32 s29, s3, 2")
    A("v_add_u32 v6, s29, v6")
    A("v_cndmask_b32 v6, 0, v6, vcc")
    A("v_lshl_add_u32 v5, v5, 4, v6")
    A("v_lshlrev_b32 v140, 8, v5")
    A("s_waitcnt lgkmcnt(0)")
    A(f"s_add_u32 s63, s63, {TAGSTEP:#x}")
    A("v_mov_b32 v138, s63")
    A("s_cmp_ge_u32 s26, 28")
    A("s_cbranch_scc1 L_RPK")
    A("s_cmp_ge_u32 s26, 14")
    A("s_cbranch_scc1 L_VPART")

    def marker_store():
        for r in range(4):
            A(f"v_mov_b32 v{96+r}, -1")
        for sx in range(2):
            A(f"buffer_store_dwordx4 v[96:99], v139, s[8:11], s35 offen offset:{1024*sx} sc1")

    def signal(ph, tag):
        A("s_waitcnt vmcnt(0)")
        if ph == 0:
            A("s_mov_b64 exec, 1")
            A("buffer_store_dword v138, v137, s[8:11], s33 offen sc1")
            A("s_mov_b64 exec, -1")

    def kvloop(transposed, epilogue, tag):
        for k, (kind, taus) in enumerate(STEPS[:9]):
            A("s_barrier")
            ph = 0 if kind == "A" else 1
            jobs = [(tau, ks) for tau in taus for ks in range(4)]
            pend = []
            nxt = 0
            acc = ACC + 16 * ph

            def issue(ji):
                tau, ks = jobs[ji]
                if kind == "A":
                    for rd in range(2):
                        A(f"ds_read_b64_tr_b16 {vr(WR+16*tau+4*ks+2*rd,2)}, v12 offset:{(tau%5)*8192 + ks*2048 + rd*512}")
                        pend.append(ji)
                reg = XL + ks if tau < 4 else XH + ks
                A(f"ds_read_b128 {vr(XF+4*(ji%8),4)}, v{reg} offset:{(tau%4)*16384 + ph*8192}")
                pend.append(ji)
            DEPTH = 4 if kind == "A" else 6
            for ji in range(len(jobs)):
                while nxt < len(jobs) and nxt < ji + DEPTH:
                    issue(nxt)
                    nxt += 1
                left = sum(1 for p in pend if p > ji)
                A(f"s_waitcnt lgkmcnt({left})")
                tau, ks = jobs[ji]
                wreg = WR + 16 * tau + 4 * ks
                xreg = XF + 4 * (ji % 8)
                first = (tau == 0 and ks == 0)
                if transposed:
                    mfma(A, acc, wreg, xreg, None if first else acc)
                else:
                    mfma(A, acc, xreg, wreg, None if first else acc)
            if k == 2:
                marker_store()
            if k == 7:
                signal(0, tag)
            if taus[-1] == 6:
                A("s_nop 7")
                A("s_nop 1")
                epilogue(ph)
                stamp(A, 14 if ph == 0 else 2)

    A("s_mov_b32 s42, 0x3f803f80")
    A("s_mov_b32 s43, 0x3f80")
    A("s_lshl_b32 s27, s26, 2")
    for gi, g in enumerate((0, 2)):
        A(f"v_add_u32 v5, {g}, v4")
        A("v_add_u32 v5, s27, v5")
        A("v_mul_u32_u24 v6, 37, v5")
        A("v_lshrrev_b32 v6, 8, v6")
        A("v_mul_u32_u24 v7, 7, v6")
        A("v_sub_u32 v5, v5, v7")
        A(f"v_cmp_eq_u32 s[{48+2*gi}:{49+2*gi}], 3, v5")
        A("v_lshrrev_b32 v7, 2, v5")
        A("v_lshl_add_u32 v6, v6, 1, v7")
        A("v_and_b32 v5, 3, v5")
        A(f"v_lshlrev_b32 v{EA+gi}, 18, v6")
        A(f"v_lshl_add_u32 v{EA+gi}, v5, 9, v{EA+gi}")
        A(f"v_lshl_add_u32 v{EA+gi}, v3, 4, v{EA+gi}")
        A(f"v_add_u32 v{EA+2+gi}, 0x40000, v{EA+gi}")

    def epi_k(ph):
        a = ACC + 16 * ph
        o = EO + 16 * ph
        for p in range(8):
            A(f"v_cvt_pk_bf16_f32 v{o+p}, v{a+2*p}, v{a+2*p+1}")
        A("s_nop 1")
        for g in (0, 2):
            b = o + 2 * g
            A(f"v_permlane32_swap_b32 v{b}, v{b+2}")
            A(f"v_permlane32_swap_b32 v{b+1}, v{b+3}")
        for gi, g in enumerate((0, 2)):
            b = o + 2 * g
            T = o + 8 + 4 * gi
            lab = f"L_NOMIX_{ph}_{gi}"
            A(f"s_mov_b64 exec, s[{48+2*gi}:{49+2*gi}]")
            A(f"s_cbranch_execz {lab}")
            A(f"v_mov_b32 v{T}, v{b+2}")
            A(f"v_mov_b32 v{T+1}, v{b+3}")
            A(f"v_mov_b32 v{T+2}, s42")
            A(f"v_mov_b32 v{T+3}, s43")
            A(f"v_mov_b32 v{b+2}, s42")
            A(f"v_mov_b32 v{b+3}, s43")
            A(f"buffer_store_dwordx4 {vr(T,4)}, v{EA+2+gi}, s[8:11], s{60+ph} offen sc1")
            A.label(lab)
            A("s_mov_b64 exec, -1")
            A(f"buffer_store_dwordx4 {vr(b,4)}, v{EA+gi}, s[8:11], s{60+ph} offen sc1")
    A("s_nop 0")
    kvloop(True, epi_k, "k")
    A("s_branch L_QPHASE")

    A.label("L_VPART")
    A("s_sub_u32 s27, s26, 14")
    A("s_lshl_b32 s27, s27, 5")
    A("v_add_u32 v5, s27, v3")
    A("v_mul_u32_u24 v6, 2341, v5")
    A("v_lshrrev_b32 v6, 16, v6")
    A("v_mul_u32_u24 v7, 28, v6")
    A("v_sub_u32 v5, v5, v7")
    A("v_cmp_le_u32 s[48:49], 24, v5")
    A("v_cmp_eq_u32 vcc, 24, v5")
    A(f"v_lshlrev_b32 v{EA}, 18, v6")
    A("v_lshl_add_u32 v5, v4, 5, v5")
    A(f"v_lshl_add_u32 v{EA}, v5, 4, v{EA}")
    A("v_mov_b32 v5, 0x3f803f80")
    A("v_cndmask_b32 v48, 0, v5, vcc")
    for r in range(1, 4):
        A(f"v_mov_b32 v{48+r}, v48")

    def epi_v(ph):
        a = ACC + 16 * ph
        o = EO + 16 * ph
        for p in range(8):
            A(f"v_cvt_pk_bf16_f32 v{o+p}, v{a+2*p}, v{a+2*p+1}")
        for tt in range(2):
            A(f"buffer_store_dwordx4 {vr(o+4*tt,4)}, v{EA}, s[8:11], s{60+ph} offen offset:{2048+1024*tt} sc1")
        A("s_mov_b64 exec, s[48:49]")
        for tt in range(2):
            A(f"buffer_store_dwordx4 v[48:51], v{EA}, s[8:11], s{60+ph} offen offset:{2048+1024*tt+64} sc1")
        A("s_mov_b64 exec, -1")
    kvloop(False, epi_v, "v")
    A("s_branch L_QPHASE")

    A.label("L_RPK")
    A("s_sub_u32 s27, s22, 14")
    A("s_lshl_b32 s27, s27, 4")
    A("s_add_u32 s27, s27, s25")
    A(f"s_mul_i32 s29, s3, {4*28*1024}")
    A("s_lshl_b32 s40, s27, 10")
    A("s_add_u32 s29, s29, s40")
    A("s_barrier")
    A("s_barrier")
    A("s_cmp_ge_u32 s27, 28")
    A("s_cbranch_scc1 L_RPKSKIP")
    for hh in range(4):
        for rd in range(2):
            A(f"ds_read_b64_tr_b16 {vr(XF+4*hh+2*rd,2)}, v{141+(hh&1)} offset:{56*hh + rd*4096}")
    for hh in range(4):
        A(f"s_waitcnt lgkmcnt({6-2*hh})")
        A(f"buffer_store_dwordx4 {vr(XF+4*hh,4)}, v139, s[8:11], s29 offen sc1")
        A(f"s_add_u32 s29, s29, {28*1024}")
    A("s_waitcnt vmcnt(0)")
    A.label("L_RPKSKIP")
    A("s_barrier")
    marker_store()
    for k in range(3, 8):
        A("s_barrier")
    signal(0, "r")
    A("s_barrier")

    A.label("L_QPHASE")
    ACCQ = SB[0]
    XFQ = T2
    WQF = 16
    A("s_lshr_b32 s28, s3, 1")
    A("s_sub_u32 s29, s3, s28")
    A("s_lshl_b32 s29, s29, 12")
    for ks in range(4):
        A(f"v_add_u32 v{XL+ks}, s29, v{XL+ks}")
        A(f"v_add_u32 v{XH+ks}, s29, v{XH+ks}")
    A("v_mov_b32 v3, v139")
    for j in range(4):
        A(f"v_add_u32 v{VOFF+j}, {j*4096}, v3")
    A("s_mov_b32 s34, 0")
    A("s_lshl_b32 s23, s24, 18")
    A(f"s_add_u32 s23, s23, {KV_OFF}")
    A("s_lshl_b32 s27, s3, 16")
    A("s_add_u32 s27, s27, s23")
    A("s_add_u32 s12, s6, s27"); A("s_addc_u32 s13, s7, 0"); A("s_mov_b32 s14, 65536"); A("s_mov_b32 s15, 0x00020000")
    for i in range(3):
        A(f"s_add_u32 s27, s3, {i+1}")
        A("s_and_b32 s27, s27, 3")
        A("s_mul_i32 s27, s27, 12288")
        A(f"s_add_u32 s27, s27, {L2_CMB + i*4096}")
        A(f"v_add_u32 v{4+i}, s27, v3")
    A("s_mul_i32 s27, s3, 12288")
    A(f"s_add_u32 s27, s27, {L2_CMB}")
    A("v_add_u32 v7, s27, v3")
    A("s_mov_b32 s28, 0")
    A("s_mov_b32 s29, -1")
    A(f"s_mov_b32 s41, {C1_OFF}")

    def kv_prologue_loads(b0=0, b1=4):
        for b in range(b0, b1):
            for s in range(2):
                A(f"buffer_load_dwordx4 {vr(Kreg(b,s),4)}, v{VOFF+b}, s[12:15], 0 offen offset:{1024*s} {LD}")
            if b < 3:
                for t in range(2):
                    A(f"buffer_load_dwordx4 {vr(Vreg(b,t),4)}, v{VOFF+b}, s[12:15], 0 offen offset:{2048+1024*t} {LD}")

    def zero_list():
        return [f"v_mov_b32 v{O+r}, 0" for r in range(64)] + [f"v_mov_b32 v{Vreg(3,1)+r}, 0" for r in range(4)]

    def zero_state():
        for z in zero_list():
            A(z)
        for r in range(4):
            A(f"v_mov_b32 v{P+4+r}, 0")

    PL = 124

    def poll_issue():
        A("s_mov_b64 exec, 0xffffff")
        A(f"buffer_load_dword v{PL}, v140, s[8:11], s41 offen sc1")
        A("s_mov_b64 exec, -1")

    def poll_check():
        A(f"v_cmp_ne_u32 vcc, s63, v{PL}")
        A("s_nop 1")
        A("s_and_b32 s40, vcc_lo, 0xffffff")

    def first_loads():
        for s in range(2):
            A(f"buffer_load_dwordx4 {vr(K0T+4*s,4)}, v3, s[8:11], s23 offen offset:{1024*s} {LD}")
        kv_prologue_loads(0, 1)

    zl = zero_list()
    for k in (9, 10):
        kind, taus = STEPS[k]
        A("s_barrier")
        if k == 9:
            poll_issue()
        jobs = [(tau, ks) for tau in taus for ks in range(4)]
        pend = []
        nxt = 0

        def issue(ji):
            tau, ks = jobs[ji]
            A(f"ds_read_b128 {vr(WQF+4*(ji%6),4)}, v136 offset:{wq_base(tau) - L1_R + ks*1024}")
            pend.append(ji)
            reg = XL + ks if tau < 4 else XH + ks
            A(f"ds_read_b128 {vr(XFQ+4*(ji%8),4)}, v{reg} offset:{(tau%4)*16384}")
            pend.append(ji)
        for ji in range(len(jobs)):
            while nxt < len(jobs) and nxt < ji + 4:
                issue(nxt)
                nxt += 1
            left = sum(1 for p in pend if p > ji)
            A(f"s_waitcnt lgkmcnt({left})")
            tau, ks = jobs[ji]
            first = (tau == 0 and ks == 0)
            mfma(A, ACCQ, WQF + 4 * (ji % 6), XFQ + 4 * (ji % 8), None if first else ACCQ)
            for _ in range(3):
                if zl:
                    A(zl.pop(0))
        if k == 9:
            signal(1, "q")
            stamp(A, 3)
            poll_check()
            A("s_cbranch_scc1 L_ARETRY")
            first_loads()
            A("s_branch L_ADONE1")
            A.label("L_ARETRY")
            poll_issue()
            A.label("L_ADONE1")
    assert not zl
    A("s_cmp_eq_u32 s40, 0")
    A("s_cbranch_scc1 L_AOUT")
    A("s_mov_b32 s27, 0")
    A.label("L_APOLL")
    A("s_waitcnt vmcnt(0)")
    poll_check()
    A("s_cbranch_scc0 L_AOK")
    A("s_add_u32 s27, s27, 1")
    A(f"s_cmp_gt_u32 s27, {SPIN_MAX}")
    A("s_cbranch_scc1 L_AOK")
    poll_issue()
    A("s_branch L_APOLL")
    A.label("L_AOK")
    first_loads()
    A.label("L_AOUT")
    stamp(A, 5)
    stamp(A, 1)
    A(f"v_mov_b32 v14, {f32bits(QSCALE):#x}")
    A(f"v_mov_b32 v15, {f32bits(QSCALE):#x}")
    A("s_lshl_b32 s27, s3, 11")
    A(f"s_add_u32 s27, s27, {L_QX}")
    A("v_add_u32 v12, s27, v3")
    for i in range(4):
        A(f"s_add_u32 s27, s3, {i+1}")
        A("s_and_b32 s27, s27, 3")
        A("s_lshl_b32 s27, s27, 11")
        A(f"s_add_u32 s27, s27, {L_QX}")
        A(f"v_add_u32 v{136+i}, s27, v3")
    QT = 16
    for p in range(8):
        A(f"v_pk_mul_f32 {vr(ACCQ+2*p,2)}, {vr(ACCQ+2*p,2)}, v[14:15]")
    for p in range(8):
        A(f"v_cvt_pk_bf16_f32 v{QT+p}, v{ACCQ+2*p}, v{ACCQ+2*p+1}")
    A("s_mov_b64 exec, s[28:29]")
    A(f"v_mov_b32 v{QT+6}, 0")
    A(f"v_mov_b32 v{QT+7}, 0")
    A("s_mov_b64 exec, -1")
    A(f"ds_write_b128 v12, {vr(QT,4)}")
    A("s_waitcnt vmcnt(4)")
    stamp(A, 6)
    t = SB[1]
    mfma(A, t, K0T, QT, None)
    mfma(A, t, K0T + 4, QT + 4, t)
    for r in range(4):
        A(f"v_mov_b32 v{P+4+r}, 0")
    kv_prologue_loads(1, 4)
    A("s_nop 1")
    A(f"v_max3_f32 v{t}, v{t}, v{t+1}, v{t+2}")
    for k in range(3, 15, 2):
        A(f"v_max3_f32 v{t}, v{t}, v{t+k}, v{t+k+1}")
    A(f"v_max_f32 v{t}, v{t}, v{t+15}")
    A("s_mov_b64 exec, s[28:29]")
    A(f"v_cvt_pk_bf16_f32 v{QT+6}, -v{t}, 0")
    A("s_mov_b64 exec, -1")
    A(f"ds_write_b128 v12, {vr(QT+4,4)} offset:1024")
    A("s_waitcnt lgkmcnt(0)")
    A("s_barrier")
    for i in range(4):
        for s in range(2):
            A(f"ds_read_b128 {vr(Qreg(i,s),4)}, v{136+i} offset:{1024*s}")
    A(f"v_mov_b32 v{K0T}, {L_FLAG}")
    A("s_waitcnt lgkmcnt(0)")

    A.label("L_MAIN")
    A("s_waitcnt vmcnt(10)")
    A("s_mov_b32 s30, 16384")
    A("s_mov_b32 s31, 0")
    mfma(A, SB[0], Kreg(0, 0), Qreg(0, 0), None)
    mfma(A, SB[0], Kreg(0, 1), Qreg(0, 1), SB[0])
    A("s_nop 7")
    A("s_nop 3")
    stamp(A, 7)
    cstamp(A, 12)
    L = SB[0]

    def body(last):
        for tb in range(4):
            for qt in range(4):
                u = tb * 4 + qt
                sc = SB[u % 2]
                sn = SB[(u + 1) % 2]
                ntb, nqt = (tb, qt + 1) if qt < 3 else ((tb + 1) % 4, 0)
                ptb, pqt = (tb, qt - 1) if qt > 0 else ((tb + 3) % 4, 3)
                fin = last and tb == 3 and qt == 3

                def ex(k, extra=()):
                    extra = list(extra)
                    for j in range(4):
                        A(f"v_exp_f32 v{sc+4*k+j}, v{sc+4*k+j}")
                        if extra:
                            A(extra.pop(0))
                    assert not extra
                    A(f"v_cvt_pk_bf16_f32 v{P+2*k}, v{sc+4*k}, v{sc+4*k+1}")
                    A(f"v_cvt_pk_bf16_f32 v{P+2*k+1}, v{sc+4*k+2}, v{sc+4*k+3}")
                aft = [None, None, None, None]
                if qt == 3 and not last:
                    for s in range(2):
                        aft[s] = f"buffer_load_dwordx4 {vr(Kreg(tb,s),4)}, v{VOFF+tb}, s[12:15], s30 offen offset:{1024*s} {LD}"
                if qt == 1 and (not last or tb == 0):
                    b_ = (tb + 3) % 4
                    so = "s30" if tb >= 1 else "s31"
                    for t in range(2):
                        aft[t] = f"buffer_load_dwordx4 {vr(Vreg(b_,t),4)}, v{VOFF+b_}, s[12:15], {so} offen offset:{2048+1024*t} {LD}"
                if qt == 2:
                    if not last:
                        aft[3] = "s_waitcnt vmcnt(8)"
                    elif tb < 3:
                        aft[3] = f"s_waitcnt vmcnt({[8, 4, 0][tb]})"
                if not last and tb == 3 and qt == 0:
                    aft[0] = f"ds_read_b32 v{K0T+1}, v{K0T} offset:8"
                if not last and tb == 3 and qt == 2:
                    aft[0] = "s_waitcnt lgkmcnt(0)"
                    aft[1] = f"v_readfirstlane_b32 s40, v{K0T+1}"
                if last and tb == 3 and qt >= 2:
                    i = qt - 2
                    for g in range(4):
                        aft[g] = f"ds_write_b128 v{4+i}, {vr(O+16*i+4*g,4)} offset:{1024*g}"
                if not fin:
                    mfma(A, sn, Kreg(ntb, 0), Qreg(nqt, 0), None)
                if aft[0]:
                    A(aft[0])
                ex(0)
                mfma(A, O + 16 * pqt, Vreg(ptb, 1), P + 4, O + 16 * pqt)
                if aft[1]:
                    A(aft[1])
                ex(1)
                if not fin:
                    mfma(A, sn, Kreg(ntb, 1), Qreg(nqt, 1), sn)
                if aft[2]:
                    A(aft[2])
                ex(2)
                mfma(A, O + 16 * qt, Vreg(tb, 0), P, O + 16 * qt)
                if aft[3]:
                    A(aft[3])
                e_ = []
                if tb == 3 and qt == 3 and not last:
                    e_ = ["s_add_u32 s31, s31, 16384", "s_add_u32 s30, s30, 16384", "s_cmp_lt_u32 s31, 49152"]
                ex(3, e_)

    A.raw(".p2align 6")
    A.label("L_LOOP")
    body(False)
    A("s_cbranch_scc0 L_LAST")
    A("s_cmp_lg_u32 s40, 0")
    A("s_cbranch_scc1 L_LOOP")
    A("s_mov_b32 s27, 0")
    A.label("L_BWAIT")
    A(f"ds_read_b32 v{K0T+1}, v{K0T} offset:8")
    A("s_waitcnt lgkmcnt(0)")
    A(f"v_readfirstlane_b32 s40, v{K0T+1}")
    A("s_add_u32 s27, s27, 1")
    A(f"s_cmp_gt_u32 s27, {SPIN_MAX*64}")
    A("s_cbranch_scc1 L_LOOP")
    A("s_cmp_eq_u32 s40, 0")
    A("s_cbranch_scc1 L_BWAIT")
    A("s_branch L_LOOP")
    A.label("L_LAST")
    body(True)
    A("s_nop 1")
    mfma(A, O + 48, Vreg(3, 1), P + 4, O + 48)
    stamp(A, 8)
    cstamp(A, 13)
    for g in range(4):
        A(f"ds_write_b128 v6, {vr(O+32+4*g,4)} offset:{1024*g}")
    A(f"v_mov_b32 v{L}, {f32bits(2.0**40):#x}")
    A(f"v_mov_b32 v{L+1}, {f32bits(2.0**-40):#x}")
    A("s_add_u32 s26, s63, 1")
    A("s_nop 0")
    A(f"v_mov_b32 v{L+8}, 0")
    A(f"v_mov_b32 v{L+9}, s26")
    A("s_cmp_lg_u32 s34, 0")
    A("s_cbranch_scc1 L_NOFLAG")
    A(f"v_min3_f32 v{L+3}, v{O+12}, v{O+28}, v{O+44}")
    A(f"v_add_f32 v{L+4}, v{O+12}, v{O+28}")
    A(f"v_add_f32 v{L+5}, v{O+44}, v{O+60}")
    A(f"v_min_f32 v{L+3}, v{L+3}, v{O+60}")
    A(f"v_add_f32 v{L+4}, v{L+4}, v{L+5}")
    A(f"v_cmp_nlt_f32 vcc, v{L+4}, v{L}")
    A(f"v_cmp_nge_f32 s[40:41], v{L+3}, v{L+1}")
    A("s_cmp_eq_u32 s3, 0")
    A("s_cselect_b32 s41, s41, 0")
    A("s_or_b32 s41, s41, vcc_hi")
    A("s_cbranch_scc0 L_NOFLAG")
    A(f"v_mov_b32 v{L+5}, {L2_FLAG}")
    A(f"v_mov_b32 v{L+6}, 1")
    A(f"ds_write_b32 v{L+5}, v{L+6}")
    A.label("L_NOFLAG")
    A(f"v_mov_b32 v{L+5}, {L2_FLAG}")
    A("s_waitcnt lgkmcnt(0)")
    A("s_barrier")
    stamp(A, 9)
    R = KVB
    A(f"ds_read_b32 v{L+6}, v{L+5}")
    for sl in range(3):
        for g in range(4):
            A(f"ds_read_b128 {vr(R+16*sl+4*g,4)}, v7 offset:{4096*sl+1024*g}")
    A("s_waitcnt lgkmcnt(12)")
    A(f"v_readfirstlane_b32 s26, v{L+6}")
    A("s_nop 3")
    A("s_cmp_gt_u32 s26, s34")
    A("s_cbranch_scc1 L_FALLBACK")

    def hint():
        A("s_mov_b64 exec, 1")
        A(f"buffer_store_dword v{L+9}, v{L+8}, s[8:11], s33 offen sc1")
        A("s_mov_b64 exec, -1")
    if OPT["hint"] == "b8":
        hint()
    OO = O + 48
    for sl in range(3):
        for g in range(4):
            A(f"s_waitcnt lgkmcnt({11-4*sl-g})")
            for p in range(2):
                A(f"v_pk_add_f32 {vr(OO+4*g+2*p,2)}, {vr(OO+4*g+2*p,2)}, {vr(R+16*sl+4*g+2*p,2)}")
    A(f"v_mov_b32 v{L}, v{OO+12}")
    A(f"v_mov_b32 v{L+1}, v{OO+12}")
    A("s_nop 1")
    A(f"v_permlane32_swap_b32 v{L}, v{L+1}")
    A("s_nop 0")
    A(f"v_rcp_f32 v{L+2}, v{L+1}")
    A("s_nop 0")
    A(f"v_mov_b32 v{L+3}, v{L+2}")
    for p in range(8):
        A(f"v_pk_mul_f32 {vr(OO+2*p,2)}, {vr(OO+2*p,2)}, {vr(L+2,2)}")
    for p in range(8):
        A(f"v_cvt_pk_bf16_f32 v{R+p}, v{OO+2*p}, v{OO+2*p+1}")
    A("s_mov_b64 exec, s[28:29]")
    A(f"v_mov_b32 v{R+6}, 0")
    A(f"v_mov_b32 v{R+7}, 0")
    A("s_mov_b64 exec, -1")
    for p in range(8):
        A(f"v_min_u32 v{R+p}, -2, v{R+p}")
        if p % 4 == 3:
            A(f"buffer_store_dwordx4 {vr(R+p-3,4)}, v3, s[8:11], s35 offen offset:{1024*(p//4)} sc1")
    if OPT["hint"] != "b8":
        hint()
    stamp(A, 10)
    A("s_branch L_END")

    A.label("L_FALLBACK")
    A("s_mov_b32 s34, 1")
    A("s_waitcnt vmcnt(0) lgkmcnt(0)")
    A("s_mov_b64 exec, s[28:29]")
    for i in range(4):
        A(f"v_mov_b32 v{Qreg(i,1)+2}, 0")
        A(f"v_mov_b32 v{Qreg(i,1)+3}, 0")
    A("s_mov_b64 exec, -1")
    M = T2
    for i in range(4):
        A(f"v_mov_b32 v{M+i}, 0xff800000")
    A("s_mov_b32 s31, 0")
    A.label("L_MAXLOOP")
    for s in range(2):
        A(f"buffer_load_dwordx4 {vr(K0T+4*s,4)}, v3, s[12:15], s31 offen offset:{1024*s} {LD}")
    A("s_waitcnt vmcnt(0)")
    for i in range(4):
        t = O + 16 * i
        mfma(A, t, K0T, Qreg(i, 0), None)
        mfma(A, t, K0T + 4, Qreg(i, 1), t)
    A("s_nop 7")
    A("s_nop 7")
    for i in range(4):
        t = O + 16 * i
        for k in range(0, 16, 2):
            A(f"v_max3_f32 v{M+i}, v{M+i}, v{t+k}, v{t+k+1}")
    A("s_add_u32 s31, s31, 4096")
    A("s_cmp_lt_u32 s31, 65536")
    A("s_cbranch_scc1 L_MAXLOOP")
    for i in range(4):
        A(f"v_mov_b32 v{M+4+i}, v{M+i}")
    A("s_nop 1")
    for i in range(4):
        A(f"v_permlane32_swap_b32 v{M+i}, v{M+4+i}")
    A("s_nop 1")
    for i in range(4):
        A(f"v_max_f32 v{M+i}, v{M+i}, v{M+4+i}")
    A(f"v_and_b32 v{M+8}, 31, v2")
    A(f"v_lshlrev_b32 v{M+8}, 2, v{M+8}")
    for i in range(4):
        A(f"s_add_u32 s26, s3, {i+1}")
        A("s_and_b32 s26, s26, 3")
        A("s_lshl_b32 s26, s26, 9")
        A(f"s_add_u32 s26, s26, {L2_MX}")
        A(f"v_add_u32 v{M+9+i}, s26, v{M+8}")
        A("s_lshl_b32 s27, s3, 7")
        A(f"v_add_u32 v{M+13}, s27, v{M+9+i}")
        A(f"ds_write_b32 v{M+13}, v{M+i}")
    A("s_waitcnt lgkmcnt(0)")
    A("s_barrier")
    for i in range(4):
        for w in range(4):
            A(f"ds_read_b32 v{O+4*i+w}, v{M+9+i} offset:{128*w}")
            if (4 * i + w) % 8 == 7:
                A("s_waitcnt lgkmcnt(0)")
    for i in range(4):
        t = O + 4 * i
        A(f"v_max3_f32 v{t}, v{t}, v{t+1}, v{t+2}")
        A(f"v_max_f32 v{t}, v{t}, v{t+3}")
        A(f"v_sub_f32 v{t}, 0, v{t}")
        A(f"v_cvt_pk_bf16_f32 v{t+1}, v{t}, 0")
        A(f"v_lshlrev_b32 v{t+2}, 16, v{t+1}")
        A(f"v_sub_f32 v{t}, v{t}, v{t+2}")
        A(f"v_cvt_pk_bf16_f32 v{t+2}, v{t}, 0")
        A(f"v_lshlrev_b32 v{t+3}, 16, v{t+2}")
        A(f"v_sub_f32 v{t}, v{t}, v{t+3}")
        A(f"v_or_b32 v{t+1}, v{t+1}, v{t+3}")
        A(f"v_cvt_pk_bf16_f32 v{t+2}, v{t}, 0")
    A("s_mov_b64 exec, s[28:29]")
    for i in range(4):
        t = O + 4 * i
        A(f"v_mov_b32 v{Qreg(i,1)+2}, v{t+1}")
        A(f"v_mov_b32 v{Qreg(i,1)+3}, v{t+2}")
    A("s_mov_b64 exec, -1")
    kv_prologue_loads()
    zero_state()
    A(f"v_mov_b32 v{K0T}, {L_FLAG}")
    A("s_branch L_MAIN")

    A.label("L_END")
    stamp_flush(A)
    A.label("L_EXIT")
    A("s_endpgm")


HEADER = """; MHA block (B=1, S=2048, D=448, H=16) for gfx950, one persistent launch:
;   P1 QKV projection -> (counters) -> P2 attention -> (hint + marker check) -> P3 output projection.
"""


def main(out):
    A = Asm()
    A.raw(HEADER.rstrip())
    A.raw(f"; @launch grid=(256,1,1) block=(512,1,1) lds={LDS_TOTAL}")
    A.raw('.amdgcn_target "amdgcn-amd-amdhsa--gfx950"')
    A.raw(".text")
    gen(A)
    A.raw('.section .rodata,"a"')
    A.raw(f""".p2align 6
.amdhsa_kernel {NAME}
  .amdhsa_next_free_vgpr 256
  .amdhsa_next_free_sgpr {102 if STAMP else 64}
  .amdhsa_accum_offset 256
  .amdhsa_group_segment_fixed_size 0
  .amdhsa_kernarg_size 48
  .amdhsa_user_sgpr_count 2
  .amdhsa_user_sgpr_kernarg_segment_ptr 1
  .amdhsa_system_sgpr_workgroup_id_x 1
.end_amdhsa_kernel""")
    open(out, "w").write(A.text())


if __name__ == "__main__":
    out = sys.argv[1] if len(sys.argv) > 1 else "standalone__mha_block__prompt.s"
    for a in sys.argv[2:]:
        if a == "stamp":
            STAMP = True
        elif a == "dbgstamp":
            STAMP = True
            DBGSTAMP = True
        elif "=" in a:
            k, v = a.split("=", 1)
            assert k in OPT, k
            OPT[k] = v
    main(out)
```

```python
import sys, math, struct

S_TOK, D, H, DH = 2048, 448, 16, 28
WQF_OFF = 0
KV_OFF = 2 << 20
OF_OFF = 6 << 20
C1_OFF = 8 << 20
C2_OFF = (8 << 20) + 65536
EP_OFF = (8 << 20) + 196608 + 1024
C3_OFF = (8 << 20) + 196608 + 4096
CA_OFF = (8 << 20) + 262144
WS_USED = (8 << 20) + 262144 + 131072
TAGSTEP = 0x9E3779B8
QSCALE = math.log2(math.e) / math.sqrt(DH)
SPIN_MAX = 40000
KVB_OF_HEAD = [0, 1, 14, 2, 3, 4, 5, 6, 7, 8, 9, 10, 11, 15, 12, 13]
KVB_LO = sum(v << (4 * i) for i, v in enumerate(KVB_OF_HEAD[:8]))
KVB_HI = sum(v << (4 * i) for i, v in enumerate(KVB_OF_HEAD[8:]))
INIT_HEAD = 2

OPT = dict(ldsc="sc1", ldq="", outsc="", stgprio="3", stgsleep="3", stgdelay="32", pollsleep="4", hint="b8", plan="e", wqp="5", asig="9", achk="13", unroll="1", rpkwait="1", bsleep="8", bdelay="16")


def f32bits(x):
    return struct.unpack("<I", struct.pack("<f", x))[0]


class Asm:
    def __init__(self):
        self.l = []

    def __call__(self, s):
        self.l.append("  " + s)

    def label(self, s):
        self.l.append(s + ":")

    def raw(self, s):
        self.l.append(s)

    def text(self):
        return "\n".join(self.l) + "\n"


def vr(a, n):
    return f"v[{a}:{a+n-1}]"


STAMP = False
STAMP_OFF = 16 << 20
NSTAMP = 16


def stamp_init(A):
    if not STAMP:
        return
    for k in range(NSTAMP):
        A(f"s_mov_b32 s{64+2*k}, 0")
    A("s_memrealtime s[64:65]")


def stamp(A, slot):
    if STAMP:
        A(f"s_memrealtime s[{64+2*slot}:{65+2*slot}]")


def cstamp(A, slot):
    if STAMP:
        A(f"s_memtime s[{64+2*slot}:{65+2*slot}]")


DBGSTAMP = False


def stamp_flush(A):
    if not STAMP:
        return
    A("s_waitcnt vmcnt(0)")
    A(f"s_memrealtime s[{64+2*(NSTAMP-1)}:{65+2*(NSTAMP-1)}]")
    A("s_waitcnt lgkmcnt(0)")
    if DBGSTAMP:
        A("s_and_b32 s100, s3, 3")
        A("s_cmp_lg_u32 s100, 0")
        A("s_cbranch_scc1 L_EXIT")
        A("s_mov_b32 s96, s4"); A("s_mov_b32 s97, s5"); A("s_mov_b32 s98, 256"); A("s_mov_b32 s99, 0x00020000")
        A("s_mov_b64 exec, 1")
        A("v_mov_b32 v0, 0")
        A("s_not_b32 s100, s64")
        A("v_mov_b32 v1, s100")
        A("buffer_atomic_umax v1, v0, s[96:99], 0 offen offset:4 sc1")
        A("s_cmp_lt_u32 s3, 4")
        A("s_cbranch_scc0 L_DBGL")
        for w, sl in ((2, 0), (3, 1), (4, 3), (5, 5), (6, 7), (7, 8), (8, 10)):
            A(f"v_mov_b32 v1, s{64+2*sl}")
            A(f"buffer_atomic_umax v1, v0, s[96:99], 0 offen offset:{4*w} sc1")
            A("s_nop 1")
        A("s_branch L_EXIT")
        A.label("L_DBGL")
        for w, sl in ((9, 4), (10, 1), (11, 2), (12, 5), (13, 8), (14, 15)):
            A(f"v_mov_b32 v1, s{64+2*sl}")
            A(f"buffer_atomic_umax v1, v0, s[96:99], 0 offen offset:{4*w} sc1")
            A("s_nop 1")
        return
    A(f"s_add_u32 s96, s6, {STAMP_OFF}")
    A("s_addc_u32 s97, s7, 0")
    A("s_mov_b32 s98, 0x100000")
    A("s_mov_b32 s99, 0x00020000")
    A("s_lshl_b32 s100, s2, 10")
    A("s_lshl_b32 s101, s3, 6")
    A("s_add_u32 s100, s100, s101")
    A("s_mov_b64 exec, 1")
    A("v_mov_b32 v0, 0")
    for k in range(NSTAMP):
        A(f"v_mov_b32 v1, s{64+2*k}")
        A(f"buffer_store_dword v1, v0, s[96:99], s100 offen offset:{4*k}")
        A("s_nop 1")


def mfma(A, d, a, b, c):
    cs = "0" if c is None else vr(c, 16)
    A(f"v_mfma_f32_32x32x16_bf16 {vr(d,16)}, {vr(a,4)}, {vr(b,4)}, {cs}")


def epoch_load(A):
    A(f"s_add_u32 s56, s6, {EP_OFF}")
    A("s_addc_u32 s57, s7, 0")
    A("s_load_dword s63, s[56:57], 0")


def srd(A, d, lo, hi, size):
    A(f"s_mov_b32 s{d}, {lo}")
    A(f"s_mov_b32 s{d+1}, {hi}")
    A(f"s_mov_b32 s{d+2}, {size}")
    A(f"s_mov_b32 s{d+3}, 0x00020000")


L1_X = 0
L1_R = 114688
L_QX = L1_R + 4 * 8192
L_FLAG = 155648
L2_MX = L_FLAG + 256
L3_STG = 0
L2_CMB = 65536
L3_RED = 0
LDS_TOTAL = 163840
L2_FLAG = L_FLAG


def wq_base(tau):
    return L1_R + 2 * 8192 + tau * 4096 if tau < 4 else L1_R + (tau - 4) * 4096


STEPS = [("A", [t]) for t in range(7)] + [("B", [0, 1, 2, 3]), ("Q", [0, 1, 2, 3, 4, 5, 6]), ("B", [4, 5, 6])]
NSTEP = len(STEPS)
PLAN = [[0, 1, 2, 3], [4], [5], [6], [7], [], [], [], [8, 9], []]

NAME = "standalone__mha_block__prompt_kernel"


def gen(A):
    LD = OPT["ldsc"]
    A.raw(f".globl {NAME}")
    A.raw(".p2align 8")
    A.raw(f".type {NAME},@function")
    A.label(NAME)
    A("s_cmp_ge_u32 s2, 256")
    A("s_cbranch_scc1 L_EXIT")
    stamp_init(A)
    A("s_load_dwordx4 s[16:19], s[0:1], 0")
    A("s_load_dwordx4 s[4:7], s[0:1], 32")
    A("s_load_dwordx4 s[52:55], s[0:1], 16")
    A("v_lshrrev_b32 v1, 6, v0")
    A("v_and_b32 v2, 63, v0")
    A("v_readfirstlane_b32 s3, v1")
    A("s_and_b32 s24, s2, 3")
    A("s_lshl_b32 s24, s24, 2")
    A("s_bfe_u32 s25, s2, 0x20003")
    A("s_add_u32 s24, s24, s25")
    A("s_bfe_u32 s25, s2, 0x10002")
    A("s_lshl_b32 s25, s25, 3")
    A("s_lshr_b32 s20, s2, 5")
    A("s_add_u32 s25, s25, s20")
    A("s_cmp_ge_u32 s24, 8")
    A(f"s_mov_b32 s20, {KVB_LO:#x}")
    A(f"s_cselect_b32 s20, {KVB_HI:#x}, s20")
    A("s_and_b32 s21, s24, 7")
    A("s_lshl_b32 s21, s21, 2")
    A("s_lshr_b32 s22, s20, s21")
    A("s_and_b32 s22, s22, 15")
    A("s_and_b32 s39, s24, 3")
    A("s_lshl_b32 s39, s39, 1")
    A("s_add_u32 s39, s39, s25")
    A("s_mul_i32 s20, s39, 37")
    A("s_lshr_b32 s20, s20, 8")
    A("s_mul_i32 s20, s20, 7")
    A("s_sub_u32 s39, s39, s20")
    A("s_cmp_lt_u32 s3, 4")
    A("s_cbranch_scc1 L_CWAVE")

    A("s_setprio 3")
    A("s_sub_u32 s26, s3, 4")
    A("v_lshrrev_b32 v3, 3, v2")
    A("v_and_b32 v4, 7, v2")
    A("v_lshrrev_b32 v5, 1, v3")
    A("s_and_b32 s27, s26, 1")
    A("s_lshl_b32 s27, s27, 2")
    A("v_add_u32 v7, s27, v5")
    A("v_and_b32 v7, 7, v7")
    A("v_xor_b32 v7, v4, v7")
    A("v_and_b32 v5, 1, v5")
    A("v_lshlrev_b32 v5, 2, v5")
    A("v_xor_b32 v5, v4, v5")
    A("v_mul_u32_u24 v6, 2688, v3")
    A("v_lshl_add_u32 v6, v5, 4, v6")
    A("v_mul_u32_u24 v3, 896, v3")
    A("v_lshl_add_u32 v3, v7, 4, v3")
    A("v_lshlrev_b32 v9, 4, v2")
    A("s_lshl_b32 s36, s25, 7")
    A("s_lshl_b32 s27, s26, 3")
    A("s_add_u32 s36, s36, s27")
    A("s_mul_i32 s36, s36, 896")
    A(f"s_mul_i32 s44, s26, {8*2688}")
    A("s_min_u32 s27, s22, 13")
    A("s_lshl_b32 s27, s27, 7")
    A("s_add_u32 s44, s44, s27")
    A("s_add_u32 s44, s44, 896")
    A(f"s_mul_i32 s45, s24, {28*1024}")
    A("s_lshl_b32 s27, s26, 10")
    A("s_add_u32 s45, s45, s27")
    A("s_sub_u32 s59, s22, 14")
    A("s_lshl_b32 s59, s59, 4")
    A("s_add_u32 s59, s59, s25")
    A("s_and_b32 s59, s59, 31")
    A("s_mov_b32 s37, s59")
    A("s_min_u32 s59, s59, 27")
    A("s_lshl_b32 s59, s59, 4")
    A("s_add_u32 s59, s59, s26")
    A("s_mul_i32 s59, s59, 2688")
    A("s_lshl_b32 s38, s26, 10")
    A("s_waitcnt lgkmcnt(0)")
    epoch_load(A)
    srd(A, 28, "s16", "s17", S_TOK * D * 2)
    srd(A, 32, "s18", "s19", D * 3 * D * 2)
    srd(A, 8, "s6", "s7", WS_USED)

    def chunk_of(tau):
        A(f"s_add_u32 s40, s39, {tau}")
        A("s_cmp_ge_u32 s40, 7")
        A("s_cselect_b32 s41, 7, 0")
        A("s_sub_u32 s40, s40, s41")

    def x_loads(tau, rts):
        A("s_lshl_b32 s41, s40, 7")
        A("s_add_u32 s41, s41, s36")
        for rt in rts:
            A(f"s_add_u32 s42, s38, {L1_X + tau * 16384 + rt * 4096}")
            A("s_mov_b32 m0, s42")
            A(f"s_add_u32 s43, s41, {rt * 32 * 896}")
            A("buffer_load_dwordx4 v3, s[28:31], s43 offen lds")
        return len(rts)

    def step_loads(k):
        kind, taus = STEPS[k]
        n = 0
        for tau in taus:
            chunk_of(tau)
            if kind == "A":
                A(f"s_mul_i32 s41, s40, {64*2688}")
                A("s_add_u32 s41, s41, s44")
                for i in range(2):
                    A(f"s_add_u32 s42, s38, {L1_R + (tau % 5) * 8192 + i * 4096}")
                    A("s_mov_b32 m0, s42")
                    A(f"s_add_u32 s43, s41, {i * 32 * 2688}")
                    A("buffer_load_dwordx4 v6, s[32:35], s43 offen lds")
                    n += 1
            if kind == "Q":
                A("s_lshl_b32 s41, s40, 12")
                A(f"s_add_u32 s42, s38, {wq_base(tau)}")
                A("s_mov_b32 m0, s42")
                A("s_add_u32 s43, s41, s45")
                A("buffer_load_dwordx4 v9, s[8:11], s43 offen sc1 lds")
                n += 1
            else:
                n += x_loads(tau, (0, 1) if kind == "A" else (2, 3))
        return n

    WF = 16
    OFR = 144
    ACC3 = 176

    def l_setup():
        a, b, c, d, e, hi = 16, 17, 18, 19, 20, 21
        A("s_lshr_b32 s20, s2, 2")
        A("s_and_b32 s21, s2, 3")
        A("s_waitcnt lgkmcnt(0)")
        A(f"s_add_u32 s63, s63, {TAGSTEP:#x}")
        A(f"v_bfe_u32 v{a}, v2, 5, 1")
        A(f"v_bfe_u32 v{b}, v2, 4, 1")
        A(f"v_and_b32 v{c}, 15, v2")
        A("s_mul_i32 s27, s24, 28")
        A(f"v_mul_u32_u24 v{b}, 27, v{b}")
        A(f"v_add_u32 v{b}, s27, v{b}")
        A(f"v_lshrrev_b32 v{b}, 6, v{b}")
        A(f"v_mul_u32_u24 v{a}, 7, v{a}")
        A(f"v_add_u32 v{a}, v{a}, v{b}")
        A(f"v_lshl_add_u32 v{a}, v{a}, 4, v{c}")
        A(f"v_lshlrev_b32 v249, 8, v{a}")
        A(f"v_and_b32 v{b}, 31, v2")
        A(f"v_add_u32 v{b}, 224, v{b}")
        A(f"v_lshlrev_b32 v11, 8, v{b}")
        A("v_mov_b32 v10, 1")
        A("v_mov_b32 v12, s63")
        A("v_and_b32 v14, 3, v2")
        A("v_lshlrev_b32 v14, 7, v14")
        A("v_and_b32 v15, 7, v2")
        A("v_lshlrev_b32 v15, 9, v15")
        A("s_lshl_b32 s49, s26, 7")
        A(f"s_add_u32 s49, s49, {C3_OFF}")
        A("s_lshr_b32 s27, s24, 2")
        A("s_lshl_b32 s27, s27, 12")
        A("s_add_u32 s49, s49, s27")
        A("s_lshl_b32 s51, s22, 4")
        A("s_add_u32 s51, s51, s25")
        A("s_lshl_b32 s51, s51, 8")
        A(f"s_add_u32 s51, s51, {C1_OFF}")
        A(f"v_lshrrev_b32 v{a}, 4, v2")
        A(f"v_and_b32 v{b}, 15, v2")
        A(f"v_lshlrev_b32 v{c}, 2, v{a}")
        A(f"v_xor_b32 v{b}, v{b}, v{c}")
        A(f"v_mul_u32_u24 v{a}, 896, v{a}")
        A(f"v_lshl_add_u32 v{a}, v{b}, 4, v{a}")
        A("s_lshl_b32 s27, s21, 4")
        A(f"v_add_u32 v{b}, s27, v{b}")
        A(f"v_mov_b32 v{c}, 0x40000000")
        A(f"v_cmp_le_u32 vcc, 56, v{b}")
        A("s_nop 1")
        A(f"v_cndmask_b32 v251, v{a}, v{c}, vcc")
        A("s_mul_i32 s46, s26, 15360")
        A(f"s_add_u32 s46, s46, {L3_STG}")
        A(f"v_and_b32 v{a}, 15, v2")
        A(f"v_lshrrev_b32 v{b}, 2, v{a}")
        A(f"v_bfe_u32 v{c}, v2, 4, 1")
        A(f"v_lshlrev_b32 v{c}, 1, v{c}")
        A(f"v_bfe_u32 v{d}, v{a}, 1, 1")
        A(f"v_add_u32 v{c}, v{c}, v{d}")
        A(f"v_lshrrev_b32 v{hi}, 5, v2")
        A(f"v_lshl_add_u32 v{d}, v{hi}, 2, v{b}")
        A(f"v_lshlrev_b32 v{e}, 8, v{d}")
        A(f"v_lshl_add_u32 v{e}, v{c}, 4, v{e}")
        A(f"v_and_b32 v{d}, 1, v{a}")
        A(f"v_lshl_add_u32 v{e}, v{d}, 3, v{e}")
        A(f"v_add_u32 v{e}, s46, v{e}")
        for i in range(4):
            A(f"s_add_u32 s27, s26, {i}")
            A("s_and_b32 s27, s27, 3")
            A(f"v_xor_b32 v{d}, s27, v{b}")
            A(f"v_lshl_add_u32 v{252+i}, v{d}, 6, v{e}")
        A("v_lshlrev_b32 v240, 4, v2")
        for i in range(1, 4):
            A(f"s_add_u32 s27, s26, {i}")
            A("s_and_b32 s27, s27, 3")
            A("s_mul_i32 s27, s27, 12288")
            A(f"s_add_u32 s27, s27, {L3_RED + (i-1)*4096}")
            A(f"v_add_u32 v{240+i}, s27, v240")
        A("s_mul_i32 s27, s26, 12288")
        A(f"s_add_u32 s27, s27, {L3_RED}")
        A("v_add_u32 v244, s27, v240")
        A("v_add_u32 v245, 4096, v240")
        A("s_lshl_b32 s46, s20, 15")
        A("s_lshl_b32 s27, s26, 13")
        A("s_add_u32 s46, s46, s27")
        A(f"s_add_u32 s46, s46, {OF_OFF}")
        A("s_lshl_b32 s47, s20, 2")
        A("s_add_u32 s47, s47, s26")
        A("s_lshl_b32 s47, s47, 9")
        A(f"s_add_u32 s47, s47, {C2_OFF}")
        A("v_and_b32 v246, 31, v2")
        A("v_mul_u32_u24 v246, 896, v246")
        A(f"v_lshl_add_u32 v246, v{hi}, 4, v246")
        A(f"s_mul_i32 s48, s20, {32*896}")
        A("s_lshl_b32 s27, s21, 8")
        A("s_add_u32 s48, s48, s27")
        A("s_lshl_b32 s27, s26, 6")
        A("s_add_u32 s48, s48, s27")
        A(f"v_mov_b32 v247, {L_FLAG}")
        A("v_mov_b32 v248, 0")
        for r in range(64):
            A(f"v_mov_b32 v{ACC3+r}, 0")

    def wq_poll_issue():
        A("s_mov_b64 exec, 0x7f")
        A("buffer_load_dword v5, v15, s[8:11], s49 offen sc1")
        A("s_mov_b64 exec, -1")

    stamp(A, 4)
    A("s_cmp_ge_u32 s22, 14")
    A("s_cbranch_scc1 L_LRPK")
    order = []
    for k in range(NSTEP):
        if k == int(OPT["wqp"]):
            wq_poll_issue()
            order.append((7, 1))
        if k == 7:
            A.label("L_LJOIN")
        for st in PLAN[k]:
            if st == 8:
                A("s_mov_b32 s27, 0")
                A.label("L_WQPOLL")
                A("v_cmp_ne_u32 vcc, s63, v5")
                A("s_add_u32 s27, s27, 1")
                A(f"s_cmp_gt_u32 s27, {SPIN_MAX}")
                A("s_cbranch_scc1 L_WQOK")
                A("s_and_b32 s40, vcc_lo, 0x7f")
                A("s_cbranch_scc0 L_WQOK")
                wq_poll_issue()
                A("s_waitcnt vmcnt(0)")
                A("s_branch L_WQPOLL")
                A.label("L_WQOK")
                stamp(A, 10)
            order.append((st, step_loads(st)))
        if k == 0:
            l_setup()
        left = sum(c for key, c in order if key > k)
        A(f"s_waitcnt vmcnt({left})")
        A("s_barrier")
        if k == 0:
            stamp(A, 1)
        if k == 6:
            stamp(A, 2)
        if k == 8:
            stamp(A, 3)
    A("s_branch L_LP1DONE")
    A.label("L_LRPK")
    for j in range(4):
        A(f"s_add_u32 s42, s38, {L1_R + j * 4096}")
        A("s_mov_b32 m0, s42")
        A(f"s_add_u32 s43, s59, {4 * j * 2688}")
        A("buffer_load_dwordx4 v9, s[32:35], s43 offen lds")
    l_setup()
    A("s_waitcnt vmcnt(0)")
    A("s_barrier")
    A("s_barrier")
    for tau in range(7):
        chunk_of(tau)
        x_loads(tau, (0, 1, 2, 3) if tau < 4 else (0, 1))
    wq_poll_issue()
    A("s_branch L_LJOIN")
    A.label("L_LP1DONE")

    def poll_flags(name, areg):
        A("s_mov_b32 s27, 0")
        A(f"s_mov_b32 s41, {C1_OFF + 128}")
        A.label(f"L_POLL{name}")
        A(f"buffer_load_dword v4, v{areg}, s[8:11], s41 offen sc1")
        A("s_waitcnt vmcnt(0)")
        A("v_cmp_ne_u32 vcc, s63, v4")
        A("s_add_u32 s27, s27, 1")
        A(f"s_cmp_gt_u32 s27, {SPIN_MAX}")
        A(f"s_cbranch_scc1 L_POUT{name}")
        A("s_cmp_lg_u64 vcc, 0")
        A(f"s_cbranch_scc0 L_POUT{name}")
        A(f"s_sleep {OPT['bsleep']}")
        A(f"s_branch L_POLL{name}")
        A.label(f"L_POUT{name}")
    stamp(A, 7)
    A("s_barrier")
    A("s_cmp_lg_u32 s26, 3")
    A("s_cbranch_scc1 L_NOPUBB")
    A("s_mov_b64 exec, 1")
    A("buffer_store_dword v12, v248, s[8:11], s51 offen offset:128 sc1")
    A("s_mov_b64 exec, -1")
    A.label("L_NOPUBB")
    A("s_cmp_lg_u32 s26, 0")
    A("s_cbranch_scc1 L_NOPOLLB")
    A(f"s_sleep {OPT['bdelay']}")
    poll_flags("B", 249)
    A("ds_write_b32 v247, v10 offset:8")
    A("s_waitcnt lgkmcnt(0)")
    A.label("L_NOPOLLB")
    stamp(A, 9)

    srd(A, 28, "s52", "s53", D * D * 2)
    srd(A, 32, "s54", "s55", S_TOK * D * 2)
    A(f"s_mul_i32 s36, s26, {112*896}")
    A("s_lshl_b32 s27, s21, 8")
    A("s_add_u32 s36, s36, s27")
    A("s_mul_i32 s38, s26, 15360")
    A(f"s_add_u32 s38, s38, {L3_STG}")
    A("s_mov_b32 s27, 0")
    A.label("L_STGWAIT")
    A("s_sleep 8")
    A("ds_read_b32 v250, v247 offset:8")
    A("s_waitcnt lgkmcnt(0)")
    A("v_readfirstlane_b32 s40, v250")
    A("s_add_u32 s27, s27, 1")
    A(f"s_cmp_gt_u32 s27, {SPIN_MAX*8}")
    A("s_cbranch_scc1 L_STGGO")
    A("s_cmp_eq_u32 s40, 0")
    A("s_cbranch_scc1 L_STGWAIT")
    A.label("L_STGGO")
    A(f"s_setprio {OPT['stgprio']}")
    A(f"s_sleep {OPT['stgdelay']}")
    for rho in range(2):
        for i in range(15):
            A(f"s_add_u32 s42, s38, {i*1024}")
            A("s_mov_b32 m0, s42")
            A(f"s_add_u32 s43, s36, {(56*rho + 4*i)*896}")
            A("buffer_load_dwordx4 v251, s[28:31], s43 offen lds")
            if OPT["stgsleep"]:
                A(f"s_sleep {OPT['stgsleep']}")
        A("s_waitcnt vmcnt(0)")
        n = 0
        for hh in range(2):
            for s in range(2):
                for i in range(4):
                    for rd in range(2):
                        j = (2 * rho + hh) * 2 + s
                        A(f"ds_read_b64_tr_b16 {vr(WF+16*j+4*i+2*rd,2)}, v{252+i} offset:{(28*hh+16*s+8*rd)*256}")
                        n += 1
                        if n % 8 == 0:
                            A("s_waitcnt lgkmcnt(4)")
        A("s_waitcnt lgkmcnt(0)")
    stamp(A, 5)
    A("s_setprio 3")
    A("s_cmp_lg_u32 s2, 0")
    A("s_cbranch_scc1 L_NOEP1")
    A("s_cmp_lg_u32 s26, 1")
    A("s_cbranch_scc1 L_NOEP1")
    poll_flags("N", 11)
    A.label("L_NOEP1")
    A("s_mov_b32 s27, 0")
    A.label("L_C2POLL")
    A("buffer_load_dword v4, v14, s[8:11], s47 offen sc1")
    A("s_waitcnt vmcnt(0)")
    A("v_subrev_u32 v4, s63, v4")
    A("v_cmp_lt_u32 vcc, 1, v4")
    A("s_add_u32 s27, s27, 1")
    A(f"s_cmp_gt_u32 s27, {SPIN_MAX}")
    A("s_cbranch_scc1 L_C2OUT")
    A("s_cmp_lg_u64 vcc, 0")
    A("s_cbranch_scc1 L_C2POLL")
    A.label("L_C2OUT")
    A("s_barrier")
    A("s_mov_b64 exec, 15")
    A("buffer_load_dword v4, v14, s[8:11], s47 offen sc1")
    A("s_mov_b64 exec, -1")
    A("ds_read_b32 v13, v247")
    A("s_waitcnt lgkmcnt(0)")
    A("v_readfirstlane_b32 s27, v13")
    A("s_nop 3")
    A("s_cmp_eq_u32 s27, 0")
    A("s_cbranch_scc1 L_NOFB")
    A("s_barrier")
    A("s_barrier")
    A.label("L_NOFB")
    stamp(A, 6)
    A("s_mov_b32 s27, 0")
    A("s_mov_b32 s41, 15")
    A("s_mov_b32 s43, 0")
    A.label("L_OPOLL")
    A("s_add_u32 s27, s27, 1")
    A(f"s_cmp_gt_u32 s27, {SPIN_MAX}")
    A("s_cselect_b32 s42, 0, -1")
    A("s_mov_b32 s49, 0")
    A("s_waitcnt vmcnt(0)")
    A("v_cmp_ne_u32 vcc, s63, v4")
    A("s_nop 1")
    A("s_and_b32 s50, vcc_lo, 15")
    for hh in range(4):
        o = OFR + 8 * hh
        A(f"s_bitcmp0_b32 s43, {hh}")
        A(f"s_cbranch_scc1 L_OC{hh}")
        A(f"v_max3_u32 v13, v{o}, v{o+1}, v{o+2}")
        A(f"v_max3_u32 v15, v{o+3}, v{o+4}, v{o+5}")
        A(f"v_max3_u32 v13, v13, v{o+6}, v{o+7}")
        A("v_max_u32 v13, v13, v15")
        A("v_cmp_eq_u32 vcc, -1, v13")
        A("s_nop 1")
        A("s_or_b32 s40, vcc_lo, vcc_hi")
        A("s_and_b32 s40, s40, s42")
        A(f"s_cbranch_scc1 L_OC{hh}")
        A(f"s_bitset0_b32 s41, {hh}")
        A(f"s_bitset1_b32 s49, {hh}")
        A.label(f"L_OC{hh}")
    A("s_orn2_b32 s40, s50, s42")
    A("s_and_b32 s43, s40, s41")
    for hh in range(4):
        A(f"s_bitcmp0_b32 s43, {hh}")
        A(f"s_cbranch_scc1 L_OI{hh}")
        for sx in range(2):
            j = 2 * hh + sx
            A(f"buffer_load_dwordx4 {vr(OFR+4*j,4)}, v{240 if j < 4 else 245}, s[8:11], s46 offen offset:{(j%4)*1024} sc1")
        A.label(f"L_OI{hh}")
    A("s_cmp_eq_u32 s43, s41")
    A("s_cbranch_scc1 L_ONOPOLL")
    A("s_mov_b64 exec, 15")
    A("buffer_load_dword v4, v14, s[8:11], s47 offen sc1")
    A("s_mov_b64 exec, -1")
    A.label("L_ONOPOLL")
    for hh in range(4):
        A(f"s_bitcmp0_b32 s49, {hh}")
        A(f"s_cbranch_scc1 L_OM{hh}")
        for sx in range(2):
            j = 2 * hh + sx
            for i in range(4):
                mfma(A, ACC3 + 16 * i, WF + 16 * j + 4 * i, OFR + 4 * j, ACC3 + 16 * i)
        A.label(f"L_OM{hh}")
    A("s_cmp_lg_u32 s41, 0")
    A("s_cbranch_scc1 L_OPOLL")
    stamp(A, 8)
    A("s_nop 7")
    A("s_nop 3")
    for i in (1, 2, 3):
        for g in range(4):
            A(f"ds_write_b128 v{240+i}, {vr(ACC3+16*i+4*g,4)} offset:{1024*g}")
    A("s_waitcnt lgkmcnt(0)")
    A("s_barrier")
    A("s_cmp_lg_u32 s2, 0")
    A("s_cbranch_scc1 L_NOEP2")
    A("s_cmp_lg_u32 s26, 1")
    A("s_cbranch_scc1 L_NOEP2")
    A("v_mov_b32 v4, s63")
    A(f"s_mov_b32 s27, {EP_OFF}")
    A("s_mov_b64 exec, 1")
    A("buffer_store_dword v4, v248, s[8:11], s27 offen sc1")
    A("s_mov_b64 exec, -1")
    A.label("L_NOEP2")
    R = WF
    for sl in range(3):
        for g in range(4):
            A(f"ds_read_b128 {vr(R+16*sl+4*g,4)}, v244 offset:{4096*sl+1024*g}")
    for sl in range(3):
        for g in range(4):
            A(f"s_waitcnt lgkmcnt({11-4*sl-g})")
            for p in range(2):
                A(f"v_pk_add_f32 {vr(ACC3+4*g+2*p,2)}, {vr(ACC3+4*g+2*p,2)}, {vr(R+16*sl+4*g+2*p,2)}")
    for p in range(8):
        A(f"v_cvt_pk_bf16_f32 v{OFR+p}, v{ACC3+2*p}, v{ACC3+2*p+1}")
    A("s_lshl_b32 s27, s21, 2")
    A("s_add_u32 s27, s27, s26")
    A("s_cmp_ge_u32 s27, 14")
    A("s_cbranch_scc1 L_END")
    for g in (0, 2):
        b = OFR + 2 * g
        A(f"v_permlane32_swap_b32 v{b}, v{b+2}")
        A(f"v_permlane32_swap_b32 v{b+1}, v{b+3}")
    for g in (0, 2):
        b = OFR + 2 * g
        A(f"buffer_store_dwordx4 {vr(b,4)}, v246, s[32:35], s48 offen offset:{16*g} {OPT['outsc']}")
    A("s_branch L_END")

    A.label("L_CWAVE")
    A("s_lshl_b32 s26, s25, 2")
    A("s_add_u32 s26, s26, s3")
    A("s_lshl_b32 s35, s26, 4")
    A("s_add_u32 s35, s35, s24")
    A("s_lshl_b32 s35, s35, 11")
    A(f"s_add_u32 s35, s35, {OF_OFF}")
    A("s_lshl_b32 s33, s26, 4")
    A("s_add_u32 s33, s33, s24")
    A("s_lshl_b32 s33, s33, 7")
    A(f"s_add_u32 s33, s33, {C2_OFF}")
    A("s_waitcnt lgkmcnt(0)")
    epoch_load(A)
    srd(A, 8, "s6", "s7", WS_USED)

    Q = 8
    O = 40
    SB = [104, 120]
    P = 136
    KVB = 144
    K0T = 208
    T2, T3 = 216, 232
    VOFF = 248

    def Kreg(b, s): return KVB + 16 * b + 4 * s
    def Vreg(b, t): return KVB + 16 * b + 8 + 4 * t
    def Qreg(i, s): return Q + 8 * i + 4 * s

    ACC = 16
    XF = 64
    EO = 96
    EA = 128
    XL, XH = 8, 132
    WR = 144
    A(f"v_mov_b32 v5, {L_FLAG}")
    for r in range(4):
        A(f"v_mov_b32 v{64+r}, 0")
    A("ds_write_b128 v5, v[64:67]")
    A("s_and_b32 s27, s3, 1")
    A("s_lshr_b32 s28, s3, 1")
    A("s_lshl_b32 s26, s22, 1")
    A("s_add_u32 s26, s26, s27")
    A("s_lshr_b32 s60, s25, 2")
    A("s_lshl_b32 s60, s60, 4")
    A("s_and_b32 s29, s25, 3")
    A("s_lshl_b32 s29, s29, 1")
    A("s_add_u32 s60, s60, s29")
    A("s_add_u32 s60, s60, s28")
    A("s_lshl_b32 s60, s60, 12")
    A(f"s_add_u32 s60, s60, {KV_OFF}")
    A("s_add_u32 s61, s60, 32768")
    A("s_lshl_b32 s62, s26, 4")
    A("s_add_u32 s62, s62, s25")
    A("s_lshl_b32 s62, s62, 1")
    A("s_add_u32 s62, s62, s28")
    A("s_lshl_b32 s62, s62, 7")
    A(f"s_add_u32 s62, s62, {CA_OFF}")
    A("v_and_b32 v3, 31, v2")
    A("v_lshrrev_b32 v4, 5, v2")
    A("v_bfe_u32 v5, v3, 1, 3")
    A("s_lshl_b32 s29, s28, 12")
    A("s_lshl_b32 s40, s3, 12")
    XQL, XQH = 52, 56
    ACCQ = 112
    WQF = 16
    PL = 143
    for ks in range(4):
        A(f"v_add_u32 v6, {2*ks}, v4")
        A("v_xor_b32 v6, v6, v5")
        A("v_lshlrev_b32 v6, 4, v6")
        A("v_lshl_add_u32 v6, v3, 7, v6")
        A(f"v_add_u32 v{XL+ks}, s29, v6")
        A(f"v_add_u32 v{XH+ks}, 0x10000, v{XL+ks}")
        A(f"v_add_u32 v{XQL+ks}, s40, v6")
        A(f"v_add_u32 v{XQH+ks}, 0x10000, v{XQL+ks}")
    A("v_and_b32 v5, 15, v2")
    A("v_lshrrev_b32 v6, 2, v5")
    A("v_bfe_u32 v7, v2, 4, 1")
    A("v_lshlrev_b32 v7, 1, v7")
    A("v_bfe_u32 v13, v5, 1, 1")
    A("v_add_u32 v7, v7, v13")
    A("s_lshl_b32 s29, s27, 2")
    A("v_add_u32 v7, s29, v7")
    A("v_bfe_u32 v13, v5, 3, 1")
    A("v_lshlrev_b32 v13, 2, v13")
    A("v_xor_b32 v7, v7, v13")
    A("v_lshl_add_u32 v6, v4, 3, v6")
    A("v_lshlrev_b32 v12, 7, v6")
    A("v_lshl_add_u32 v12, v7, 4, v12")
    A("v_and_b32 v13, 1, v5")
    A("v_lshl_add_u32 v12, v13, 3, v12")
    A(f"v_add_u32 v12, {L1_R}, v12")
    A("v_bfe_u32 v7, v2, 4, 1")
    A("v_lshl_add_u32 v7, v7, 1, v13")
    A("v_bfe_u32 v13, v5, 1, 1")
    A("v_cmp_eq_u32 vcc, 3, v7")
    A("v_lshl_add_u32 v7, v7, 1, v13")
    A("v_add_u32 v13, 1, v7")
    A("v_lshlrev_b32 v136, 10, v6")
    A(f"s_mul_i32 s29, s3, {4*56}")
    A(f"s_add_u32 s29, s29, {L1_R}")
    A("v_add_u32 v136, s29, v136")
    A("v_cndmask_b32 v7, v7, 6, vcc")
    A("v_cndmask_b32 v13, v13, 0, vcc")
    A("v_lshl_add_u32 v141, v7, 3, v136")
    A("v_lshl_add_u32 v142, v13, 3, v136")
    A("v_mov_b32 v137, 0")
    A("v_lshlrev_b32 v139, 4, v2")
    A(f"v_add_u32 v136, {L1_R}, v139")
    A("v_bfe_u32 v5, v2, 4, 1")
    A("v_bfe_u32 v6, v2, 3, 1")
    A("s_mul_i32 s29, s24, 28")
    A("v_mul_u32_u24 v6, 27, v6")
    A("v_add_u32 v6, s29, v6")
    A("v_lshrrev_b32 v6, 5, v6")
    A("v_mul_u32_u24 v5, 14, v5")
    A("v_add_u32 v5, v5, v6")
    A("v_cmp_gt_u32 vcc, 32, v2")
    A("v_and_b32 v6, 7, v2")
    A("s_lshl_b32 s29, s3, 3")
    A("v_add_u32 v6, s29, v6")
    A("v_cndmask_b32 v6, 0, v6, vcc")
    A("v_lshl_add_u32 v5, v5, 5, v6")
    A("v_lshlrev_b32 v140, 7, v5")
    A("s_waitcnt lgkmcnt(0)")
    A(f"s_add_u32 s63, s63, {TAGSTEP:#x}")
    A("v_mov_b32 v138, s63")
    A(f"s_mov_b32 s41, {CA_OFF}")
    A("s_mov_b32 s46, -1")
    A("s_mov_b32 s47, 0xffff")
    A("s_cmp_ge_u32 s26, 28")
    A("s_cbranch_scc1 L_RPK")
    A("s_cmp_ge_u32 s26, 14")
    A("s_cbranch_scc1 L_VPART")

    def marker_store():
        for r in range(4):
            A(f"v_mov_b32 v{96+r}, -1")
        for sx in range(2):
            A(f"buffer_store_dwordx4 v[96:99], v139, s[8:11], s35 offen offset:{1024*sx} sc1")

    def signal(ph, tag):
        A("s_waitcnt vmcnt(0)")
        A("s_mov_b64 exec, 1")
        if tag != "r":
            A("buffer_store_dword v138, v137, s[8:11], s62 offen sc1")
        A("buffer_store_dword v138, v137, s[8:11], s33 offen sc1")
        A("s_mov_b64 exec, -1")

    def poll_issue():
        A("s_mov_b64 exec, s[46:47]")
        A(f"buffer_load_dword v{PL}, v140, s[8:11], s41 offen sc1")
        A("s_mov_b64 exec, -1")

    def wqf(ji):
        j = ji % 8
        return WQF + 4 * j if j < 4 else EO + 4 * (j - 4)

    def run_jobs(jobs, transposed, alt=False, fill=None):
        pend = []
        nxt = 0

        def issue(ji):
            kind, tau, ks = jobs[ji]
            if kind == "A":
                for rd in range(2):
                    A(f"ds_read_b64_tr_b16 {vr(WR+16*tau+4*ks+2*rd,2)}, v12 offset:{(tau%5)*8192 + ks*2048 + rd*512}")
                    pend.append(ji)
            if kind == "Q":
                A(f"ds_read_b128 {vr(160+4*(ji%8) if alt else wqf(ji),4)}, v136 offset:{wq_base(tau) - L1_R + ks*1024}")
                pend.append(ji)
                reg = XH + ks if alt else (XQL + ks if tau < 4 else XQH + ks)
                A(f"ds_read_b128 {vr((216 if alt else XF)+4*(ji%8),4)}, v{reg} offset:{(tau%4)*16384}")
            else:
                reg = XL + ks if tau < 4 else XH + ks
                A(f"ds_read_b128 {vr(XF+4*(ji%8),4)}, v{reg} offset:{(tau%4)*16384 + (8192 if kind == 'B' else 0)}")
            pend.append(ji)
        for ji in range(len(jobs)):
            while nxt < len(jobs) and nxt < ji + (4 if jobs[0][0] == "A" else 6):
                issue(nxt)
                nxt += 1
            left = sum(1 for p in pend if p > ji)
            A(f"s_waitcnt lgkmcnt({left})")
            kind, tau, ks = jobs[ji]
            xreg = (216 if alt else XF) + 4 * (ji % 8)
            first = (tau == 0 and ks == 0)
            if kind == "Q":
                mfma(A, ACCQ, 160 + 4 * (ji % 8) if alt else wqf(ji), xreg, None if first else ACCQ)
                for _ in range(6):
                    if fill:
                        A(fill.pop(0))
            else:
                acc = ACC + (16 if kind == "B" else 0)
                wreg = WR + 16 * tau + 4 * ks
                if transposed:
                    mfma(A, acc, wreg, xreg, None if first else acc)
                else:
                    mfma(A, acc, xreg, wreg, None if first else acc)

    def J(kind, taus):
        return [(kind, tau, ks) for tau in taus for ks in range(4)]

    def kvloop(transposed, epilogue, tag):
        for k in range(7):
            A("s_barrier")
            run_jobs(J("A", [k]), transposed)
            if k == 2:
                marker_store()
        A("s_nop 7")
        A("s_nop 1")
        epilogue(0)
        stamp(A, 14)
        A("s_barrier")
        run_jobs(J("B", [0, 1, 2, 3]), transposed)
        signal(0, tag)
        A("s_barrier")
        stamp(A, 4)
        run_jobs(J("Q", [0, 1, 2, 3]), transposed)
        A("s_barrier")
        poll_issue()
        run_jobs(J("B", [4, 5, 6]), transposed)
        A("s_nop 7")
        A("s_nop 1")
        epilogue(1)
        stamp(A, 2)
        if tag == "v":
            A("s_waitcnt vmcnt(4)")
        else:
            A("s_or_b64 vcc, s[48:49], s[50:51]")
            A("s_cbranch_scc1 L_KW3")
            A("s_waitcnt vmcnt(2)")
            A.label("L_KW3")
            A("s_waitcnt vmcnt(3)")

    A("s_mov_b32 s42, 0x3f803f80")
    A("s_mov_b32 s43, 0x3f80")
    A("s_lshl_b32 s27, s26, 2")
    for gi, g in enumerate((0, 2)):
        A(f"v_add_u32 v5, {g}, v4")
        A("v_add_u32 v5, s27, v5")
        A("v_mul_u32_u24 v6, 37, v5")
        A("v_lshrrev_b32 v6, 8, v6")
        A("v_mul_u32_u24 v7, 7, v6")
        A("v_sub_u32 v5, v5, v7")
        A(f"v_cmp_eq_u32 s[{48+2*gi}:{49+2*gi}], 3, v5")
        A("v_lshrrev_b32 v7, 2, v5")
        A("v_lshl_add_u32 v6, v6, 1, v7")
        A("v_and_b32 v5, 3, v5")
        A(f"v_lshlrev_b32 v{EA+gi}, 18, v6")
        A(f"v_lshl_add_u32 v{EA+gi}, v5, 9, v{EA+gi}")
        A(f"v_lshl_add_u32 v{EA+gi}, v3, 4, v{EA+gi}")
        A(f"v_add_u32 v{EA+2+gi}, 0x40000, v{EA+gi}")

    def epi_k(ph):
        a = ACC + 16 * ph
        o = EO if ph == 0 else XF
        for p in range(8):
            A(f"v_cvt_pk_bf16_f32 v{o+p}, v{a+2*p}, v{a+2*p+1}")
        A("s_nop 1")
        for g in (0, 2):
            b = o + 2 * g
            A(f"v_permlane32_swap_b32 v{b}, v{b+2}")
            A(f"v_permlane32_swap_b32 v{b+1}, v{b+3}")
        for gi, g in enumerate((0, 2)):
            b = o + 2 * g
            T = o + 8 + 4 * gi
            lab = f"L_NOMIX_{ph}_{gi}"
            A(f"s_mov_b64 exec, s[{48+2*gi}:{49+2*gi}]")
            A(f"s_cbranch_execz {lab}")
            A(f"v_mov_b32 v{T}, v{b+2}")
            A(f"v_mov_b32 v{T+1}, v{b+3}")
            A(f"v_mov_b32 v{T+2}, s42")
            A(f"v_mov_b32 v{T+3}, s43")
            A(f"v_mov_b32 v{b+2}, s42")
            A(f"v_mov_b32 v{b+3}, s43")
            A(f"buffer_store_dwordx4 {vr(T,4)}, v{EA+2+gi}, s[8:11], s{60+ph} offen sc1")
            A.label(lab)
            A("s_mov_b64 exec, -1")
            A(f"buffer_store_dwordx4 {vr(b,4)}, v{EA+gi}, s[8:11], s{60+ph} offen sc1")
    A("s_nop 0")
    kvloop(True, epi_k, "k")
    A("s_branch L_QPHASE")

    A.label("L_VPART")
    A("s_sub_u32 s27, s26, 14")
    A("s_lshl_b32 s27, s27, 5")
    A("v_add_u32 v5, s27, v3")
    A("v_mul_u32_u24 v6, 2341, v5")
    A("v_lshrrev_b32 v6, 16, v6")
    A("v_mul_u32_u24 v7, 28, v6")
    A("v_sub_u32 v5, v5, v7")
    A("v_cmp_le_u32 s[48:49], 24, v5")
    A("v_cmp_eq_u32 vcc, 24, v5")
    A(f"v_lshlrev_b32 v{EA}, 18, v6")
    A("v_lshl_add_u32 v5, v4, 5, v5")
    A(f"v_lshl_add_u32 v{EA}, v5, 4, v{EA}")
    A("v_mov_b32 v5, 0x3f803f80")
    A("v_cndmask_b32 v48, 0, v5, vcc")
    for r in range(1, 4):
        A(f"v_mov_b32 v{48+r}, v48")

    def epi_v(ph):
        a = ACC + 16 * ph
        o = EO if ph == 0 else XF
        for p in range(8):
            A(f"v_cvt_pk_bf16_f32 v{o+p}, v{a+2*p}, v{a+2*p+1}")
        for tt in range(2):
            A(f"buffer_store_dwordx4 {vr(o+4*tt,4)}, v{EA}, s[8:11], s{60+ph} offen offset:{2048+1024*tt} sc1")
        A("s_mov_b64 exec, s[48:49]")
        for tt in range(2):
            A(f"buffer_store_dwordx4 v[48:51], v{EA}, s[8:11], s{60+ph} offen offset:{2048+1024*tt+64} sc1")
        A("s_mov_b64 exec, -1")
    kvloop(False, epi_v, "v")
    A("s_branch L_QPHASE")

    A.label("L_RPK")
    A("s_sub_u32 s27, s22, 14")
    A("s_lshl_b32 s27, s27, 4")
    A("s_add_u32 s27, s27, s25")
    A(f"s_mul_i32 s29, s3, {4*28*1024}")
    A("s_lshl_b32 s40, s27, 10")
    A("s_add_u32 s29, s29, s40")
    A(f"buffer_load_dword v{XF}, v137, s[8:11], s29 offen sc1")
    A("s_lshl_b32 s62, s27, 7")
    A("s_lshl_b32 s40, s3, 12")
    A("s_add_u32 s62, s62, s40")
    A(f"s_add_u32 s62, s62, {C3_OFF}")
    A("s_waitcnt vmcnt(0)")
    A("s_barrier")
    for hh in range(4):
        for rd in range(2):
            A(f"ds_read_b64_tr_b16 {vr(XF+4*hh+2*rd,2)}, v{141+(hh&1)} offset:{56*hh + rd*4096}")
    A("s_cmp_ge_u32 s27, 28")
    A("s_cbranch_scc1 L_RPKSKIP")
    for hh in range(4):
        A(f"s_waitcnt lgkmcnt({6-2*hh})")
        A(f"buffer_store_dwordx4 {vr(XF+4*hh,4)}, v139, s[8:11], s29 offen sc1")
        A(f"s_add_u32 s29, s29, {28*1024}")
    A.label("L_RPKSKIP")
    A("s_waitcnt lgkmcnt(0)")
    if OPT["rpkwait"]:
        A("s_waitcnt vmcnt(0)")
        A("s_mov_b64 exec, 1")
        A("buffer_store_dword v138, v137, s[8:11], s62 offen sc1")
        A("s_mov_b64 exec, -1")
        A("s_barrier")
    else:
        A("s_barrier")
        A("s_waitcnt vmcnt(0)")
        A("s_mov_b64 exec, 1")
        A("buffer_store_dword v138, v137, s[8:11], s62 offen sc1")
        A("s_mov_b64 exec, -1")
    stamp(A, 14)
    marker_store()
    A("s_barrier")
    signal(0, "r")
    A("s_barrier")
    run_jobs(J("Q", [0, 1, 2, 3]), True)
    A("s_barrier")
    poll_issue()
    A("s_waitcnt vmcnt(0)")

    A.label("L_QPHASE")
    A("v_mov_b32 v3, v139")
    for j in range(4):
        A(f"v_add_u32 v{VOFF+j}, {j*4096}, v3")
    A("s_mov_b32 s34, 0")
    A("s_lshl_b32 s23, s24, 18")
    A(f"s_add_u32 s23, s23, {KV_OFF}")
    A("s_lshl_b32 s27, s3, 16")
    A("s_add_u32 s27, s27, s23")
    A("s_add_u32 s12, s6, s27"); A("s_addc_u32 s13, s7, 0"); A("s_mov_b32 s14, 65536"); A("s_mov_b32 s15, 0x00020000")
    for i in range(3):
        A(f"s_add_u32 s27, s3, {i+1}")
        A("s_and_b32 s27, s27, 3")
        A("s_mul_i32 s27, s27, 12288")
        A(f"s_add_u32 s27, s27, {L2_CMB + i*4096}")
        A(f"v_add_u32 v{4+i}, s27, v3")
    A("s_mul_i32 s27, s3, 12288")
    A(f"s_add_u32 s27, s27, {L2_CMB}")
    A("v_add_u32 v7, s27, v3")
    A("s_mov_b32 s28, 0")
    A("s_mov_b32 s29, -1")

    def kv_prologue_loads(b0=0, b1=4):
        for b in range(b0, b1):
            for s in range(2):
                A(f"buffer_load_dwordx4 {vr(Kreg(b,s),4)}, v{VOFF+b}, s[12:15], 0 offen offset:{1024*s} {LD}")
            if b < 3:
                for t in range(2):
                    A(f"buffer_load_dwordx4 {vr(Vreg(b,t),4)}, v{VOFF+b}, s[12:15], 0 offen offset:{2048+1024*t} {LD}")

    def zero_list():
        return [f"v_mov_b32 v{O+r}, 0" for r in range(64)] + [f"v_mov_b32 v{Vreg(3,1)+r}, 0" for r in range(4)]

    def zero_state():
        for z in zero_list():
            A(z)
        for r in range(4):
            A(f"v_mov_b32 v{P+4+r}, 0")

    def poll_check():
        A(f"v_cmp_ne_u32 vcc, s63, v{PL}")
        A("s_nop 1")
        A("s_and_b64 vcc, vcc, s[46:47]")
        A("s_cselect_b32 s40, 1, 0")

    def first_loads():
        for s in range(2):
            A(f"buffer_load_dwordx4 {vr(K0T+4*s,4)}, v3, s[8:11], s23 offen offset:{1024*s} {LD}")
        kv_prologue_loads(0, 1)

    for ks in range(4):
        A(f"v_mov_b32 v{XH+ks}, v{XQH+ks}")
    stamp(A, 3)
    poll_check()
    A("s_cbranch_scc1 L_ARETRY")
    first_loads()
    A("s_branch L_ADONE1")
    A.label("L_ARETRY")
    poll_issue()
    A.label("L_ADONE1")
    ZL = zero_list()
    run_jobs(J("Q", [4, 5, 6]), True, alt=True, fill=ZL)
    assert not ZL
    A("s_cmp_eq_u32 s40, 0")
    A("s_cbranch_scc1 L_AOUT")
    A("s_mov_b32 s27, 0")
    A.label("L_APOLL")
    A("s_waitcnt vmcnt(0)")
    poll_check()
    A("s_cbranch_scc0 L_AOK")
    A("s_add_u32 s27, s27, 1")
    A(f"s_cmp_gt_u32 s27, {SPIN_MAX}")
    A("s_cbranch_scc1 L_AOK")
    poll_issue()
    A("s_branch L_APOLL")
    A.label("L_AOK")
    first_loads()
    A.label("L_AOUT")
    stamp(A, 5)
    stamp(A, 1)
    A(f"v_mov_b32 v14, {f32bits(QSCALE):#x}")
    A(f"v_mov_b32 v15, {f32bits(QSCALE):#x}")
    A("s_lshl_b32 s27, s3, 11")
    A(f"s_add_u32 s27, s27, {L_QX}")
    A("v_add_u32 v12, s27, v3")
    for i in range(4):
        A(f"s_add_u32 s27, s3, {i+1}")
        A("s_and_b32 s27, s27, 3")
        A("s_lshl_b32 s27, s27, 11")
        A(f"s_add_u32 s27, s27, {L_QX}")
        A(f"v_add_u32 v{136+i}, s27, v3")
    QT = 16
    for p in range(8):
        A(f"v_pk_mul_f32 {vr(ACCQ+2*p,2)}, {vr(ACCQ+2*p,2)}, v[14:15]")
    for p in range(8):
        A(f"v_cvt_pk_bf16_f32 v{QT+p}, v{ACCQ+2*p}, v{ACCQ+2*p+1}")
    A("s_mov_b64 exec, s[28:29]")
    A(f"v_mov_b32 v{QT+6}, 0")
    A(f"v_mov_b32 v{QT+7}, 0")
    A("s_mov_b64 exec, -1")
    A(f"ds_write_b128 v12, {vr(QT,4)}")
    A("s_waitcnt vmcnt(4)")
    stamp(A, 6)
    t = T2
    mfma(A, t, K0T, QT, None)
    mfma(A, t, K0T + 4, QT + 4, t)
    for r in range(4):
        A(f"v_mov_b32 v{P+4+r}, 0")
    kv_prologue_loads(1, 2)
    A("s_nop 3")
    A(f"v_max3_f32 v{t}, v{t}, v{t+1}, v{t+2}")
    for k in range(3, 15, 2):
        A(f"v_max3_f32 v{t}, v{t}, v{t+k}, v{t+k+1}")
    A(f"v_max_f32 v{t}, v{t}, v{t+15}")
    A("s_mov_b64 exec, s[28:29]")
    A(f"v_cvt_pk_bf16_f32 v{QT+6}, -v{t}, 0")
    A("s_mov_b64 exec, -1")
    A(f"ds_write_b128 v12, {vr(QT+4,4)} offset:1024")
    A("s_waitcnt lgkmcnt(0)")
    A("s_barrier")
    for i in range(4):
        for s in range(2):
            A(f"ds_read_b128 {vr(Qreg(i,s),4)}, v{136+i} offset:{1024*s}")
    kv_prologue_loads(2, 4)
    A(f"v_mov_b32 v{K0T}, {L_FLAG}")
    A("s_waitcnt lgkmcnt(0)")

    A.label("L_MAIN")
    A("s_waitcnt vmcnt(10)")
    A("s_mov_b32 s30, 16384")
    A("s_mov_b32 s31, 0")
    mfma(A, SB[0], Kreg(0, 0), Qreg(0, 0), None)
    mfma(A, SB[0], Kreg(0, 1), Qreg(0, 1), SB[0])
    A("s_nop 7")
    A("s_nop 3")
    stamp(A, 7)
    cstamp(A, 12)
    L = SB[0]

    def body(last, chk=True):
        for tb in range(4):
            for qt in range(4):
                u = tb * 4 + qt
                sc = SB[u % 2]
                sn = SB[(u + 1) % 2]
                ntb, nqt = (tb, qt + 1) if qt < 3 else ((tb + 1) % 4, 0)
                ptb, pqt = (tb, qt - 1) if qt > 0 else ((tb + 3) % 4, 3)
                fin = last and tb == 3 and qt == 3

                def ex(k, extra=()):
                    extra = list(extra)
                    for j in range(4):
                        A(f"v_exp_f32 v{sc+4*k+j}, v{sc+4*k+j}")
                        if extra:
                            A(extra.pop(0))
                    assert not extra
                    A(f"v_cvt_pk_bf16_f32 v{P+2*k}, v{sc+4*k}, v{sc+4*k+1}")
                    A(f"v_cvt_pk_bf16_f32 v{P+2*k+1}, v{sc+4*k+2}, v{sc+4*k+3}")
                aft = [None, None, None, None]
                if qt == 3 and not last:
                    for s in range(2):
                        aft[s] = f"buffer_load_dwordx4 {vr(Kreg(tb,s),4)}, v{VOFF+tb}, s[12:15], s30 offen offset:{1024*s} {LD}"
                if qt == 1 and (not last or tb == 0):
                    b_ = (tb + 3) % 4
                    so = "s30" if tb >= 1 else "s31"
                    for t in range(2):
                        aft[t] = f"buffer_load_dwordx4 {vr(Vreg(b_,t),4)}, v{VOFF+b_}, s[12:15], {so} offen offset:{2048+1024*t} {LD}"
                if qt == 2:
                    if not last:
                        aft[3] = "s_waitcnt vmcnt(8)"
                    elif tb < 3:
                        aft[3] = f"s_waitcnt vmcnt({[8, 4, 0][tb]})"
                if chk and not last and tb == 3 and qt == 0:
                    aft[0] = f"ds_read_b32 v{K0T+1}, v{K0T} offset:8"
                if chk and not last and tb == 3 and qt == 2:
                    aft[0] = "s_waitcnt lgkmcnt(0)"
                    aft[1] = f"v_readfirstlane_b32 s40, v{K0T+1}"
                if last and tb == 3 and qt >= 2:
                    i = qt - 2
                    for g in range(4):
                        aft[g] = f"ds_write_b128 v{4+i}, {vr(O+16*i+4*g,4)} offset:{1024*g}"
                if not fin:
                    mfma(A, sn, Kreg(ntb, 0), Qreg(nqt, 0), None)
                if aft[0]:
                    A(aft[0])
                ex(0)
                mfma(A, O + 16 * pqt, Vreg(ptb, 1), P + 4, O + 16 * pqt)
                if aft[1]:
                    A(aft[1])
                ex(1)
                if not fin:
                    mfma(A, sn, Kreg(ntb, 1), Qreg(nqt, 1), sn)
                if aft[2]:
                    A(aft[2])
                ex(2)
                mfma(A, O + 16 * qt, Vreg(tb, 0), P, O + 16 * qt)
                if aft[3]:
                    A(aft[3])
                e_ = []
                if tb == 3 and qt == 3 and not last:
                    e_ = ["s_add_u32 s31, s31, 16384", "s_add_u32 s30, s30, 16384", "s_cmp_lt_u32 s31, 49152"]
                ex(3, e_)

    if OPT["unroll"]:
        body(False, chk=True)
        A("s_cmp_lg_u32 s40, 0")
        A("s_cbranch_scc1 L_BOK")
        A("s_mov_b32 s27, 0")
        A.label("L_BWAIT")
        A(f"ds_read_b32 v{K0T+1}, v{K0T} offset:8")
        A("s_waitcnt lgkmcnt(0)")
        A(f"v_readfirstlane_b32 s40, v{K0T+1}")
        A("s_add_u32 s27, s27, 1")
        A(f"s_cmp_gt_u32 s27, {SPIN_MAX*64}")
        A("s_cbranch_scc1 L_BOK")
        A("s_cmp_eq_u32 s40, 0")
        A("s_cbranch_scc1 L_BWAIT")
        A.label("L_BOK")
        body(False, chk=False)
        body(False, chk=False)
    else:
        A.raw(".p2align 6")
        A.label("L_LOOP")
        body(False)
        A("s_cbranch_scc0 L_LAST")
        A("s_cmp_lg_u32 s40, 0")
        A("s_cbranch_scc1 L_LOOP")
        A("s_mov_b32 s27, 0")
        A.label("L_BWAIT")
        A(f"ds_read_b32 v{K0T+1}, v{K0T} offset:8")
        A("s_waitcnt lgkmcnt(0)")
        A(f"v_readfirstlane_b32 s40, v{K0T+1}")
        A("s_add_u32 s27, s27, 1")
        A(f"s_cmp_gt_u32 s27, {SPIN_MAX*64}")
        A("s_cbranch_scc1 L_LOOP")
        A("s_cmp_eq_u32 s40, 0")
        A("s_cbranch_scc1 L_BWAIT")
        A("s_branch L_LOOP")
    A.label("L_LAST")
    body(True)
    A("s_nop 1")
    mfma(A, O + 48, Vreg(3, 1), P + 4, O + 48)
    stamp(A, 8)
    cstamp(A, 13)
    for g in range(4):
        A(f"ds_write_b128 v6, {vr(O+32+4*g,4)} offset:{1024*g}")
    A(f"v_mov_b32 v{L}, {f32bits(2.0**40):#x}")
    A(f"v_mov_b32 v{L+1}, {f32bits(2.0**-40):#x}")
    A("s_add_u32 s26, s63, 1")
    A("s_nop 0")
    A(f"v_mov_b32 v{L+8}, 0")
    A(f"v_mov_b32 v{L+9}, s26")
    A("s_cmp_lg_u32 s34, 0")
    A("s_cbranch_scc1 L_NOFLAG")
    A(f"v_min3_f32 v{L+3}, v{O+12}, v{O+28}, v{O+44}")
    A(f"v_add_f32 v{L+4}, v{O+12}, v{O+28}")
    A(f"v_add_f32 v{L+5}, v{O+44}, v{O+60}")
    A(f"v_min_f32 v{L+3}, v{L+3}, v{O+60}")
    A(f"v_add_f32 v{L+4}, v{L+4}, v{L+5}")
    A(f"v_cmp_nlt_f32 vcc, v{L+4}, v{L}")
    A(f"v_cmp_nge_f32 s[40:41], v{L+3}, v{L+1}")
    A("s_cmp_eq_u32 s3, 0")
    A("s_cselect_b32 s41, s41, 0")
    A("s_or_b32 s41, s41, vcc_hi")
    A("s_cbranch_scc0 L_NOFLAG")
    A(f"v_mov_b32 v{L+5}, {L2_FLAG}")
    A(f"v_mov_b32 v{L+6}, 1")
    A(f"ds_write_b32 v{L+5}, v{L+6}")
    A.label("L_NOFLAG")
    A(f"v_mov_b32 v{L+5}, {L2_FLAG}")
    A("s_waitcnt lgkmcnt(0)")
    A("s_barrier")
    stamp(A, 9)
    R = KVB
    A(f"ds_read_b32 v{L+6}, v{L+5}")
    for sl in range(3):
        for g in range(4):
            A(f"ds_read_b128 {vr(R+16*sl+4*g,4)}, v7 offset:{4096*sl+1024*g}")
    A("s_waitcnt lgkmcnt(12)")
    A(f"v_readfirstlane_b32 s26, v{L+6}")
    A("s_nop 3")
    A("s_cmp_gt_u32 s26, s34")
    A("s_cbranch_scc1 L_FALLBACK")

    def hint():
        A("s_mov_b64 exec, 1")
        A(f"buffer_store_dword v{L+9}, v{L+8}, s[8:11], s33 offen sc1")
        A("s_mov_b64 exec, -1")
    if OPT["hint"] == "b8":
        hint()
    OO = O + 48
    for sl in range(3):
        for g in range(4):
            A(f"s_waitcnt lgkmcnt({11-4*sl-g})")
            for p in range(2):
                A(f"v_pk_add_f32 {vr(OO+4*g+2*p,2)}, {vr(OO+4*g+2*p,2)}, {vr(R+16*sl+4*g+2*p,2)}")
    A(f"v_mov_b32 v{L}, v{OO+12}")
    A(f"v_mov_b32 v{L+1}, v{OO+12}")
    A("s_nop 1")
    A(f"v_permlane32_swap_b32 v{L}, v{L+1}")
    A("s_nop 0")
    A(f"v_rcp_f32 v{L+2}, v{L+1}")
    A("s_nop 0")
    A(f"v_mov_b32 v{L+3}, v{L+2}")
    for p in range(8):
        A(f"v_pk_mul_f32 {vr(OO+2*p,2)}, {vr(OO+2*p,2)}, {vr(L+2,2)}")
    for p in range(8):
        A(f"v_cvt_pk_bf16_f32 v{R+p}, v{OO+2*p}, v{OO+2*p+1}")
    A("s_mov_b64 exec, s[28:29]")
    A(f"v_mov_b32 v{R+6}, 0")
    A(f"v_mov_b32 v{R+7}, 0")
    A("s_mov_b64 exec, -1")
    for p in range(8):
        A(f"v_min_u32 v{R+p}, -2, v{R+p}")
        if p % 4 == 3:
            A(f"buffer_store_dwordx4 {vr(R+p-3,4)}, v3, s[8:11], s35 offen offset:{1024*(p//4)} sc1")
    if OPT["hint"] != "b8":
        hint()
    stamp(A, 10)
    A("s_branch L_END")

    A.label("L_FALLBACK")
    A("s_mov_b32 s34, 1")
    A("s_waitcnt vmcnt(0) lgkmcnt(0)")
    A("s_mov_b64 exec, s[28:29]")
    for i in range(4):
        A(f"v_mov_b32 v{Qreg(i,1)+2}, 0")
        A(f"v_mov_b32 v{Qreg(i,1)+3}, 0")
    A("s_mov_b64 exec, -1")
    M = T2
    for i in range(4):
        A(f"v_mov_b32 v{M+i}, 0xff800000")
    A("s_mov_b32 s31, 0")
    A.label("L_MAXLOOP")
    for s in range(2):
        A(f"buffer_load_dwordx4 {vr(K0T+4*s,4)}, v3, s[12:15], s31 offen offset:{1024*s} {LD}")
    A("s_waitcnt vmcnt(0)")
    for i in range(4):
        t = O + 16 * i
        mfma(A, t, K0T, Qreg(i, 0), None)
        mfma(A, t, K0T + 4, Qreg(i, 1), t)
    A("s_nop 7")
    A("s_nop 7")
    for i in range(4):
        t = O + 16 * i
        for k in range(0, 16, 2):
            A(f"v_max3_f32 v{M+i}, v{M+i}, v{t+k}, v{t+k+1}")
    A("s_add_u32 s31, s31, 4096")
    A("s_cmp_lt_u32 s31, 65536")
    A("s_cbranch_scc1 L_MAXLOOP")
    for i in range(4):
        A(f"v_mov_b32 v{M+4+i}, v{M+i}")
    A("s_nop 1")
    for i in range(4):
        A(f"v_permlane32_swap_b32 v{M+i}, v{M+4+i}")
    A("s_nop 1")
    for i in range(4):
        A(f"v_max_f32 v{M+i}, v{M+i}, v{M+4+i}")
    A(f"v_and_b32 v{M+8}, 31, v2")
    A(f"v_lshlrev_b32 v{M+8}, 2, v{M+8}")
    for i in range(4):
        A(f"s_add_u32 s26, s3, {i+1}")
        A("s_and_b32 s26, s26, 3")
        A("s_lshl_b32 s26, s26, 9")
        A(f"s_add_u32 s26, s26, {L2_MX}")
        A(f"v_add_u32 v{M+9+i}, s26, v{M+8}")
        A("s_lshl_b32 s27, s3, 7")
        A(f"v_add_u32 v{M+13}, s27, v{M+9+i}")
        A(f"ds_write_b32 v{M+13}, v{M+i}")
    A("s_waitcnt lgkmcnt(0)")
    A("s_barrier")
    for i in range(4):
        for w in range(4):
            A(f"ds_read_b32 v{O+4*i+w}, v{M+9+i} offset:{128*w}")
            if (4 * i + w) % 8 == 7:
                A("s_waitcnt lgkmcnt(0)")
    for i in range(4):
        t = O + 4 * i
        A(f"v_max3_f32 v{t}, v{t}, v{t+1}, v{t+2}")
        A(f"v_max_f32 v{t}, v{t}, v{t+3}")
        A(f"v_sub_f32 v{t}, 0, v{t}")
        A(f"v_cvt_pk_bf16_f32 v{t+1}, v{t}, 0")
        A(f"v_lshlrev_b32 v{t+2}, 16, v{t+1}")
        A(f"v_sub_f32 v{t}, v{t}, v{t+2}")
        A(f"v_cvt_pk_bf16_f32 v{t+2}, v{t}, 0")
        A(f"v_lshlrev_b32 v{t+3}, 16, v{t+2}")
        A(f"v_sub_f32 v{t}, v{t}, v{t+3}")
        A(f"v_or_b32 v{t+1}, v{t+1}, v{t+3}")
        A(f"v_cvt_pk_bf16_f32 v{t+2}, v{t}, 0")
    A("s_mov_b64 exec, s[28:29]")
    for i in range(4):
        t = O + 4 * i
        A(f"v_mov_b32 v{Qreg(i,1)+2}, v{t+1}")
        A(f"v_mov_b32 v{Qreg(i,1)+3}, v{t+2}")
    A("s_mov_b64 exec, -1")
    kv_prologue_loads()
    zero_state()
    A(f"v_mov_b32 v{K0T}, {L_FLAG}")
    A("s_branch L_MAIN")

    A.label("L_END")
    stamp_flush(A)
    A.label("L_EXIT")
    A("s_endpgm")


HEADER = """; MHA block (B=1, S=2048, D=448, H=16) for gfx950, one persistent launch:
;   P1 QKV projection -> (counters) -> P2 attention -> (hint + marker check) -> P3 output projection.
"""


def main(out):
    A = Asm()
    A.raw(HEADER.rstrip())
    A.raw(f"; @launch grid=(256,1,1) block=(512,1,1) lds={LDS_TOTAL}")
    A.raw('.amdgcn_target "amdgcn-amd-amdhsa--gfx950"')
    A.raw(".text")
    gen(A)
    A.raw('.section .rodata,"a"')
    A.raw(f""".p2align 6
.amdhsa_kernel {NAME}
  .amdhsa_next_free_vgpr 256
  .amdhsa_next_free_sgpr {102 if STAMP else 64}
  .amdhsa_accum_offset 256
  .amdhsa_group_segment_fixed_size 0
  .amdhsa_kernarg_size 48
  .amdhsa_user_sgpr_count 2
  .amdhsa_user_sgpr_kernarg_segment_ptr 1
  .amdhsa_system_sgpr_workgroup_id_x 1
.end_amdhsa_kernel""")
    open(out, "w").write(A.text())


if __name__ == "__main__":
    out = sys.argv[1] if len(sys.argv) > 1 else "standalone__mha_block__prompt.s"
    for a in sys.argv[2:]:
        if a == "stamp":
            STAMP = True
        elif a == "dbgstamp":
            STAMP = True
            DBGSTAMP = True
        elif "=" in a:
            k, v = a.split("=", 1)
            assert k in OPT, k
            OPT[k] = v
    main(out)
```

```python
import sys, math, struct

S_TOK, D, H, DH = 2048, 448, 16, 28
WQF_OFF = 0
KV_OFF = 2 << 20
OF_OFF = 6 << 20
C1_OFF = 8 << 20
C2_OFF = (8 << 20) + 65536
EP_OFF = (8 << 20) + 196608 + 1024
C3_OFF = (8 << 20) + 196608 + 4096
CA_OFF = (8 << 20) + 262144
WS_USED = (8 << 20) + 262144 + 131072
TAGSTEP = 0x9E3779B8
QSCALE = math.log2(math.e) / math.sqrt(DH)
SPIN_MAX = 40000
KVB_OF_HEAD = [0, 1, 14, 2, 3, 4, 5, 6, 7, 8, 9, 10, 11, 15, 12, 13]
KVB_LO = sum(v << (4 * i) for i, v in enumerate(KVB_OF_HEAD[:8]))
KVB_HI = sum(v << (4 * i) for i, v in enumerate(KVB_OF_HEAD[8:]))
INIT_HEAD = 2

OPT = dict(ldsc="sc1", ldq="", outsc="", stgprio="3", stgsleep="3", stgdelay="32", pollsleep="4", hint="b8", plan="e", wqp="5", asig="9", achk="13", unroll="1", cpf="", rpkwait="1", bsleep="8", bdelay="16")


def f32bits(x):
    return struct.unpack("<I", struct.pack("<f", x))[0]


class Asm:
    def __init__(self):
        self.l = []

    def __call__(self, s):
        self.l.append("  " + s)

    def label(self, s):
        self.l.append(s + ":")

    def raw(self, s):
        self.l.append(s)

    def text(self):
        return "\n".join(self.l) + "\n"


def vr(a, n):
    return f"v[{a}:{a+n-1}]"


STAMP = False
STAMP_OFF = 16 << 20
NSTAMP = 16


def stamp_init(A):
    if not STAMP:
        return
    for k in range(NSTAMP):
        A(f"s_mov_b32 s{64+2*k}, 0")
    A("s_memrealtime s[64:65]")


def stamp(A, slot):
    if STAMP:
        A(f"s_memrealtime s[{64+2*slot}:{65+2*slot}]")


def cstamp(A, slot):
    if STAMP:
        A(f"s_memtime s[{64+2*slot}:{65+2*slot}]")


DBGSTAMP = False


def stamp_flush(A):
    if not STAMP:
        return
    A("s_waitcnt vmcnt(0)")
    A(f"s_memrealtime s[{64+2*(NSTAMP-1)}:{65+2*(NSTAMP-1)}]")
    A("s_waitcnt lgkmcnt(0)")
    if DBGSTAMP:
        A("s_and_b32 s100, s3, 3")
        A("s_cmp_lg_u32 s100, 0")
        A("s_cbranch_scc1 L_EXIT")
        A("s_mov_b32 s96, s4"); A("s_mov_b32 s97, s5"); A("s_mov_b32 s98, 256"); A("s_mov_b32 s99, 0x00020000")
        A("s_mov_b64 exec, 1")
        A("v_mov_b32 v0, 0")
        A("s_not_b32 s100, s64")
        A("v_mov_b32 v1, s100")
        A("buffer_atomic_umax v1, v0, s[96:99], 0 offen offset:4 sc1")
        A("s_cmp_lt_u32 s3, 4")
        A("s_cbranch_scc0 L_DBGL")
        for w, sl in ((2, 0), (3, 1), (4, 3), (5, 5), (6, 7), (7, 8), (8, 10)):
            A(f"v_mov_b32 v1, s{64+2*sl}")
            A(f"buffer_atomic_umax v1, v0, s[96:99], 0 offen offset:{4*w} sc1")
            A("s_nop 1")
        A("s_branch L_EXIT")
        A.label("L_DBGL")
        for w, sl in ((9, 4), (10, 1), (11, 2), (12, 5), (13, 8), (14, 15)):
            A(f"v_mov_b32 v1, s{64+2*sl}")
            A(f"buffer_atomic_umax v1, v0, s[96:99], 0 offen offset:{4*w} sc1")
            A("s_nop 1")
        return
    A(f"s_add_u32 s96, s6, {STAMP_OFF}")
    A("s_addc_u32 s97, s7, 0")
    A("s_mov_b32 s98, 0x100000")
    A("s_mov_b32 s99, 0x00020000")
    A("s_lshl_b32 s100, s2, 10")
    A("s_lshl_b32 s101, s3, 6")
    A("s_add_u32 s100, s100, s101")
    A("s_mov_b64 exec, 1")
    A("v_mov_b32 v0, 0")
    for k in range(NSTAMP):
        A(f"v_mov_b32 v1, s{64+2*k}")
        A(f"buffer_store_dword v1, v0, s[96:99], s100 offen offset:{4*k}")
        A("s_nop 1")


def mfma(A, d, a, b, c):
    cs = "0" if c is None else vr(c, 16)
    A(f"v_mfma_f32_32x32x16_bf16 {vr(d,16)}, {vr(a,4)}, {vr(b,4)}, {cs}")


def epoch_load(A):
    A(f"s_add_u32 s56, s6, {EP_OFF}")
    A("s_addc_u32 s57, s7, 0")
    A("s_load_dword s63, s[56:57], 0")


def srd(A, d, lo, hi, size):
    A(f"s_mov_b32 s{d}, {lo}")
    A(f"s_mov_b32 s{d+1}, {hi}")
    A(f"s_mov_b32 s{d+2}, {size}")
    A(f"s_mov_b32 s{d+3}, 0x00020000")


L1_X = 0
L1_R = 114688
L_QX = L1_R + 4 * 8192
L_FLAG = 155648
L2_MX = L_FLAG + 256
L3_STG = 0
L2_CMB = 65536
L3_RED = 0
LDS_TOTAL = 163840
L2_FLAG = L_FLAG


def wq_base(tau):
    return L1_R + 2 * 8192 + tau * 4096 if tau < 4 else L1_R + (tau - 4) * 4096


STEPS = [("A", [t]) for t in range(7)] + [("B", [0, 1, 2, 3]), ("Q", [0, 1, 2, 3, 4, 5, 6]), ("B", [4, 5, 6])]
NSTEP = len(STEPS)
PLAN = [[0, 1, 2, 3], [4], [5], [6], [7], [], [], [], [8, 9], []]

NAME = "standalone__mha_block__prompt_kernel"


def gen(A):
    LD = OPT["ldsc"]
    A.raw(f".globl {NAME}")
    A.raw(".p2align 8")
    A.raw(f".type {NAME},@function")
    A.label(NAME)
    A("s_cmp_ge_u32 s2, 256")
    A("s_cbranch_scc1 L_EXIT")
    stamp_init(A)
    A("s_load_dwordx4 s[16:19], s[0:1], 0")
    A("s_load_dwordx4 s[4:7], s[0:1], 32")
    A("s_load_dwordx4 s[52:55], s[0:1], 16")
    A("v_lshrrev_b32 v1, 6, v0")
    A("v_and_b32 v2, 63, v0")
    A("v_readfirstlane_b32 s3, v1")
    A("s_and_b32 s24, s2, 3")
    A("s_lshl_b32 s24, s24, 2")
    A("s_bfe_u32 s25, s2, 0x20003")
    A("s_add_u32 s24, s24, s25")
    A("s_bfe_u32 s25, s2, 0x10002")
    A("s_lshl_b32 s25, s25, 3")
    A("s_lshr_b32 s20, s2, 5")
    A("s_add_u32 s25, s25, s20")
    A("s_cmp_ge_u32 s24, 8")
    A(f"s_mov_b32 s20, {KVB_LO:#x}")
    A(f"s_cselect_b32 s20, {KVB_HI:#x}, s20")
    A("s_and_b32 s21, s24, 7")
    A("s_lshl_b32 s21, s21, 2")
    A("s_lshr_b32 s22, s20, s21")
    A("s_and_b32 s22, s22, 15")
    A("s_and_b32 s39, s24, 3")
    A("s_lshl_b32 s39, s39, 1")
    A("s_add_u32 s39, s39, s25")
    A("s_mul_i32 s20, s39, 37")
    A("s_lshr_b32 s20, s20, 8")
    A("s_mul_i32 s20, s20, 7")
    A("s_sub_u32 s39, s39, s20")
    A("s_cmp_lt_u32 s3, 4")
    A("s_cbranch_scc1 L_CWAVE")

    A("s_setprio 3")
    A("s_sub_u32 s26, s3, 4")
    A("v_lshrrev_b32 v3, 3, v2")
    A("v_and_b32 v4, 7, v2")
    A("v_lshrrev_b32 v5, 1, v3")
    A("s_and_b32 s27, s26, 1")
    A("s_lshl_b32 s27, s27, 2")
    A("v_add_u32 v7, s27, v5")
    A("v_and_b32 v7, 7, v7")
    A("v_xor_b32 v7, v4, v7")
    A("v_and_b32 v5, 1, v5")
    A("v_lshlrev_b32 v5, 2, v5")
    A("v_xor_b32 v5, v4, v5")
    A("v_mul_u32_u24 v6, 2688, v3")
    A("v_lshl_add_u32 v6, v5, 4, v6")
    A("v_mul_u32_u24 v3, 896, v3")
    A("v_lshl_add_u32 v3, v7, 4, v3")
    A("v_lshlrev_b32 v9, 4, v2")
    A("s_lshl_b32 s36, s25, 7")
    A("s_lshl_b32 s27, s26, 3")
    A("s_add_u32 s36, s36, s27")
    A("s_mul_i32 s36, s36, 896")
    A(f"s_mul_i32 s44, s26, {8*2688}")
    A("s_min_u32 s27, s22, 13")
    A("s_lshl_b32 s27, s27, 7")
    A("s_add_u32 s44, s44, s27")
    A("s_add_u32 s44, s44, 896")
    A(f"s_mul_i32 s45, s24, {28*1024}")
    A("s_lshl_b32 s27, s26, 10")
    A("s_add_u32 s45, s45, s27")
    A("s_sub_u32 s59, s22, 14")
    A("s_lshl_b32 s59, s59, 4")
    A("s_add_u32 s59, s59, s25")
    A("s_and_b32 s59, s59, 31")
    A("s_mov_b32 s37, s59")
    A("s_min_u32 s59, s59, 27")
    A("s_lshl_b32 s59, s59, 4")
    A("s_add_u32 s59, s59, s26")
    A("s_mul_i32 s59, s59, 2688")
    A("s_lshl_b32 s38, s26, 10")
    A("s_waitcnt lgkmcnt(0)")
    epoch_load(A)
    srd(A, 28, "s16", "s17", S_TOK * D * 2)
    srd(A, 32, "s18", "s19", D * 3 * D * 2)
    srd(A, 8, "s6", "s7", WS_USED)

    def chunk_of(tau):
        A(f"s_add_u32 s40, s39, {tau}")
        A("s_cmp_ge_u32 s40, 7")
        A("s_cselect_b32 s41, 7, 0")
        A("s_sub_u32 s40, s40, s41")

    def x_loads(tau, rts):
        A("s_lshl_b32 s41, s40, 7")
        A("s_add_u32 s41, s41, s36")
        for rt in rts:
            A(f"s_add_u32 s42, s38, {L1_X + tau * 16384 + rt * 4096}")
            A("s_mov_b32 m0, s42")
            A(f"s_add_u32 s43, s41, {rt * 32 * 896}")
            A("buffer_load_dwordx4 v3, s[28:31], s43 offen lds")
        return len(rts)

    def step_loads(k):
        kind, taus = STEPS[k]
        n = 0
        for tau in taus:
            chunk_of(tau)
            if kind == "A":
                A(f"s_mul_i32 s41, s40, {64*2688}")
                A("s_add_u32 s41, s41, s44")
                for i in range(2):
                    A(f"s_add_u32 s42, s38, {L1_R + (tau % 5) * 8192 + i * 4096}")
                    A("s_mov_b32 m0, s42")
                    A(f"s_add_u32 s43, s41, {i * 32 * 2688}")
                    A("buffer_load_dwordx4 v6, s[32:35], s43 offen lds")
                    n += 1
            if kind == "Q":
                A("s_lshl_b32 s41, s40, 12")
                A(f"s_add_u32 s42, s38, {wq_base(tau)}")
                A("s_mov_b32 m0, s42")
                A("s_add_u32 s43, s41, s45")
                A("buffer_load_dwordx4 v9, s[8:11], s43 offen sc1 lds")
                n += 1
            else:
                n += x_loads(tau, (0, 1) if kind == "A" else (2, 3))
        return n

    WF = 16
    OFR = 144
    ACC3 = 176

    def l_setup():
        a, b, c, d, e, hi = 16, 17, 18, 19, 20, 21
        A("s_lshr_b32 s20, s2, 2")
        A("s_and_b32 s21, s2, 3")
        A("s_waitcnt lgkmcnt(0)")
        A(f"s_add_u32 s63, s63, {TAGSTEP:#x}")
        A(f"v_bfe_u32 v{a}, v2, 5, 1")
        A(f"v_bfe_u32 v{b}, v2, 4, 1")
        A(f"v_and_b32 v{c}, 15, v2")
        A("s_mul_i32 s27, s24, 28")
        A(f"v_mul_u32_u24 v{b}, 27, v{b}")
        A(f"v_add_u32 v{b}, s27, v{b}")
        A(f"v_lshrrev_b32 v{b}, 6, v{b}")
        A(f"v_mul_u32_u24 v{a}, 7, v{a}")
        A(f"v_add_u32 v{a}, v{a}, v{b}")
        A(f"v_lshl_add_u32 v{a}, v{a}, 4, v{c}")
        A(f"v_lshlrev_b32 v249, 8, v{a}")
        A(f"v_and_b32 v{b}, 31, v2")
        A(f"v_add_u32 v{b}, 224, v{b}")
        A(f"v_lshlrev_b32 v11, 8, v{b}")
        A("v_mov_b32 v10, 1")
        A("v_mov_b32 v12, s63")
        A("v_and_b32 v14, 3, v2")
        A("v_lshlrev_b32 v14, 7, v14")
        A("v_and_b32 v15, 7, v2")
        A("v_lshlrev_b32 v15, 9, v15")
        A("s_lshl_b32 s49, s26, 7")
        A(f"s_add_u32 s49, s49, {C3_OFF}")
        A("s_lshr_b32 s27, s24, 2")
        A("s_lshl_b32 s27, s27, 12")
        A("s_add_u32 s49, s49, s27")
        A("s_lshl_b32 s51, s22, 4")
        A("s_add_u32 s51, s51, s25")
        A("s_lshl_b32 s51, s51, 8")
        A(f"s_add_u32 s51, s51, {C1_OFF}")
        A(f"v_lshrrev_b32 v{a}, 4, v2")
        A(f"v_and_b32 v{b}, 15, v2")
        A(f"v_lshlrev_b32 v{c}, 2, v{a}")
        A(f"v_xor_b32 v{b}, v{b}, v{c}")
        A(f"v_mul_u32_u24 v{a}, 896, v{a}")
        A(f"v_lshl_add_u32 v{a}, v{b}, 4, v{a}")
        A("s_lshl_b32 s27, s21, 4")
        A(f"v_add_u32 v{b}, s27, v{b}")
        A(f"v_mov_b32 v{c}, 0x40000000")
        A(f"v_cmp_le_u32 vcc, 56, v{b}")
        A("s_nop 1")
        A(f"v_cndmask_b32 v251, v{a}, v{c}, vcc")
        A("s_mul_i32 s46, s26, 15360")
        A(f"s_add_u32 s46, s46, {L3_STG}")
        A(f"v_and_b32 v{a}, 15, v2")
        A(f"v_lshrrev_b32 v{b}, 2, v{a}")
        A(f"v_bfe_u32 v{c}, v2, 4, 1")
        A(f"v_lshlrev_b32 v{c}, 1, v{c}")
        A(f"v_bfe_u32 v{d}, v{a}, 1, 1")
        A(f"v_add_u32 v{c}, v{c}, v{d}")
        A(f"v_lshrrev_b32 v{hi}, 5, v2")
        A(f"v_lshl_add_u32 v{d}, v{hi}, 2, v{b}")
        A(f"v_lshlrev_b32 v{e}, 8, v{d}")
        A(f"v_lshl_add_u32 v{e}, v{c}, 4, v{e}")
        A(f"v_and_b32 v{d}, 1, v{a}")
        A(f"v_lshl_add_u32 v{e}, v{d}, 3, v{e}")
        A(f"v_add_u32 v{e}, s46, v{e}")
        for i in range(4):
            A(f"s_add_u32 s27, s26, {i}")
            A("s_and_b32 s27, s27, 3")
            A(f"v_xor_b32 v{d}, s27, v{b}")
            A(f"v_lshl_add_u32 v{252+i}, v{d}, 6, v{e}")
        A("v_lshlrev_b32 v240, 4, v2")
        for i in range(1, 4):
            A(f"s_add_u32 s27, s26, {i}")
            A("s_and_b32 s27, s27, 3")
            A("s_mul_i32 s27, s27, 12288")
            A(f"s_add_u32 s27, s27, {L3_RED + (i-1)*4096}")
            A(f"v_add_u32 v{240+i}, s27, v240")
        A("s_mul_i32 s27, s26, 12288")
        A(f"s_add_u32 s27, s27, {L3_RED}")
        A("v_add_u32 v244, s27, v240")
        A("v_add_u32 v245, 4096, v240")
        A("s_lshl_b32 s46, s20, 15")
        A("s_lshl_b32 s27, s26, 13")
        A("s_add_u32 s46, s46, s27")
        A(f"s_add_u32 s46, s46, {OF_OFF}")
        A("s_lshl_b32 s47, s20, 2")
        A("s_add_u32 s47, s47, s26")
        A("s_lshl_b32 s47, s47, 9")
        A(f"s_add_u32 s47, s47, {C2_OFF}")
        A("v_and_b32 v246, 31, v2")
        A("v_mul_u32_u24 v246, 896, v246")
        A(f"v_lshl_add_u32 v246, v{hi}, 4, v246")
        A(f"s_mul_i32 s48, s20, {32*896}")
        A("s_lshl_b32 s27, s21, 8")
        A("s_add_u32 s48, s48, s27")
        A("s_lshl_b32 s27, s26, 6")
        A("s_add_u32 s48, s48, s27")
        A(f"v_mov_b32 v247, {L_FLAG}")
        A("v_mov_b32 v248, 0")
        for r in range(64):
            A(f"v_mov_b32 v{ACC3+r}, 0")

    def wq_poll_issue():
        A("s_mov_b64 exec, 0x7f")
        A("buffer_load_dword v5, v15, s[8:11], s49 offen sc1")
        A("s_mov_b64 exec, -1")

    stamp(A, 4)
    A("s_cmp_ge_u32 s22, 14")
    A("s_cbranch_scc1 L_LRPK")
    order = []
    for k in range(NSTEP):
        if k == int(OPT["wqp"]):
            wq_poll_issue()
            order.append((7, 1))
        if k == 7:
            A.label("L_LJOIN")
        for st in PLAN[k]:
            if st == 8:
                A("s_mov_b32 s27, 0")
                A.label("L_WQPOLL")
                A("v_cmp_ne_u32 vcc, s63, v5")
                A("s_add_u32 s27, s27, 1")
                A(f"s_cmp_gt_u32 s27, {SPIN_MAX}")
                A("s_cbranch_scc1 L_WQOK")
                A("s_and_b32 s40, vcc_lo, 0x7f")
                A("s_cbranch_scc0 L_WQOK")
                wq_poll_issue()
                A("s_waitcnt vmcnt(0)")
                A("s_branch L_WQPOLL")
                A.label("L_WQOK")
                stamp(A, 10)
            order.append((st, step_loads(st)))
        if k == 0:
            l_setup()
        left = sum(c for key, c in order if key > k)
        A(f"s_waitcnt vmcnt({left})")
        A("s_barrier")
        if k == 0:
            stamp(A, 1)
        if k == 6:
            stamp(A, 2)
        if k == 8:
            stamp(A, 3)
    A("s_branch L_LP1DONE")
    A.label("L_LRPK")
    for j in range(4):
        A(f"s_add_u32 s42, s38, {L1_R + j * 4096}")
        A("s_mov_b32 m0, s42")
        A(f"s_add_u32 s43, s59, {4 * j * 2688}")
        A("buffer_load_dwordx4 v9, s[32:35], s43 offen lds")
    l_setup()
    A("s_waitcnt vmcnt(0)")
    A("s_barrier")
    A("s_barrier")
    for tau in range(7):
        chunk_of(tau)
        x_loads(tau, (0, 1, 2, 3) if tau < 4 else (0, 1))
    wq_poll_issue()
    A("s_branch L_LJOIN")
    A.label("L_LP1DONE")

    def poll_flags(name, areg):
        A("s_mov_b32 s27, 0")
        A(f"s_mov_b32 s41, {C1_OFF + 128}")
        A.label(f"L_POLL{name}")
        A(f"buffer_load_dword v4, v{areg}, s[8:11], s41 offen sc1")
        A("s_waitcnt vmcnt(0)")
        A("v_cmp_ne_u32 vcc, s63, v4")
        A("s_add_u32 s27, s27, 1")
        A(f"s_cmp_gt_u32 s27, {SPIN_MAX}")
        A(f"s_cbranch_scc1 L_POUT{name}")
        A("s_cmp_lg_u64 vcc, 0")
        A(f"s_cbranch_scc0 L_POUT{name}")
        A(f"s_sleep {OPT['bsleep']}")
        A(f"s_branch L_POLL{name}")
        A.label(f"L_POUT{name}")
    stamp(A, 7)
    A("s_barrier")
    A("s_cmp_lg_u32 s26, 3")
    A("s_cbranch_scc1 L_NOPUBB")
    A("s_mov_b64 exec, 1")
    A("buffer_store_dword v12, v248, s[8:11], s51 offen offset:128 sc1")
    A("s_mov_b64 exec, -1")
    A.label("L_NOPUBB")
    A("s_cmp_lg_u32 s26, 0")
    A("s_cbranch_scc1 L_NOPOLLB")
    A(f"s_sleep {OPT['bdelay']}")
    poll_flags("B", 249)
    A("ds_write_b32 v247, v10 offset:8")
    A("s_waitcnt lgkmcnt(0)")
    A.label("L_NOPOLLB")
    stamp(A, 9)

    srd(A, 28, "s52", "s53", D * D * 2)
    srd(A, 32, "s54", "s55", S_TOK * D * 2)
    A(f"s_mul_i32 s36, s26, {112*896}")
    A("s_lshl_b32 s27, s21, 8")
    A("s_add_u32 s36, s36, s27")
    A("s_mul_i32 s38, s26, 15360")
    A(f"s_add_u32 s38, s38, {L3_STG}")
    A("s_mov_b32 s27, 0")
    A.label("L_STGWAIT")
    A("s_sleep 8")
    A("ds_read_b32 v250, v247 offset:8")
    A("s_waitcnt lgkmcnt(0)")
    A("v_readfirstlane_b32 s40, v250")
    A("s_add_u32 s27, s27, 1")
    A(f"s_cmp_gt_u32 s27, {SPIN_MAX*8}")
    A("s_cbranch_scc1 L_STGGO")
    A("s_cmp_eq_u32 s40, 0")
    A("s_cbranch_scc1 L_STGWAIT")
    A.label("L_STGGO")
    A(f"s_setprio {OPT['stgprio']}")
    A(f"s_sleep {OPT['stgdelay']}")
    for rho in range(2):
        for i in range(15):
            A(f"s_add_u32 s42, s38, {i*1024}")
            A("s_mov_b32 m0, s42")
            A(f"s_add_u32 s43, s36, {(56*rho + 4*i)*896}")
            A("buffer_load_dwordx4 v251, s[28:31], s43 offen lds")
            if OPT["stgsleep"]:
                A(f"s_sleep {OPT['stgsleep']}")
        A("s_waitcnt vmcnt(0)")
        n = 0
        for hh in range(2):
            for s in range(2):
                for i in range(4):
                    for rd in range(2):
                        j = (2 * rho + hh) * 2 + s
                        A(f"ds_read_b64_tr_b16 {vr(WF+16*j+4*i+2*rd,2)}, v{252+i} offset:{(28*hh+16*s+8*rd)*256}")
                        n += 1
                        if n % 8 == 0:
                            A("s_waitcnt lgkmcnt(4)")
        A("s_waitcnt lgkmcnt(0)")
    stamp(A, 5)
    A("s_setprio 3")
    A("s_cmp_lg_u32 s2, 0")
    A("s_cbranch_scc1 L_NOEP1")
    A("s_cmp_lg_u32 s26, 1")
    A("s_cbranch_scc1 L_NOEP1")
    poll_flags("N", 11)
    A.label("L_NOEP1")
    A("s_mov_b32 s27, 0")
    A.label("L_C2POLL")
    A("buffer_load_dword v4, v14, s[8:11], s47 offen sc1")
    A("s_waitcnt vmcnt(0)")
    A("v_subrev_u32 v4, s63, v4")
    A("v_cmp_lt_u32 vcc, 1, v4")
    A("s_add_u32 s27, s27, 1")
    A(f"s_cmp_gt_u32 s27, {SPIN_MAX}")
    A("s_cbranch_scc1 L_C2OUT")
    A("s_cmp_lg_u64 vcc, 0")
    A("s_cbranch_scc1 L_C2POLL")
    A.label("L_C2OUT")
    A("s_barrier")
    A("s_mov_b64 exec, 15")
    A("buffer_load_dword v4, v14, s[8:11], s47 offen sc1")
    A("s_mov_b64 exec, -1")
    A("ds_read_b32 v13, v247")
    A("s_waitcnt lgkmcnt(0)")
    A("v_readfirstlane_b32 s27, v13")
    A("s_nop 3")
    A("s_cmp_eq_u32 s27, 0")
    A("s_cbranch_scc1 L_NOFB")
    A("s_barrier")
    A("s_barrier")
    A.label("L_NOFB")
    stamp(A, 6)
    A("s_mov_b32 s27, 0")
    A("s_mov_b32 s41, 15")
    A("s_mov_b32 s43, 0")
    A.label("L_OPOLL")
    A("s_add_u32 s27, s27, 1")
    A(f"s_cmp_gt_u32 s27, {SPIN_MAX}")
    A("s_cselect_b32 s42, 0, -1")
    A("s_mov_b32 s49, 0")
    A("s_waitcnt vmcnt(0)")
    A("v_cmp_ne_u32 vcc, s63, v4")
    A("s_nop 1")
    A("s_and_b32 s50, vcc_lo, 15")
    for hh in range(4):
        o = OFR + 8 * hh
        A(f"s_bitcmp0_b32 s43, {hh}")
        A(f"s_cbranch_scc1 L_OC{hh}")
        A(f"v_max3_u32 v13, v{o}, v{o+1}, v{o+2}")
        A(f"v_max3_u32 v15, v{o+3}, v{o+4}, v{o+5}")
        A(f"v_max3_u32 v13, v13, v{o+6}, v{o+7}")
        A("v_max_u32 v13, v13, v15")
        A("v_cmp_eq_u32 vcc, -1, v13")
        A("s_nop 1")
        A("s_or_b32 s40, vcc_lo, vcc_hi")
        A("s_and_b32 s40, s40, s42")
        A(f"s_cbranch_scc1 L_OC{hh}")
        A(f"s_bitset0_b32 s41, {hh}")
        A(f"s_bitset1_b32 s49, {hh}")
        A.label(f"L_OC{hh}")
    A("s_orn2_b32 s40, s50, s42")
    A("s_and_b32 s43, s40, s41")
    for hh in range(4):
        A(f"s_bitcmp0_b32 s43, {hh}")
        A(f"s_cbranch_scc1 L_OI{hh}")
        for sx in range(2):
            j = 2 * hh + sx
            A(f"buffer_load_dwordx4 {vr(OFR+4*j,4)}, v{240 if j < 4 else 245}, s[8:11], s46 offen offset:{(j%4)*1024} sc1")
        A.label(f"L_OI{hh}")
    A("s_cmp_eq_u32 s43, s41")
    A("s_cbranch_scc1 L_ONOPOLL")
    A("s_mov_b64 exec, 15")
    A("buffer_load_dword v4, v14, s[8:11], s47 offen sc1")
    A("s_mov_b64 exec, -1")
    A.label("L_ONOPOLL")
    for hh in range(4):
        A(f"s_bitcmp0_b32 s49, {hh}")
        A(f"s_cbranch_scc1 L_OM{hh}")
        for sx in range(2):
            j = 2 * hh + sx
            for i in range(4):
                mfma(A, ACC3 + 16 * i, WF + 16 * j + 4 * i, OFR + 4 * j, ACC3 + 16 * i)
        A.label(f"L_OM{hh}")
    A("s_cmp_lg_u32 s41, 0")
    A("s_cbranch_scc1 L_OPOLL")
    stamp(A, 8)
    A("s_nop 7")
    A("s_nop 3")
    for i in (1, 2, 3):
        for g in range(4):
            A(f"ds_write_b128 v{240+i}, {vr(ACC3+16*i+4*g,4)} offset:{1024*g}")
    A("s_waitcnt lgkmcnt(0)")
    A("s_barrier")
    A("s_cmp_lg_u32 s2, 0")
    A("s_cbranch_scc1 L_NOEP2")
    A("s_cmp_lg_u32 s26, 1")
    A("s_cbranch_scc1 L_NOEP2")
    A("v_mov_b32 v4, s63")
    A(f"s_mov_b32 s27, {EP_OFF}")
    A("s_mov_b64 exec, 1")
    A("buffer_store_dword v4, v248, s[8:11], s27 offen sc1")
    A("s_mov_b64 exec, -1")
    A.label("L_NOEP2")
    R = WF
    for sl in range(3):
        for g in range(4):
            A(f"ds_read_b128 {vr(R+16*sl+4*g,4)}, v244 offset:{4096*sl+1024*g}")
    for sl in range(3):
        for g in range(4):
            A(f"s_waitcnt lgkmcnt({11-4*sl-g})")
            for p in range(2):
                A(f"v_pk_add_f32 {vr(ACC3+4*g+2*p,2)}, {vr(ACC3+4*g+2*p,2)}, {vr(R+16*sl+4*g+2*p,2)}")
    for p in range(8):
        A(f"v_cvt_pk_bf16_f32 v{OFR+p}, v{ACC3+2*p}, v{ACC3+2*p+1}")
    A("s_lshl_b32 s27, s21, 2")
    A("s_add_u32 s27, s27, s26")
    A("s_cmp_ge_u32 s27, 14")
    A("s_cbranch_scc1 L_END")
    for g in (0, 2):
        b = OFR + 2 * g
        A(f"v_permlane32_swap_b32 v{b}, v{b+2}")
        A(f"v_permlane32_swap_b32 v{b+1}, v{b+3}")
    for g in (0, 2):
        b = OFR + 2 * g
        A(f"buffer_store_dwordx4 {vr(b,4)}, v246, s[32:35], s48 offen offset:{16*g} {OPT['outsc']}")
    A("s_branch L_END")

    A.label("L_CWAVE")
    if OPT["cpf"]:
        A("s_getpc_b64 s[44:45]")
        A.label("L_PCREF")
        A(f"s_sub_u32 s44, s44, L_PCREF-{NAME}")
        A("s_subb_u32 s45, s45, 0")
        A("s_lshr_b32 s46, s2, 3")
        A("s_lshl_b32 s46, s46, 2")
        A("s_add_u32 s46, s46, s3")
        A("s_lshl_b32 s46, s46, 9")
        A("v_lshlrev_b32 v100, 7, v2")
        A("v_add_u32 v100, s46, v100")
        A(f"v_min_u32 v100, L_CODEEND-{NAME}-4, v100")
        A("s_mov_b64 exec, 15")
        A("global_load_dword v101, v100, s[44:45]")
        A("s_mov_b64 exec, -1")
    A("s_lshl_b32 s26, s25, 2")
    A("s_add_u32 s26, s26, s3")
    A("s_lshl_b32 s35, s26, 4")
    A("s_add_u32 s35, s35, s24")
    A("s_lshl_b32 s35, s35, 11")
    A(f"s_add_u32 s35, s35, {OF_OFF}")
    A("s_lshl_b32 s33, s26, 4")
    A("s_add_u32 s33, s33, s24")
    A("s_lshl_b32 s33, s33, 7")
    A(f"s_add_u32 s33, s33, {C2_OFF}")
    A("s_waitcnt lgkmcnt(0)")
    epoch_load(A)
    srd(A, 8, "s6", "s7", WS_USED)

    Q = 8
    O = 40
    SB = [104, 120]
    P = 136
    KVB = 144
    K0T = 208
    T2, T3 = 216, 232
    VOFF = 248

    def Kreg(b, s): return KVB + 16 * b + 4 * s
    def Vreg(b, t): return KVB + 16 * b + 8 + 4 * t
    def Qreg(i, s): return Q + 8 * i + 4 * s

    ACC = 16
    XF = 64
    EO = 96
    EA = 128
    XL, XH = 8, 132
    WR = 144
    A(f"v_mov_b32 v5, {L_FLAG}")
    for r in range(4):
        A(f"v_mov_b32 v{64+r}, 0")
    A("ds_write_b128 v5, v[64:67]")
    A("s_and_b32 s27, s3, 1")
    A("s_lshr_b32 s28, s3, 1")
    A("s_lshl_b32 s26, s22, 1")
    A("s_add_u32 s26, s26, s27")
    A("s_lshr_b32 s60, s25, 2")
    A("s_lshl_b32 s60, s60, 4")
    A("s_and_b32 s29, s25, 3")
    A("s_lshl_b32 s29, s29, 1")
    A("s_add_u32 s60, s60, s29")
    A("s_add_u32 s60, s60, s28")
    A("s_lshl_b32 s60, s60, 12")
    A(f"s_add_u32 s60, s60, {KV_OFF}")
    A("s_add_u32 s61, s60, 32768")
    A("s_lshl_b32 s62, s26, 4")
    A("s_add_u32 s62, s62, s25")
    A("s_lshl_b32 s62, s62, 1")
    A("s_add_u32 s62, s62, s28")
    A("s_lshl_b32 s62, s62, 7")
    A(f"s_add_u32 s62, s62, {CA_OFF}")
    A("v_and_b32 v3, 31, v2")
    A("v_lshrrev_b32 v4, 5, v2")
    A("v_bfe_u32 v5, v3, 1, 3")
    A("s_lshl_b32 s29, s28, 12")
    A("s_lshl_b32 s40, s3, 12")
    XQL, XQH = 52, 56
    ACCQ = 112
    WQF = 16
    PL = 143
    for ks in range(4):
        A(f"v_add_u32 v6, {2*ks}, v4")
        A("v_xor_b32 v6, v6, v5")
        A("v_lshlrev_b32 v6, 4, v6")
        A("v_lshl_add_u32 v6, v3, 7, v6")
        A(f"v_add_u32 v{XL+ks}, s29, v6")
        A(f"v_add_u32 v{XH+ks}, 0x10000, v{XL+ks}")
        A(f"v_add_u32 v{XQL+ks}, s40, v6")
        A(f"v_add_u32 v{XQH+ks}, 0x10000, v{XQL+ks}")
    A("v_and_b32 v5, 15, v2")
    A("v_lshrrev_b32 v6, 2, v5")
    A("v_bfe_u32 v7, v2, 4, 1")
    A("v_lshlrev_b32 v7, 1, v7")
    A("v_bfe_u32 v13, v5, 1, 1")
    A("v_add_u32 v7, v7, v13")
    A("s_lshl_b32 s29, s27, 2")
    A("v_add_u32 v7, s29, v7")
    A("v_bfe_u32 v13, v5, 3, 1")
    A("v_lshlrev_b32 v13, 2, v13")
    A("v_xor_b32 v7, v7, v13")
    A("v_lshl_add_u32 v6, v4, 3, v6")
    A("v_lshlrev_b32 v12, 7, v6")
    A("v_lshl_add_u32 v12, v7, 4, v12")
    A("v_and_b32 v13, 1, v5")
    A("v_lshl_add_u32 v12, v13, 3, v12")
    A(f"v_add_u32 v12, {L1_R}, v12")
    A("v_bfe_u32 v7, v2, 4, 1")
    A("v_lshl_add_u32 v7, v7, 1, v13")
    A("v_bfe_u32 v13, v5, 1, 1")
    A("v_cmp_eq_u32 vcc, 3, v7")
    A("v_lshl_add_u32 v7, v7, 1, v13")
    A("v_add_u32 v13, 1, v7")
    A("v_lshlrev_b32 v136, 10, v6")
    A(f"s_mul_i32 s29, s3, {4*56}")
    A(f"s_add_u32 s29, s29, {L1_R}")
    A("v_add_u32 v136, s29, v136")
    A("v_cndmask_b32 v7, v7, 6, vcc")
    A("v_cndmask_b32 v13, v13, 0, vcc")
    A("v_lshl_add_u32 v141, v7, 3, v136")
    A("v_lshl_add_u32 v142, v13, 3, v136")
    A("v_mov_b32 v137, 0")
    A("v_lshlrev_b32 v139, 4, v2")
    A(f"v_add_u32 v136, {L1_R}, v139")
    A("v_bfe_u32 v5, v2, 4, 1")
    A("v_bfe_u32 v6, v2, 3, 1")
    A("s_mul_i32 s29, s24, 28")
    A("v_mul_u32_u24 v6, 27, v6")
    A("v_add_u32 v6, s29, v6")
    A("v_lshrrev_b32 v6, 5, v6")
    A("v_mul_u32_u24 v5, 14, v5")
    A("v_add_u32 v5, v5, v6")
    A("v_cmp_gt_u32 vcc, 32, v2")
    A("v_and_b32 v6, 7, v2")
    A("s_lshl_b32 s29, s3, 3")
    A("v_add_u32 v6, s29, v6")
    A("v_cndmask_b32 v6, 0, v6, vcc")
    A("v_lshl_add_u32 v5, v5, 5, v6")
    A("v_lshlrev_b32 v140, 7, v5")
    A("s_waitcnt lgkmcnt(0)")
    A(f"s_add_u32 s63, s63, {TAGSTEP:#x}")
    A("v_mov_b32 v138, s63")
    A(f"s_mov_b32 s41, {CA_OFF}")
    A("s_mov_b32 s46, -1")
    A("s_mov_b32 s47, 0xffff")
    A("s_cmp_ge_u32 s26, 28")
    A("s_cbranch_scc1 L_RPK")
    A("s_cmp_ge_u32 s26, 14")
    A("s_cbranch_scc1 L_VPART")

    def marker_store():
        for r in range(4):
            A(f"v_mov_b32 v{96+r}, -1")
        for sx in range(2):
            A(f"buffer_store_dwordx4 v[96:99], v139, s[8:11], s35 offen offset:{1024*sx} sc1")

    def signal(ph, tag):
        A("s_waitcnt vmcnt(0)")
        A("s_mov_b64 exec, 1")
        if tag != "r":
            A("buffer_store_dword v138, v137, s[8:11], s62 offen sc1")
        A("buffer_store_dword v138, v137, s[8:11], s33 offen sc1")
        A("s_mov_b64 exec, -1")

    def poll_issue():
        A("s_mov_b64 exec, s[46:47]")
        A(f"buffer_load_dword v{PL}, v140, s[8:11], s41 offen sc1")
        A("s_mov_b64 exec, -1")

    def wqf(ji):
        j = ji % 8
        return WQF + 4 * j if j < 4 else EO + 4 * (j - 4)

    def run_jobs(jobs, transposed, alt=False, fill=None):
        pend = []
        nxt = 0

        def issue(ji):
            kind, tau, ks = jobs[ji]
            if kind == "A":
                for rd in range(2):
                    A(f"ds_read_b64_tr_b16 {vr(WR+16*tau+4*ks+2*rd,2)}, v12 offset:{(tau%5)*8192 + ks*2048 + rd*512}")
                    pend.append(ji)
            if kind == "Q":
                A(f"ds_read_b128 {vr(160+4*(ji%8) if alt else wqf(ji),4)}, v136 offset:{wq_base(tau) - L1_R + ks*1024}")
                pend.append(ji)
                reg = XH + ks if alt else (XQL + ks if tau < 4 else XQH + ks)
                A(f"ds_read_b128 {vr((216 if alt else XF)+4*(ji%8),4)}, v{reg} offset:{(tau%4)*16384}")
            else:
                reg = XL + ks if tau < 4 else XH + ks
                A(f"ds_read_b128 {vr(XF+4*(ji%8),4)}, v{reg} offset:{(tau%4)*16384 + (8192 if kind == 'B' else 0)}")
            pend.append(ji)
        for ji in range(len(jobs)):
            while nxt < len(jobs) and nxt < ji + (4 if jobs[0][0] == "A" else 6):
                issue(nxt)
                nxt += 1
            left = sum(1 for p in pend if p > ji)
            A(f"s_waitcnt lgkmcnt({left})")
            kind, tau, ks = jobs[ji]
            xreg = (216 if alt else XF) + 4 * (ji % 8)
            first = (tau == 0 and ks == 0)
            if kind == "Q":
                mfma(A, ACCQ, 160 + 4 * (ji % 8) if alt else wqf(ji), xreg, None if first else ACCQ)
                for _ in range(6):
                    if fill:
                        A(fill.pop(0))
            else:
                acc = ACC + (16 if kind == "B" else 0)
                wreg = WR + 16 * tau + 4 * ks
                if transposed:
                    mfma(A, acc, wreg, xreg, None if first else acc)
                else:
                    mfma(A, acc, xreg, wreg, None if first else acc)

    def J(kind, taus):
        return [(kind, tau, ks) for tau in taus for ks in range(4)]

    def kvloop(transposed, epilogue, tag):
        for k in range(7):
            A("s_barrier")
            run_jobs(J("A", [k]), transposed)
            if k == 2:
                marker_store()
        A("s_nop 7")
        A("s_nop 1")
        epilogue(0)
        stamp(A, 14)
        A("s_barrier")
        run_jobs(J("B", [0, 1, 2, 3]), transposed)
        signal(0, tag)
        A("s_barrier")
        stamp(A, 4)
        run_jobs(J("Q", [0, 1, 2, 3]), transposed)
        A("s_barrier")
        poll_issue()
        run_jobs(J("B", [4, 5, 6]), transposed)
        A("s_nop 7")
        A("s_nop 1")
        epilogue(1)
        stamp(A, 2)
        if tag == "v":
            A("s_waitcnt vmcnt(4)")
        else:
            A("s_or_b64 vcc, s[48:49], s[50:51]")
            A("s_cbranch_scc1 L_KW3")
            A("s_waitcnt vmcnt(2)")
            A.label("L_KW3")
            A("s_waitcnt vmcnt(3)")

    A("s_mov_b32 s42, 0x3f803f80")
    A("s_mov_b32 s43, 0x3f80")
    A("s_lshl_b32 s27, s26, 2")
    for gi, g in enumerate((0, 2)):
        A(f"v_add_u32 v5, {g}, v4")
        A("v_add_u32 v5, s27, v5")
        A("v_mul_u32_u24 v6, 37, v5")
        A("v_lshrrev_b32 v6, 8, v6")
        A("v_mul_u32_u24 v7, 7, v6")
        A("v_sub_u32 v5, v5, v7")
        A(f"v_cmp_eq_u32 s[{48+2*gi}:{49+2*gi}], 3, v5")
        A("v_lshrrev_b32 v7, 2, v5")
        A("v_lshl_add_u32 v6, v6, 1, v7")
        A("v_and_b32 v5, 3, v5")
        A(f"v_lshlrev_b32 v{EA+gi}, 18, v6")
        A(f"v_lshl_add_u32 v{EA+gi}, v5, 9, v{EA+gi}")
        A(f"v_lshl_add_u32 v{EA+gi}, v3, 4, v{EA+gi}")
        A(f"v_add_u32 v{EA+2+gi}, 0x40000, v{EA+gi}")

    def epi_k(ph):
        a = ACC + 16 * ph
        o = EO if ph == 0 else XF
        for p in range(8):
            A(f"v_cvt_pk_bf16_f32 v{o+p}, v{a+2*p}, v{a+2*p+1}")
        A("s_nop 1")
        for g in (0, 2):
            b = o + 2 * g
            A(f"v_permlane32_swap_b32 v{b}, v{b+2}")
            A(f"v_permlane32_swap_b32 v{b+1}, v{b+3}")
        for gi, g in enumerate((0, 2)):
            b = o + 2 * g
            T = o + 8 + 4 * gi
            lab = f"L_NOMIX_{ph}_{gi}"
            A(f"s_mov_b64 exec, s[{48+2*gi}:{49+2*gi}]")
            A(f"s_cbranch_execz {lab}")
            A(f"v_mov_b32 v{T}, v{b+2}")
            A(f"v_mov_b32 v{T+1}, v{b+3}")
            A(f"v_mov_b32 v{T+2}, s42")
            A(f"v_mov_b32 v{T+3}, s43")
            A(f"v_mov_b32 v{b+2}, s42")
            A(f"v_mov_b32 v{b+3}, s43")
            A(f"buffer_store_dwordx4 {vr(T,4)}, v{EA+2+gi}, s[8:11], s{60+ph} offen sc1")
            A.label(lab)
            A("s_mov_b64 exec, -1")
            A(f"buffer_store_dwordx4 {vr(b,4)}, v{EA+gi}, s[8:11], s{60+ph} offen sc1")
    A("s_nop 0")
    kvloop(True, epi_k, "k")
    A("s_branch L_QPHASE")

    A.label("L_VPART")
    A("s_sub_u32 s27, s26, 14")
    A("s_lshl_b32 s27, s27, 5")
    A("v_add_u32 v5, s27, v3")
    A("v_mul_u32_u24 v6, 2341, v5")
    A("v_lshrrev_b32 v6, 16, v6")
    A("v_mul_u32_u24 v7, 28, v6")
    A("v_sub_u32 v5, v5, v7")
    A("v_cmp_le_u32 s[48:49], 24, v5")
    A("v_cmp_eq_u32 vcc, 24, v5")
    A(f"v_lshlrev_b32 v{EA}, 18, v6")
    A("v_lshl_add_u32 v5, v4, 5, v5")
    A(f"v_lshl_add_u32 v{EA}, v5, 4, v{EA}")
    A("v_mov_b32 v5, 0x3f803f80")
    A("v_cndmask_b32 v48, 0, v5, vcc")
    for r in range(1, 4):
        A(f"v_mov_b32 v{48+r}, v48")

    def epi_v(ph):
        a = ACC + 16 * ph
        o = EO if ph == 0 else XF
        for p in range(8):
            A(f"v_cvt_pk_bf16_f32 v{o+p}, v{a+2*p}, v{a+2*p+1}")
        for tt in range(2):
            A(f"buffer_store_dwordx4 {vr(o+4*tt,4)}, v{EA}, s[8:11], s{60+ph} offen offset:{2048+1024*tt} sc1")
        A("s_mov_b64 exec, s[48:49]")
        for tt in range(2):
            A(f"buffer_store_dwordx4 v[48:51], v{EA}, s[8:11], s{60+ph} offen offset:{2048+1024*tt+64} sc1")
        A("s_mov_b64 exec, -1")
    kvloop(False, epi_v, "v")
    A("s_branch L_QPHASE")

    A.label("L_RPK")
    A("s_sub_u32 s27, s22, 14")
    A("s_lshl_b32 s27, s27, 4")
    A("s_add_u32 s27, s27, s25")
    A(f"s_mul_i32 s29, s3, {4*28*1024}")
    A("s_lshl_b32 s40, s27, 10")
    A("s_add_u32 s29, s29, s40")
    A(f"buffer_load_dword v{XF}, v137, s[8:11], s29 offen sc1")
    A("s_lshl_b32 s62, s27, 7")
    A("s_lshl_b32 s40, s3, 12")
    A("s_add_u32 s62, s62, s40")
    A(f"s_add_u32 s62, s62, {C3_OFF}")
    A("s_waitcnt vmcnt(0)")
    A("s_barrier")
    for hh in range(4):
        for rd in range(2):
            A(f"ds_read_b64_tr_b16 {vr(XF+4*hh+2*rd,2)}, v{141+(hh&1)} offset:{56*hh + rd*4096}")
    A("s_cmp_ge_u32 s27, 28")
    A("s_cbranch_scc1 L_RPKSKIP")
    for hh in range(4):
        A(f"s_waitcnt lgkmcnt({6-2*hh})")
        A(f"buffer_store_dwordx4 {vr(XF+4*hh,4)}, v139, s[8:11], s29 offen sc1")
        A(f"s_add_u32 s29, s29, {28*1024}")
    A.label("L_RPKSKIP")
    A("s_waitcnt lgkmcnt(0)")
    if OPT["rpkwait"]:
        A("s_waitcnt vmcnt(0)")
        A("s_mov_b64 exec, 1")
        A("buffer_store_dword v138, v137, s[8:11], s62 offen sc1")
        A("s_mov_b64 exec, -1")
        A("s_barrier")
    else:
        A("s_barrier")
        A("s_waitcnt vmcnt(0)")
        A("s_mov_b64 exec, 1")
        A("buffer_store_dword v138, v137, s[8:11], s62 offen sc1")
        A("s_mov_b64 exec, -1")
    stamp(A, 14)
    marker_store()
    A("s_barrier")
    signal(0, "r")
    A("s_barrier")
    run_jobs(J("Q", [0, 1, 2, 3]), True)
    A("s_barrier")
    poll_issue()
    A("s_waitcnt vmcnt(0)")

    A.label("L_QPHASE")
    A("v_mov_b32 v3, v139")
    for j in range(4):
        A(f"v_add_u32 v{VOFF+j}, {j*4096}, v3")
    A("s_mov_b32 s34, 0")
    A("s_lshl_b32 s23, s24, 18")
    A(f"s_add_u32 s23, s23, {KV_OFF}")
    A("s_lshl_b32 s27, s3, 16")
    A("s_add_u32 s27, s27, s23")
    A("s_add_u32 s12, s6, s27"); A("s_addc_u32 s13, s7, 0"); A("s_mov_b32 s14, 65536"); A("s_mov_b32 s15, 0x00020000")
    for i in range(3):
        A(f"s_add_u32 s27, s3, {i+1}")
        A("s_and_b32 s27, s27, 3")
        A("s_mul_i32 s27, s27, 12288")
        A(f"s_add_u32 s27, s27, {L2_CMB + i*4096}")
        A(f"v_add_u32 v{4+i}, s27, v3")
    A("s_mul_i32 s27, s3, 12288")
    A(f"s_add_u32 s27, s27, {L2_CMB}")
    A("v_add_u32 v7, s27, v3")
    A("s_mov_b32 s28, 0")
    A("s_mov_b32 s29, -1")

    def kv_prologue_loads(b0=0, b1=4):
        for b in range(b0, b1):
            for s in range(2):
                A(f"buffer_load_dwordx4 {vr(Kreg(b,s),4)}, v{VOFF+b}, s[12:15], 0 offen offset:{1024*s} {LD}")
            if b < 3:
                for t in range(2):
                    A(f"buffer_load_dwordx4 {vr(Vreg(b,t),4)}, v{VOFF+b}, s[12:15], 0 offen offset:{2048+1024*t} {LD}")

    def zero_list():
        return [f"v_mov_b32 v{O+r}, 0" for r in range(64)] + [f"v_mov_b32 v{Vreg(3,1)+r}, 0" for r in range(4)]

    def zero_state():
        for z in zero_list():
            A(z)
        for r in range(4):
            A(f"v_mov_b32 v{P+4+r}, 0")

    def poll_check():
        A(f"v_cmp_ne_u32 vcc, s63, v{PL}")
        A("s_nop 1")
        A("s_and_b64 vcc, vcc, s[46:47]")
        A("s_cselect_b32 s40, 1, 0")

    def first_loads():
        for s in range(2):
            A(f"buffer_load_dwordx4 {vr(K0T+4*s,4)}, v3, s[8:11], s23 offen offset:{1024*s} {LD}")
        kv_prologue_loads(0, 1)

    for ks in range(4):
        A(f"v_mov_b32 v{XH+ks}, v{XQH+ks}")
    stamp(A, 3)
    poll_check()
    A("s_cbranch_scc1 L_ARETRY")
    first_loads()
    A("s_branch L_ADONE1")
    A.label("L_ARETRY")
    poll_issue()
    A.label("L_ADONE1")
    ZL = zero_list()
    run_jobs(J("Q", [4, 5, 6]), True, alt=True, fill=ZL)
    assert not ZL
    A("s_cmp_eq_u32 s40, 0")
    A("s_cbranch_scc1 L_AOUT")
    A("s_mov_b32 s27, 0")
    A.label("L_APOLL")
    A("s_waitcnt vmcnt(0)")
    poll_check()
    A("s_cbranch_scc0 L_AOK")
    A("s_add_u32 s27, s27, 1")
    A(f"s_cmp_gt_u32 s27, {SPIN_MAX}")
    A("s_cbranch_scc1 L_AOK")
    poll_issue()
    A("s_branch L_APOLL")
    A.label("L_AOK")
    first_loads()
    A.label("L_AOUT")
    stamp(A, 5)
    stamp(A, 1)
    A(f"v_mov_b32 v14, {f32bits(QSCALE):#x}")
    A(f"v_mov_b32 v15, {f32bits(QSCALE):#x}")
    A("s_lshl_b32 s27, s3, 11")
    A(f"s_add_u32 s27, s27, {L_QX}")
    A("v_add_u32 v12, s27, v3")
    for i in range(4):
        A(f"s_add_u32 s27, s3, {i+1}")
        A("s_and_b32 s27, s27, 3")
        A("s_lshl_b32 s27, s27, 11")
        A(f"s_add_u32 s27, s27, {L_QX}")
        A(f"v_add_u32 v{136+i}, s27, v3")
    QT = 16
    for p in range(8):
        A(f"v_pk_mul_f32 {vr(ACCQ+2*p,2)}, {vr(ACCQ+2*p,2)}, v[14:15]")
    for p in range(8):
        A(f"v_cvt_pk_bf16_f32 v{QT+p}, v{ACCQ+2*p}, v{ACCQ+2*p+1}")
    A("s_mov_b64 exec, s[28:29]")
    A(f"v_mov_b32 v{QT+6}, 0")
    A(f"v_mov_b32 v{QT+7}, 0")
    A("s_mov_b64 exec, -1")
    A(f"ds_write_b128 v12, {vr(QT,4)}")
    A("s_waitcnt vmcnt(4)")
    stamp(A, 6)
    t = T2
    mfma(A, t, K0T, QT, None)
    mfma(A, t, K0T + 4, QT + 4, t)
    for r in range(4):
        A(f"v_mov_b32 v{P+4+r}, 0")
    kv_prologue_loads(1, 2)
    A("s_nop 3")
    A(f"v_max3_f32 v{t}, v{t}, v{t+1}, v{t+2}")
    for k in range(3, 15, 2):
        A(f"v_max3_f32 v{t}, v{t}, v{t+k}, v{t+k+1}")
    A(f"v_max_f32 v{t}, v{t}, v{t+15}")
    A("s_mov_b64 exec, s[28:29]")
    A(f"v_cvt_pk_bf16_f32 v{QT+6}, -v{t}, 0")
    A("s_mov_b64 exec, -1")
    A(f"ds_write_b128 v12, {vr(QT+4,4)} offset:1024")
    A("s_waitcnt lgkmcnt(0)")
    A("s_barrier")
    for i in range(4):
        for s in range(2):
            A(f"ds_read_b128 {vr(Qreg(i,s),4)}, v{136+i} offset:{1024*s}")
    kv_prologue_loads(2, 4)
    A(f"v_mov_b32 v{K0T}, {L_FLAG}")
    A("s_waitcnt lgkmcnt(0)")

    A.label("L_MAIN")
    A("s_waitcnt vmcnt(10)")
    A("s_mov_b32 s30, 16384")
    A("s_mov_b32 s31, 0")
    mfma(A, SB[0], Kreg(0, 0), Qreg(0, 0), None)
    mfma(A, SB[0], Kreg(0, 1), Qreg(0, 1), SB[0])
    A("s_nop 7")
    A("s_nop 3")
    stamp(A, 7)
    cstamp(A, 12)
    L = SB[0]

    def body(last, chk=True):
        for tb in range(4):
            for qt in range(4):
                u = tb * 4 + qt
                sc = SB[u % 2]
                sn = SB[(u + 1) % 2]
                ntb, nqt = (tb, qt + 1) if qt < 3 else ((tb + 1) % 4, 0)
                ptb, pqt = (tb, qt - 1) if qt > 0 else ((tb + 3) % 4, 3)
                fin = last and tb == 3 and qt == 3

                def ex(k, extra=()):
                    extra = list(extra)
                    for j in range(4):
                        A(f"v_exp_f32 v{sc+4*k+j}, v{sc+4*k+j}")
                        if extra:
                            A(extra.pop(0))
                    assert not extra
                    A(f"v_cvt_pk_bf16_f32 v{P+2*k}, v{sc+4*k}, v{sc+4*k+1}")
                    A(f"v_cvt_pk_bf16_f32 v{P+2*k+1}, v{sc+4*k+2}, v{sc+4*k+3}")
                aft = [None, None, None, None]
                if qt == 3 and not last:
                    for s in range(2):
                        aft[s] = f"buffer_load_dwordx4 {vr(Kreg(tb,s),4)}, v{VOFF+tb}, s[12:15], s30 offen offset:{1024*s} {LD}"
                if qt == 1 and (not last or tb == 0):
                    b_ = (tb + 3) % 4
                    so = "s30" if tb >= 1 else "s31"
                    for t in range(2):
                        aft[t] = f"buffer_load_dwordx4 {vr(Vreg(b_,t),4)}, v{VOFF+b_}, s[12:15], {so} offen offset:{2048+1024*t} {LD}"
                if qt == 2:
                    if not last:
                        aft[3] = "s_waitcnt vmcnt(8)"
                    elif tb < 3:
                        aft[3] = f"s_waitcnt vmcnt({[8, 4, 0][tb]})"
                if chk and not last and tb == 3 and qt == 0:
                    aft[0] = f"ds_read_b32 v{K0T+1}, v{K0T} offset:8"
                if chk and not last and tb == 3 and qt == 2:
                    aft[0] = "s_waitcnt lgkmcnt(0)"
                    aft[1] = f"v_readfirstlane_b32 s40, v{K0T+1}"
                if last and tb == 3 and qt >= 2:
                    i = qt - 2
                    for g in range(4):
                        aft[g] = f"ds_write_b128 v{4+i}, {vr(O+16*i+4*g,4)} offset:{1024*g}"
                if not fin:
                    mfma(A, sn, Kreg(ntb, 0), Qreg(nqt, 0), None)
                if aft[0]:
                    A(aft[0])
                ex(0)
                mfma(A, O + 16 * pqt, Vreg(ptb, 1), P + 4, O + 16 * pqt)
                if aft[1]:
                    A(aft[1])
                ex(1)
                if not fin:
                    mfma(A, sn, Kreg(ntb, 1), Qreg(nqt, 1), sn)
                if aft[2]:
                    A(aft[2])
                ex(2)
                mfma(A, O + 16 * qt, Vreg(tb, 0), P, O + 16 * qt)
                if aft[3]:
                    A(aft[3])
                e_ = []
                if tb == 3 and qt == 3 and not last:
                    e_ = ["s_add_u32 s31, s31, 16384", "s_add_u32 s30, s30, 16384", "s_cmp_lt_u32 s31, 49152"]
                ex(3, e_)

    if OPT["unroll"]:
        body(False, chk=True)
        A("s_cmp_lg_u32 s40, 0")
        A("s_cbranch_scc1 L_BOK")
        A("s_mov_b32 s27, 0")
        A.label("L_BWAIT")
        A(f"ds_read_b32 v{K0T+1}, v{K0T} offset:8")
        A("s_waitcnt lgkmcnt(0)")
        A(f"v_readfirstlane_b32 s40, v{K0T+1}")
        A("s_add_u32 s27, s27, 1")
        A(f"s_cmp_gt_u32 s27, {SPIN_MAX*64}")
        A("s_cbranch_scc1 L_BOK")
        A("s_cmp_eq_u32 s40, 0")
        A("s_cbranch_scc1 L_BWAIT")
        A.label("L_BOK")
        body(False, chk=False)
        body(False, chk=False)
    else:
        A.raw(".p2align 6")
        A.label("L_LOOP")
        body(False)
        A("s_cbranch_scc0 L_LAST")
        A("s_cmp_lg_u32 s40, 0")
        A("s_cbranch_scc1 L_LOOP")
        A("s_mov_b32 s27, 0")
        A.label("L_BWAIT")
        A(f"ds_read_b32 v{K0T+1}, v{K0T} offset:8")
        A("s_waitcnt lgkmcnt(0)")
        A(f"v_readfirstlane_b32 s40, v{K0T+1}")
        A("s_add_u32 s27, s27, 1")
        A(f"s_cmp_gt_u32 s27, {SPIN_MAX*64}")
        A("s_cbranch_scc1 L_LOOP")
        A("s_cmp_eq_u32 s40, 0")
        A("s_cbranch_scc1 L_BWAIT")
        A("s_branch L_LOOP")
    A.label("L_LAST")
    body(True)
    A("s_nop 1")
    mfma(A, O + 48, Vreg(3, 1), P + 4, O + 48)
    stamp(A, 8)
    cstamp(A, 13)
    for g in range(4):
        A(f"ds_write_b128 v6, {vr(O+32+4*g,4)} offset:{1024*g}")
    A(f"v_mov_b32 v{L}, {f32bits(2.0**40):#x}")
    A(f"v_mov_b32 v{L+1}, {f32bits(2.0**-40):#x}")
    A("s_add_u32 s26, s63, 1")
    A("s_nop 0")
    A(f"v_mov_b32 v{L+8}, 0")
    A(f"v_mov_b32 v{L+9}, s26")
    A("s_cmp_lg_u32 s34, 0")
    A("s_cbranch_scc1 L_NOFLAG")
    A(f"v_min3_f32 v{L+3}, v{O+12}, v{O+28}, v{O+44}")
    A(f"v_add_f32 v{L+4}, v{O+12}, v{O+28}")
    A(f"v_add_f32 v{L+5}, v{O+44}, v{O+60}")
    A(f"v_min_f32 v{L+3}, v{L+3}, v{O+60}")
    A(f"v_add_f32 v{L+4}, v{L+4}, v{L+5}")
    A(f"v_cmp_nlt_f32 vcc, v{L+4}, v{L}")
    A(f"v_cmp_nge_f32 s[40:41], v{L+3}, v{L+1}")
    A("s_cmp_eq_u32 s3, 0")
    A("s_cselect_b32 s41, s41, 0")
    A("s_or_b32 s41, s41, vcc_hi")
    A("s_cbranch_scc0 L_NOFLAG")
    A(f"v_mov_b32 v{L+5}, {L2_FLAG}")
    A(f"v_mov_b32 v{L+6}, 1")
    A(f"ds_write_b32 v{L+5}, v{L+6}")
    A.label("L_NOFLAG")
    A(f"v_mov_b32 v{L+5}, {L2_FLAG}")
    A("s_waitcnt lgkmcnt(0)")
    A("s_barrier")
    stamp(A, 9)
    R = KVB
    A(f"ds_read_b32 v{L+6}, v{L+5}")
    for sl in range(3):
        for g in range(4):
            A(f"ds_read_b128 {vr(R+16*sl+4*g,4)}, v7 offset:{4096*sl+1024*g}")
    A("s_waitcnt lgkmcnt(12)")
    A(f"v_readfirstlane_b32 s26, v{L+6}")
    A("s_nop 3")
    A("s_cmp_gt_u32 s26, s34")
    A("s_cbranch_scc1 L_FALLBACK")

    def hint():
        A("s_mov_b64 exec, 1")
        A(f"buffer_store_dword v{L+9}, v{L+8}, s[8:11], s33 offen sc1")
        A("s_mov_b64 exec, -1")
    if OPT["hint"] == "b8":
        hint()
    OO = O + 48
    for sl in range(3):
        for g in range(4):
            A(f"s_waitcnt lgkmcnt({11-4*sl-g})")
            for p in range(2):
                A(f"v_pk_add_f32 {vr(OO+4*g+2*p,2)}, {vr(OO+4*g+2*p,2)}, {vr(R+16*sl+4*g+2*p,2)}")
    A(f"v_mov_b32 v{L}, v{OO+12}")
    A(f"v_mov_b32 v{L+1}, v{OO+12}")
    A("s_nop 1")
    A(f"v_permlane32_swap_b32 v{L}, v{L+1}")
    A("s_nop 0")
    A(f"v_rcp_f32 v{L+2}, v{L+1}")
    A("s_nop 0")
    A(f"v_mov_b32 v{L+3}, v{L+2}")
    for p in range(8):
        A(f"v_pk_mul_f32 {vr(OO+2*p,2)}, {vr(OO+2*p,2)}, {vr(L+2,2)}")
    for p in range(8):
        A(f"v_cvt_pk_bf16_f32 v{R+p}, v{OO+2*p}, v{OO+2*p+1}")
    A("s_mov_b64 exec, s[28:29]")
    A(f"v_mov_b32 v{R+6}, 0")
    A(f"v_mov_b32 v{R+7}, 0")
    A("s_mov_b64 exec, -1")
    for p in range(8):
        A(f"v_min_u32 v{R+p}, -2, v{R+p}")
        if p % 4 == 3:
            A(f"buffer_store_dwordx4 {vr(R+p-3,4)}, v3, s[8:11], s35 offen offset:{1024*(p//4)} sc1")
    if OPT["hint"] != "b8":
        hint()
    stamp(A, 10)
    A("s_branch L_END")

    A.label("L_FALLBACK")
    A("s_mov_b32 s34, 1")
    A("s_waitcnt vmcnt(0) lgkmcnt(0)")
    A("s_mov_b64 exec, s[28:29]")
    for i in range(4):
        A(f"v_mov_b32 v{Qreg(i,1)+2}, 0")
        A(f"v_mov_b32 v{Qreg(i,1)+3}, 0")
    A("s_mov_b64 exec, -1")
    M = T2
    for i in range(4):
        A(f"v_mov_b32 v{M+i}, 0xff800000")
    A("s_mov_b32 s31, 0")
    A.label("L_MAXLOOP")
    for s in range(2):
        A(f"buffer_load_dwordx4 {vr(K0T+4*s,4)}, v3, s[12:15], s31 offen offset:{1024*s} {LD}")
    A("s_waitcnt vmcnt(0)")
    for i in range(4):
        t = O + 16 * i
        mfma(A, t, K0T, Qreg(i, 0), None)
        mfma(A, t, K0T + 4, Qreg(i, 1), t)
    A("s_nop 7")
    A("s_nop 7")
    for i in range(4):
        t = O + 16 * i
        for k in range(0, 16, 2):
            A(f"v_max3_f32 v{M+i}, v{M+i}, v{t+k}, v{t+k+1}")
    A("s_add_u32 s31, s31, 4096")
    A("s_cmp_lt_u32 s31, 65536")
    A("s_cbranch_scc1 L_MAXLOOP")
    for i in range(4):
        A(f"v_mov_b32 v{M+4+i}, v{M+i}")
    A("s_nop 1")
    for i in range(4):
        A(f"v_permlane32_swap_b32 v{M+i}, v{M+4+i}")
    A("s_nop 1")
    for i in range(4):
        A(f"v_max_f32 v{M+i}, v{M+i}, v{M+4+i}")
    A(f"v_and_b32 v{M+8}, 31, v2")
    A(f"v_lshlrev_b32 v{M+8}, 2, v{M+8}")
    for i in range(4):
        A(f"s_add_u32 s26, s3, {i+1}")
        A("s_and_b32 s26, s26, 3")
        A("s_lshl_b32 s26, s26, 9")
        A(f"s_add_u32 s26, s26, {L2_MX}")
        A(f"v_add_u32 v{M+9+i}, s26, v{M+8}")
        A("s_lshl_b32 s27, s3, 7")
        A(f"v_add_u32 v{M+13}, s27, v{M+9+i}")
        A(f"ds_write_b32 v{M+13}, v{M+i}")
    A("s_waitcnt lgkmcnt(0)")
    A("s_barrier")
    for i in range(4):
        for w in range(4):
            A(f"ds_read_b32 v{O+4*i+w}, v{M+9+i} offset:{128*w}")
            if (4 * i + w) % 8 == 7:
                A("s_waitcnt lgkmcnt(0)")
    for i in range(4):
        t = O + 4 * i
        A(f"v_max3_f32 v{t}, v{t}, v{t+1}, v{t+2}")
        A(f"v_max_f32 v{t}, v{t}, v{t+3}")
        A(f"v_sub_f32 v{t}, 0, v{t}")
        A(f"v_cvt_pk_bf16_f32 v{t+1}, v{t}, 0")
        A(f"v_lshlrev_b32 v{t+2}, 16, v{t+1}")
        A(f"v_sub_f32 v{t}, v{t}, v{t+2}")
        A(f"v_cvt_pk_bf16_f32 v{t+2}, v{t}, 0")
        A(f"v_lshlrev_b32 v{t+3}, 16, v{t+2}")
        A(f"v_sub_f32 v{t}, v{t}, v{t+3}")
        A(f"v_or_b32 v{t+1}, v{t+1}, v{t+3}")
        A(f"v_cvt_pk_bf16_f32 v{t+2}, v{t}, 0")
    A("s_mov_b64 exec, s[28:29]")
    for i in range(4):
        t = O + 4 * i
        A(f"v_mov_b32 v{Qreg(i,1)+2}, v{t+1}")
        A(f"v_mov_b32 v{Qreg(i,1)+3}, v{t+2}")
    A("s_mov_b64 exec, -1")
    kv_prologue_loads()
    zero_state()
    A(f"v_mov_b32 v{K0T}, {L_FLAG}")
    A("s_branch L_MAIN")

    A.label("L_END")
    stamp_flush(A)
    A.label("L_EXIT")
    A("s_endpgm")
    A.label("L_CODEEND")


HEADER = """; MHA block (B=1, S=2048, D=448, H=16) for gfx950, one persistent launch:
;   P1 QKV projection -> (counters) -> P2 attention -> (hint + marker check) -> P3 output projection.
"""


def main(out):
    A = Asm()
    A.raw(HEADER.rstrip())
    A.raw(f"; @launch grid=(256,1,1) block=(512,1,1) lds={LDS_TOTAL}")
    A.raw('.amdgcn_target "amdgcn-amd-amdhsa--gfx950"')
    A.raw(".text")
    gen(A)
    A.raw('.section .rodata,"a"')
    A.raw(f""".p2align 6
.amdhsa_kernel {NAME}
  .amdhsa_next_free_vgpr 256
  .amdhsa_next_free_sgpr {102 if STAMP else 64}
  .amdhsa_accum_offset 256
  .amdhsa_group_segment_fixed_size 0
  .amdhsa_kernarg_size 48
  .amdhsa_user_sgpr_count 2
  .amdhsa_user_sgpr_kernarg_segment_ptr 1
  .amdhsa_system_sgpr_workgroup_id_x 1
.end_amdhsa_kernel""")
    open(out, "w").write(A.text())


if __name__ == "__main__":
    out = sys.argv[1] if len(sys.argv) > 1 else "standalone__mha_block__prompt.s"
    for a in sys.argv[2:]:
        if a == "stamp":
            STAMP = True
        elif a == "dbgstamp":
            STAMP = True
            DBGSTAMP = True
        elif "=" in a:
            k, v = a.split("=", 1)
            assert k in OPT, k
            OPT[k] = v
    main(out)
```

```python
import sys, math, struct

S_TOK, D, H, DH = 2048, 448, 16, 28
WQF_OFF = 0
KV_OFF = 2 << 20
OF_OFF = 6 << 20
C1_OFF = 8 << 20
C2_OFF = (8 << 20) + 65536
EP_OFF = (8 << 20) + 196608 + 1024
C3_OFF = (8 << 20) + 196608 + 4096
CA_OFF = (8 << 20) + 262144
WS_USED = (8 << 20) + 262144 + 131072
TAGSTEP = 0x9E3779B8
QSCALE = math.log2(math.e) / math.sqrt(DH)
SPIN_MAX = 40000
KVB_OF_HEAD = [0, 1, 14, 2, 3, 4, 5, 6, 7, 8, 9, 10, 11, 15, 12, 13]
KVB_LO = sum(v << (4 * i) for i, v in enumerate(KVB_OF_HEAD[:8]))
KVB_HI = sum(v << (4 * i) for i, v in enumerate(KVB_OF_HEAD[8:]))
INIT_HEAD = 2

OPT = dict(ldsc="sc1", ldq="", outsc="", stgprio="3", stgsleep="3", stgdelay="32", pollsleep="4", hint="b8", plan="e", wqp="5", asig="9", achk="13", unroll="1", cpf="", rpkwait="1", bsleep="8", bdelay="16")


def f32bits(x):
    return struct.unpack("<I", struct.pack("<f", x))[0]


class Asm:
    def __init__(self):
        self.l = []

    def __call__(self, s):
        self.l.append("  " + s)

    def label(self, s):
        self.l.append(s + ":")

    def raw(self, s):
        self.l.append(s)

    def text(self):
        return "\n".join(self.l) + "\n"


def vr(a, n):
    return f"v[{a}:{a+n-1}]"


STAMP = False
STAMP_OFF = 16 << 20
NSTAMP = 16


def stamp_init(A):
    if not STAMP:
        return
    for k in range(NSTAMP):
        A(f"s_mov_b32 s{64+2*k}, 0")
    A("s_memrealtime s[64:65]")


def stamp(A, slot):
    if STAMP:
        A(f"s_memrealtime s[{64+2*slot}:{65+2*slot}]")


def cstamp(A, slot):
    if STAMP:
        A(f"s_memtime s[{64+2*slot}:{65+2*slot}]")


DBGSTAMP = False


def stamp_flush(A):
    if not STAMP:
        return
    A("s_waitcnt vmcnt(0)")
    A(f"s_memrealtime s[{64+2*(NSTAMP-1)}:{65+2*(NSTAMP-1)}]")
    A("s_waitcnt lgkmcnt(0)")
    if DBGSTAMP:
        A("s_and_b32 s100, s3, 3")
        A("s_cmp_lg_u32 s100, 0")
        A("s_cbranch_scc1 L_EXIT")
        A("s_mov_b32 s96, s4"); A("s_mov_b32 s97, s5"); A("s_mov_b32 s98, 256"); A("s_mov_b32 s99, 0x00020000")
        A("s_mov_b64 exec, 1")
        A("v_mov_b32 v0, 0")
        A("s_not_b32 s100, s64")
        A("v_mov_b32 v1, s100")
        A("buffer_atomic_umax v1, v0, s[96:99], 0 offen offset:4 sc1")
        A("s_cmp_lt_u32 s3, 4")
        A("s_cbranch_scc0 L_DBGL")
        for w, sl in ((2, 0), (3, 1), (4, 3), (5, 5), (6, 7), (7, 8), (8, 10)):
            A(f"v_mov_b32 v1, s{64+2*sl}")
            A(f"buffer_atomic_umax v1, v0, s[96:99], 0 offen offset:{4*w} sc1")
            A("s_nop 1")
        A("s_branch L_EXIT")
        A.label("L_DBGL")
        for w, sl in ((9, 4), (10, 1), (11, 2), (12, 5), (13, 8), (14, 15)):
            A(f"v_mov_b32 v1, s{64+2*sl}")
            A(f"buffer_atomic_umax v1, v0, s[96:99], 0 offen offset:{4*w} sc1")
            A("s_nop 1")
        return
    A(f"s_add_u32 s96, s6, {STAMP_OFF}")
    A("s_addc_u32 s97, s7, 0")
    A("s_mov_b32 s98, 0x100000")
    A("s_mov_b32 s99, 0x00020000")
    A("s_lshl_b32 s100, s2, 10")
    A("s_lshl_b32 s101, s3, 6")
    A("s_add_u32 s100, s100, s101")
    A("s_mov_b64 exec, 1")
    A("v_mov_b32 v0, 0")
    for k in range(NSTAMP):
        A(f"v_mov_b32 v1, s{64+2*k}")
        A(f"buffer_store_dword v1, v0, s[96:99], s100 offen offset:{4*k}")
        A("s_nop 1")


def mfma(A, d, a, b, c):
    cs = "0" if c is None else vr(c, 16)
    A(f"v_mfma_f32_32x32x16_bf16 {vr(d,16)}, {vr(a,4)}, {vr(b,4)}, {cs}")


def epoch_load(A):
    A(f"s_add_u32 s56, s6, {EP_OFF}")
    A("s_addc_u32 s57, s7, 0")
    A("s_load_dword s63, s[56:57], 0")


def srd(A, d, lo, hi, size):
    A(f"s_mov_b32 s{d}, {lo}")
    A(f"s_mov_b32 s{d+1}, {hi}")
    A(f"s_mov_b32 s{d+2}, {size}")
    A(f"s_mov_b32 s{d+3}, 0x00020000")


L1_X = 0
L1_R = 114688
L_QX = L1_R + 4 * 8192
L_FLAG = 155648
L2_MX = L_FLAG + 256
L3_STG = 0
L2_CMB = 65536
L3_RED = 0
LDS_TOTAL = 163840
L2_FLAG = L_FLAG


def wq_base(tau):
    return L1_R + 2 * 8192 + tau * 4096 if tau < 4 else L1_R + (tau - 4) * 4096


STEPS = [("A", [t]) for t in range(7)] + [("B", [0, 1, 2, 3]), ("Q", [0, 1, 2, 3, 4, 5, 6]), ("B", [4, 5, 6])]
NSTEP = len(STEPS)
PLAN = [[0, 1, 2, 3], [4], [5], [6], [7], [], [], [], [8, 9], []]

NAME = "standalone__mha_block__prompt_kernel"


def gen(A):
    LD = OPT["ldsc"]
    A.raw(f".globl {NAME}")
    A.raw(".p2align 8")
    A.raw(f".type {NAME},@function")
    A.label(NAME)
    A("s_cmp_ge_u32 s2, 256")
    A("s_cbranch_scc1 L_EXIT")
    stamp_init(A)
    A("s_load_dwordx4 s[16:19], s[0:1], 0")
    A("s_load_dwordx4 s[4:7], s[0:1], 32")
    A("s_load_dwordx4 s[52:55], s[0:1], 16")
    A("v_lshrrev_b32 v1, 6, v0")
    A("v_and_b32 v2, 63, v0")
    A("v_readfirstlane_b32 s3, v1")
    A("s_and_b32 s24, s2, 3")
    A("s_lshl_b32 s24, s24, 2")
    A("s_bfe_u32 s25, s2, 0x20003")
    A("s_add_u32 s24, s24, s25")
    A("s_bfe_u32 s25, s2, 0x10002")
    A("s_lshl_b32 s25, s25, 3")
    A("s_lshr_b32 s20, s2, 5")
    A("s_add_u32 s25, s25, s20")
    A("s_cmp_ge_u32 s24, 8")
    A(f"s_mov_b32 s20, {KVB_LO:#x}")
    A(f"s_cselect_b32 s20, {KVB_HI:#x}, s20")
    A("s_and_b32 s21, s24, 7")
    A("s_lshl_b32 s21, s21, 2")
    A("s_lshr_b32 s22, s20, s21")
    A("s_and_b32 s22, s22, 15")
    A("s_and_b32 s39, s24, 3")
    A("s_lshl_b32 s39, s39, 1")
    A("s_add_u32 s39, s39, s25")
    A("s_mul_i32 s20, s39, 37")
    A("s_lshr_b32 s20, s20, 8")
    A("s_mul_i32 s20, s20, 7")
    A("s_sub_u32 s39, s39, s20")
    A("s_cmp_lt_u32 s3, 4")
    A("s_cbranch_scc1 L_CWAVE")

    A("s_setprio 3")
    A("s_sub_u32 s26, s3, 4")
    A("v_lshrrev_b32 v3, 3, v2")
    A("v_and_b32 v4, 7, v2")
    A("v_lshrrev_b32 v5, 1, v3")
    A("s_and_b32 s27, s26, 1")
    A("s_lshl_b32 s27, s27, 2")
    A("v_add_u32 v7, s27, v5")
    A("v_and_b32 v7, 7, v7")
    A("v_xor_b32 v7, v4, v7")
    A("v_and_b32 v5, 1, v5")
    A("v_lshlrev_b32 v5, 2, v5")
    A("v_xor_b32 v5, v4, v5")
    A("v_mul_u32_u24 v6, 2688, v3")
    A("v_lshl_add_u32 v6, v5, 4, v6")
    A("v_mul_u32_u24 v3, 896, v3")
    A("v_lshl_add_u32 v3, v7, 4, v3")
    A("v_lshlrev_b32 v9, 4, v2")
    A("s_lshl_b32 s36, s25, 7")
    A("s_lshl_b32 s27, s26, 3")
    A("s_add_u32 s36, s36, s27")
    A("s_mul_i32 s36, s36, 896")
    A(f"s_mul_i32 s44, s26, {8*2688}")
    A("s_min_u32 s27, s22, 13")
    A("s_lshl_b32 s27, s27, 7")
    A("s_add_u32 s44, s44, s27")
    A("s_add_u32 s44, s44, 896")
    A(f"s_mul_i32 s45, s24, {28*1024}")
    A("s_lshl_b32 s27, s26, 10")
    A("s_add_u32 s45, s45, s27")
    A("s_sub_u32 s59, s22, 14")
    A("s_lshl_b32 s59, s59, 4")
    A("s_add_u32 s59, s59, s25")
    A("s_and_b32 s59, s59, 31")
    A("s_mov_b32 s37, s59")
    A("s_min_u32 s59, s59, 27")
    A("s_lshl_b32 s59, s59, 4")
    A("s_add_u32 s59, s59, s26")
    A("s_mul_i32 s59, s59, 2688")
    A("s_lshl_b32 s38, s26, 10")
    A("s_waitcnt lgkmcnt(0)")
    epoch_load(A)
    srd(A, 28, "s16", "s17", S_TOK * D * 2)
    srd(A, 32, "s18", "s19", D * 3 * D * 2)
    srd(A, 8, "s6", "s7", WS_USED)

    def chunk_of(tau):
        A(f"s_add_u32 s40, s39, {tau}")
        A("s_cmp_ge_u32 s40, 7")
        A("s_cselect_b32 s41, 7, 0")
        A("s_sub_u32 s40, s40, s41")

    def x_loads(tau, rts):
        A("s_lshl_b32 s41, s40, 7")
        A("s_add_u32 s41, s41, s36")
        for rt in rts:
            A(f"s_add_u32 s42, s38, {L1_X + tau * 16384 + rt * 4096}")
            A("s_mov_b32 m0, s42")
            A(f"s_add_u32 s43, s41, {rt * 32 * 896}")
            A("buffer_load_dwordx4 v3, s[28:31], s43 offen lds")
        return len(rts)

    def step_loads(k):
        kind, taus = STEPS[k]
        n = 0
        for tau in taus:
            chunk_of(tau)
            if kind == "A":
                A(f"s_mul_i32 s41, s40, {64*2688}")
                A("s_add_u32 s41, s41, s44")
                for i in range(2):
                    A(f"s_add_u32 s42, s38, {L1_R + (tau % 5) * 8192 + i * 4096}")
                    A("s_mov_b32 m0, s42")
                    A(f"s_add_u32 s43, s41, {i * 32 * 2688}")
                    A("buffer_load_dwordx4 v6, s[32:35], s43 offen lds")
                    n += 1
            if kind == "Q":
                A("s_lshl_b32 s41, s40, 12")
                A(f"s_add_u32 s42, s38, {wq_base(tau)}")
                A("s_mov_b32 m0, s42")
                A("s_add_u32 s43, s41, s45")
                A("buffer_load_dwordx4 v9, s[8:11], s43 offen sc1 lds")
                n += 1
            else:
                n += x_loads(tau, (0, 1) if kind == "A" else (2, 3))
        return n

    WF = 16
    OFR = 144
    ACC3 = 176

    def l_setup():
        a, b, c, d, e, hi = 16, 17, 18, 19, 20, 21
        A("s_lshr_b32 s20, s2, 2")
        A("s_and_b32 s21, s2, 3")
        A("s_waitcnt lgkmcnt(0)")
        A(f"s_add_u32 s63, s63, {TAGSTEP:#x}")
        A(f"v_bfe_u32 v{a}, v2, 5, 1")
        A(f"v_bfe_u32 v{b}, v2, 4, 1")
        A(f"v_and_b32 v{c}, 15, v2")
        A("s_mul_i32 s27, s24, 28")
        A(f"v_mul_u32_u24 v{b}, 27, v{b}")
        A(f"v_add_u32 v{b}, s27, v{b}")
        A(f"v_lshrrev_b32 v{b}, 6, v{b}")
        A(f"v_mul_u32_u24 v{a}, 7, v{a}")
        A(f"v_add_u32 v{a}, v{a}, v{b}")
        A(f"v_lshl_add_u32 v{a}, v{a}, 4, v{c}")
        A(f"v_lshlrev_b32 v249, 8, v{a}")
        A(f"v_and_b32 v{b}, 31, v2")
        A(f"v_add_u32 v{b}, 224, v{b}")
        A(f"v_lshlrev_b32 v11, 8, v{b}")
        A("v_mov_b32 v10, 1")
        A("v_mov_b32 v12, s63")
        A("v_and_b32 v14, 3, v2")
        A("v_lshlrev_b32 v14, 7, v14")
        A("v_and_b32 v15, 7, v2")
        A("v_lshlrev_b32 v15, 9, v15")
        A("s_lshl_b32 s49, s26, 7")
        A(f"s_add_u32 s49, s49, {C3_OFF}")
        A("s_lshr_b32 s27, s24, 2")
        A("s_lshl_b32 s27, s27, 12")
        A("s_add_u32 s49, s49, s27")
        A("s_lshl_b32 s51, s22, 4")
        A("s_add_u32 s51, s51, s25")
        A("s_lshl_b32 s51, s51, 8")
        A(f"s_add_u32 s51, s51, {C1_OFF}")
        A(f"v_lshrrev_b32 v{a}, 4, v2")
        A(f"v_and_b32 v{b}, 15, v2")
        A(f"v_lshlrev_b32 v{c}, 2, v{a}")
        A(f"v_xor_b32 v{b}, v{b}, v{c}")
        A(f"v_mul_u32_u24 v{a}, 896, v{a}")
        A(f"v_lshl_add_u32 v{a}, v{b}, 4, v{a}")
        A("s_lshl_b32 s27, s21, 4")
        A(f"v_add_u32 v{b}, s27, v{b}")
        A(f"v_mov_b32 v{c}, 0x40000000")
        A(f"v_cmp_le_u32 vcc, 56, v{b}")
        A("s_nop 1")
        A(f"v_cndmask_b32 v251, v{a}, v{c}, vcc")
        A("s_mul_i32 s46, s26, 15360")
        A(f"s_add_u32 s46, s46, {L3_STG}")
        A(f"v_and_b32 v{a}, 15, v2")
        A(f"v_lshrrev_b32 v{b}, 2, v{a}")
        A(f"v_bfe_u32 v{c}, v2, 4, 1")
        A(f"v_lshlrev_b32 v{c}, 1, v{c}")
        A(f"v_bfe_u32 v{d}, v{a}, 1, 1")
        A(f"v_add_u32 v{c}, v{c}, v{d}")
        A(f"v_lshrrev_b32 v{hi}, 5, v2")
        A(f"v_lshl_add_u32 v{d}, v{hi}, 2, v{b}")
        A(f"v_lshlrev_b32 v{e}, 8, v{d}")
        A(f"v_lshl_add_u32 v{e}, v{c}, 4, v{e}")
        A(f"v_and_b32 v{d}, 1, v{a}")
        A(f"v_lshl_add_u32 v{e}, v{d}, 3, v{e}")
        A(f"v_add_u32 v{e}, s46, v{e}")
        for i in range(4):
            A(f"s_add_u32 s27, s26, {i}")
            A("s_and_b32 s27, s27, 3")
            A(f"v_xor_b32 v{d}, s27, v{b}")
            A(f"v_lshl_add_u32 v{252+i}, v{d}, 6, v{e}")
        A("v_lshlrev_b32 v240, 4, v2")
        for i in range(1, 4):
            A(f"s_add_u32 s27, s26, {i}")
            A("s_and_b32 s27, s27, 3")
            A("s_mul_i32 s27, s27, 12288")
            A(f"s_add_u32 s27, s27, {L3_RED + (i-1)*4096}")
            A(f"v_add_u32 v{240+i}, s27, v240")
        A("s_mul_i32 s27, s26, 12288")
        A(f"s_add_u32 s27, s27, {L3_RED}")
        A("v_add_u32 v244, s27, v240")
        A("v_add_u32 v245, 4096, v240")
        A("s_lshl_b32 s46, s20, 15")
        A("s_lshl_b32 s27, s26, 13")
        A("s_add_u32 s46, s46, s27")
        A(f"s_add_u32 s46, s46, {OF_OFF}")
        A("s_lshl_b32 s47, s20, 2")
        A("s_add_u32 s47, s47, s26")
        A("s_lshl_b32 s47, s47, 9")
        A(f"s_add_u32 s47, s47, {C2_OFF}")
        A("v_and_b32 v246, 31, v2")
        A("v_mul_u32_u24 v246, 896, v246")
        A(f"v_lshl_add_u32 v246, v{hi}, 4, v246")
        A(f"s_mul_i32 s48, s20, {32*896}")
        A("s_lshl_b32 s27, s21, 8")
        A("s_add_u32 s48, s48, s27")
        A("s_lshl_b32 s27, s26, 6")
        A("s_add_u32 s48, s48, s27")
        A(f"v_mov_b32 v247, {L_FLAG}")
        A("v_mov_b32 v248, 0")
        for r in range(64):
            A(f"v_mov_b32 v{ACC3+r}, 0")

    def wq_poll_issue():
        A("s_mov_b64 exec, 0x7f")
        A("buffer_load_dword v5, v15, s[8:11], s49 offen sc1")
        A("s_mov_b64 exec, -1")

    stamp(A, 4)
    A("s_cmp_ge_u32 s22, 14")
    A("s_cbranch_scc1 L_LRPK")
    order = []
    for k in range(NSTEP):
        if k == int(OPT["wqp"]):
            wq_poll_issue()
            order.append((7, 1))
        if k == 7:
            A.label("L_LJOIN")
        for st in PLAN[k]:
            if st == 8:
                A("s_mov_b32 s27, 0")
                A.label("L_WQPOLL")
                A("v_cmp_ne_u32 vcc, s63, v5")
                A("s_add_u32 s27, s27, 1")
                A(f"s_cmp_gt_u32 s27, {SPIN_MAX}")
                A("s_cbranch_scc1 L_WQOK")
                A("s_and_b32 s40, vcc_lo, 0x7f")
                A("s_cbranch_scc0 L_WQOK")
                wq_poll_issue()
                A("s_waitcnt vmcnt(0)")
                A("s_branch L_WQPOLL")
                A.label("L_WQOK")
                stamp(A, 10)
            order.append((st, step_loads(st)))
        if k == 0:
            l_setup()
        left = sum(c for key, c in order if key > k)
        A(f"s_waitcnt vmcnt({left})")
        A("s_barrier")
        if k == 0:
            stamp(A, 1)
        if k == 6:
            stamp(A, 2)
        if k == 8:
            stamp(A, 3)
    A("s_branch L_LP1DONE")
    A.label("L_LRPK")
    for j in range(4):
        A(f"s_add_u32 s42, s38, {L1_R + j * 4096}")
        A("s_mov_b32 m0, s42")
        A(f"s_add_u32 s43, s59, {4 * j * 2688}")
        A("buffer_load_dwordx4 v9, s[32:35], s43 offen lds")
    l_setup()
    A("s_waitcnt vmcnt(0)")
    A("s_barrier")
    A("s_barrier")
    for tau in range(7):
        chunk_of(tau)
        x_loads(tau, (0, 1, 2, 3) if tau < 4 else (0, 1))
    wq_poll_issue()
    A("s_branch L_LJOIN")
    A.label("L_LP1DONE")

    def poll_flags(name, areg):
        A("s_mov_b32 s27, 0")
        A(f"s_mov_b32 s41, {C1_OFF + 128}")
        A.label(f"L_POLL{name}")
        A(f"buffer_load_dword v4, v{areg}, s[8:11], s41 offen sc1")
        A("s_waitcnt vmcnt(0)")
        A("v_cmp_ne_u32 vcc, s63, v4")
        A("s_add_u32 s27, s27, 1")
        A(f"s_cmp_gt_u32 s27, {SPIN_MAX}")
        A(f"s_cbranch_scc1 L_POUT{name}")
        A("s_cmp_lg_u64 vcc, 0")
        A(f"s_cbranch_scc0 L_POUT{name}")
        A(f"s_sleep {OPT['bsleep']}")
        A(f"s_branch L_POLL{name}")
        A.label(f"L_POUT{name}")
    stamp(A, 7)
    A("s_barrier")
    A("s_cmp_lg_u32 s26, 3")
    A("s_cbranch_scc1 L_NOPUBB")
    A("s_mov_b64 exec, 1")
    A("buffer_store_dword v12, v248, s[8:11], s51 offen offset:128 sc1")
    A("s_mov_b64 exec, -1")
    A.label("L_NOPUBB")
    A("s_cmp_lg_u32 s26, 0")
    A("s_cbranch_scc1 L_NOPOLLB")
    A(f"s_sleep {OPT['bdelay']}")
    poll_flags("B", 249)
    A("ds_write_b32 v247, v10 offset:8")
    A("s_waitcnt lgkmcnt(0)")
    A.label("L_NOPOLLB")
    stamp(A, 9)

    srd(A, 28, "s52", "s53", D * D * 2)
    srd(A, 32, "s54", "s55", S_TOK * D * 2)
    A(f"s_mul_i32 s36, s26, {112*896}")
    A("s_lshl_b32 s27, s21, 8")
    A("s_add_u32 s36, s36, s27")
    A("s_mul_i32 s38, s26, 15360")
    A(f"s_add_u32 s38, s38, {L3_STG}")
    A("s_mov_b32 s27, 0")
    A.label("L_STGWAIT")
    A("s_sleep 8")
    A("ds_read_b32 v250, v247 offset:8")
    A("s_waitcnt lgkmcnt(0)")
    A("v_readfirstlane_b32 s40, v250")
    A("s_add_u32 s27, s27, 1")
    A(f"s_cmp_gt_u32 s27, {SPIN_MAX*8}")
    A("s_cbranch_scc1 L_STGGO")
    A("s_cmp_eq_u32 s40, 0")
    A("s_cbranch_scc1 L_STGWAIT")
    A.label("L_STGGO")
    A(f"s_setprio {OPT['stgprio']}")
    A(f"s_sleep {OPT['stgdelay']}")
    for rho in range(2):
        for i in range(15):
            A(f"s_add_u32 s42, s38, {i*1024}")
            A("s_mov_b32 m0, s42")
            A(f"s_add_u32 s43, s36, {(56*rho + 4*i)*896}")
            A("buffer_load_dwordx4 v251, s[28:31], s43 offen lds")
            if OPT["stgsleep"]:
                A(f"s_sleep {OPT['stgsleep']}")
        A("s_waitcnt vmcnt(0)")
        n = 0
        for hh in range(2):
            for s in range(2):
                for i in range(4):
                    for rd in range(2):
                        j = (2 * rho + hh) * 2 + s
                        A(f"ds_read_b64_tr_b16 {vr(WF+16*j+4*i+2*rd,2)}, v{252+i} offset:{(28*hh+16*s+8*rd)*256}")
                        n += 1
                        if n % 8 == 0:
                            A("s_waitcnt lgkmcnt(4)")
        A("s_waitcnt lgkmcnt(0)")
    stamp(A, 5)
    A("s_setprio 3")
    A("s_cmp_lg_u32 s2, 0")
    A("s_cbranch_scc1 L_NOEP1")
    A("s_cmp_lg_u32 s26, 1")
    A("s_cbranch_scc1 L_NOEP1")
    poll_flags("N", 11)
    A.label("L_NOEP1")
    A("s_mov_b32 s27, 0")
    A.label("L_C2POLL")
    A("buffer_load_dword v4, v14, s[8:11], s47 offen sc1")
    A("s_waitcnt vmcnt(0)")
    A("v_subrev_u32 v4, s63, v4")
    A("v_cmp_lt_u32 vcc, 1, v4")
    A("s_add_u32 s27, s27, 1")
    A(f"s_cmp_gt_u32 s27, {SPIN_MAX}")
    A("s_cbranch_scc1 L_C2OUT")
    A("s_cmp_lg_u64 vcc, 0")
    A("s_cbranch_scc1 L_C2POLL")
    A.label("L_C2OUT")
    A("s_barrier")
    A("s_mov_b64 exec, 15")
    A("buffer_load_dword v4, v14, s[8:11], s47 offen sc1")
    A("s_mov_b64 exec, -1")
    A("ds_read_b32 v13, v247")
    A("s_waitcnt lgkmcnt(0)")
    A("v_readfirstlane_b32 s27, v13")
    A("s_nop 3")
    A("s_cmp_eq_u32 s27, 0")
    A("s_cbranch_scc1 L_NOFB")
    A("s_barrier")
    A("s_barrier")
    A.label("L_NOFB")
    stamp(A, 6)
    A("s_mov_b32 s27, 0")
    A("s_mov_b32 s41, 15")
    A("s_mov_b32 s43, 0")
    A.label("L_OPOLL")
    A("s_add_u32 s27, s27, 1")
    A(f"s_cmp_gt_u32 s27, {SPIN_MAX}")
    A("s_cselect_b32 s42, 0, -1")
    A("s_mov_b32 s49, 0")
    A("s_waitcnt vmcnt(0)")
    A("v_cmp_ne_u32 vcc, s63, v4")
    A("s_nop 1")
    A("s_and_b32 s50, vcc_lo, 15")
    for hh in range(4):
        o = OFR + 8 * hh
        A(f"s_bitcmp0_b32 s43, {hh}")
        A(f"s_cbranch_scc1 L_OC{hh}")
        A(f"v_max3_u32 v13, v{o}, v{o+1}, v{o+2}")
        A(f"v_max3_u32 v15, v{o+3}, v{o+4}, v{o+5}")
        A(f"v_max3_u32 v13, v13, v{o+6}, v{o+7}")
        A("v_max_u32 v13, v13, v15")
        A("v_cmp_eq_u32 vcc, -1, v13")
        A("s_nop 1")
        A("s_or_b32 s40, vcc_lo, vcc_hi")
        A("s_and_b32 s40, s40, s42")
        A(f"s_cbranch_scc1 L_OC{hh}")
        A(f"s_bitset0_b32 s41, {hh}")
        A(f"s_bitset1_b32 s49, {hh}")
        A.label(f"L_OC{hh}")
    A("s_orn2_b32 s40, s50, s42")
    A("s_and_b32 s43, s40, s41")
    for hh in range(4):
        A(f"s_bitcmp0_b32 s43, {hh}")
        A(f"s_cbranch_scc1 L_OI{hh}")
        for sx in range(2):
            j = 2 * hh + sx
            A(f"buffer_load_dwordx4 {vr(OFR+4*j,4)}, v{240 if j < 4 else 245}, s[8:11], s46 offen offset:{(j%4)*1024} sc1")
        A.label(f"L_OI{hh}")
    if STAMP:
        A("s_cmp_lg_u32 s43, 0")
        A("s_cbranch_scc0 L_NOST")
        stamp(A, 11)
        A.label("L_NOST")
        A("s_mov_b32 s88, s27")
    A("s_cmp_eq_u32 s43, s41")
    A("s_cbranch_scc1 L_ONOPOLL")
    A("s_mov_b64 exec, 15")
    A("buffer_load_dword v4, v14, s[8:11], s47 offen sc1")
    A("s_mov_b64 exec, -1")
    A.label("L_ONOPOLL")
    for hh in range(4):
        A(f"s_bitcmp0_b32 s49, {hh}")
        A(f"s_cbranch_scc1 L_OM{hh}")
        for sx in range(2):
            j = 2 * hh + sx
            for i in range(4):
                mfma(A, ACC3 + 16 * i, WF + 16 * j + 4 * i, OFR + 4 * j, ACC3 + 16 * i)
        A.label(f"L_OM{hh}")
    A("s_cmp_lg_u32 s41, 0")
    A("s_cbranch_scc1 L_OPOLL")
    stamp(A, 8)
    A("s_nop 7")
    A("s_nop 3")
    for i in (1, 2, 3):
        for g in range(4):
            A(f"ds_write_b128 v{240+i}, {vr(ACC3+16*i+4*g,4)} offset:{1024*g}")
    A("s_waitcnt lgkmcnt(0)")
    A("s_barrier")
    A("s_cmp_lg_u32 s2, 0")
    A("s_cbranch_scc1 L_NOEP2")
    A("s_cmp_lg_u32 s26, 1")
    A("s_cbranch_scc1 L_NOEP2")
    A("v_mov_b32 v4, s63")
    A(f"s_mov_b32 s27, {EP_OFF}")
    A("s_mov_b64 exec, 1")
    A("buffer_store_dword v4, v248, s[8:11], s27 offen sc1")
    A("s_mov_b64 exec, -1")
    A.label("L_NOEP2")
    R = WF
    for sl in range(3):
        for g in range(4):
            A(f"ds_read_b128 {vr(R+16*sl+4*g,4)}, v244 offset:{4096*sl+1024*g}")
    for sl in range(3):
        for g in range(4):
            A(f"s_waitcnt lgkmcnt({11-4*sl-g})")
            for p in range(2):
                A(f"v_pk_add_f32 {vr(ACC3+4*g+2*p,2)}, {vr(ACC3+4*g+2*p,2)}, {vr(R+16*sl+4*g+2*p,2)}")
    for p in range(8):
        A(f"v_cvt_pk_bf16_f32 v{OFR+p}, v{ACC3+2*p}, v{ACC3+2*p+1}")
    A("s_lshl_b32 s27, s21, 2")
    A("s_add_u32 s27, s27, s26")
    A("s_cmp_ge_u32 s27, 14")
    A("s_cbranch_scc1 L_END")
    for g in (0, 2):
        b = OFR + 2 * g
        A(f"v_permlane32_swap_b32 v{b}, v{b+2}")
        A(f"v_permlane32_swap_b32 v{b+1}, v{b+3}")
    for g in (0, 2):
        b = OFR + 2 * g
        A(f"buffer_store_dwordx4 {vr(b,4)}, v246, s[32:35], s48 offen offset:{16*g} {OPT['outsc']}")
    A("s_branch L_END")

    A.label("L_CWAVE")
    if OPT["cpf"]:
        A("s_getpc_b64 s[44:45]")
        A.label("L_PCREF")
        A(f"s_sub_u32 s44, s44, L_PCREF-{NAME}")
        A("s_subb_u32 s45, s45, 0")
        A("s_lshr_b32 s46, s2, 3")
        A("s_lshl_b32 s46, s46, 2")
        A("s_add_u32 s46, s46, s3")
        A("s_lshl_b32 s46, s46, 9")
        A("v_lshlrev_b32 v100, 7, v2")
        A("v_add_u32 v100, s46, v100")
        A(f"v_min_u32 v100, L_CODEEND-{NAME}-4, v100")
        A("s_mov_b64 exec, 15")
        A("global_load_dword v101, v100, s[44:45]")
        A("s_mov_b64 exec, -1")
    A("s_lshl_b32 s26, s25, 2")
    A("s_add_u32 s26, s26, s3")
    A("s_lshl_b32 s35, s26, 4")
    A("s_add_u32 s35, s35, s24")
    A("s_lshl_b32 s35, s35, 11")
    A(f"s_add_u32 s35, s35, {OF_OFF}")
    A("s_lshl_b32 s33, s26, 4")
    A("s_add_u32 s33, s33, s24")
    A("s_lshl_b32 s33, s33, 7")
    A(f"s_add_u32 s33, s33, {C2_OFF}")
    A("s_waitcnt lgkmcnt(0)")
    epoch_load(A)
    srd(A, 8, "s6", "s7", WS_USED)

    Q = 8
    O = 40
    SB = [104, 120]
    P = 136
    KVB = 144
    K0T = 208
    T2, T3 = 216, 232
    VOFF = 248

    def Kreg(b, s): return KVB + 16 * b + 4 * s
    def Vreg(b, t): return KVB + 16 * b + 8 + 4 * t
    def Qreg(i, s): return Q + 8 * i + 4 * s

    ACC = 16
    XF = 64
    EO = 96
    EA = 128
    XL, XH = 8, 132
    WR = 144
    A(f"v_mov_b32 v5, {L_FLAG}")
    for r in range(4):
        A(f"v_mov_b32 v{64+r}, 0")
    A("ds_write_b128 v5, v[64:67]")
    A("s_and_b32 s27, s3, 1")
    A("s_lshr_b32 s28, s3, 1")
    A("s_lshl_b32 s26, s22, 1")
    A("s_add_u32 s26, s26, s27")
    A("s_lshr_b32 s60, s25, 2")
    A("s_lshl_b32 s60, s60, 4")
    A("s_and_b32 s29, s25, 3")
    A("s_lshl_b32 s29, s29, 1")
    A("s_add_u32 s60, s60, s29")
    A("s_add_u32 s60, s60, s28")
    A("s_lshl_b32 s60, s60, 12")
    A(f"s_add_u32 s60, s60, {KV_OFF}")
    A("s_add_u32 s61, s60, 32768")
    A("s_lshl_b32 s62, s26, 4")
    A("s_add_u32 s62, s62, s25")
    A("s_lshl_b32 s62, s62, 1")
    A("s_add_u32 s62, s62, s28")
    A("s_lshl_b32 s62, s62, 7")
    A(f"s_add_u32 s62, s62, {CA_OFF}")
    A("v_and_b32 v3, 31, v2")
    A("v_lshrrev_b32 v4, 5, v2")
    A("v_bfe_u32 v5, v3, 1, 3")
    A("s_lshl_b32 s29, s28, 12")
    A("s_lshl_b32 s40, s3, 12")
    XQL, XQH = 52, 56
    ACCQ = 112
    WQF = 16
    PL = 143
    for ks in range(4):
        A(f"v_add_u32 v6, {2*ks}, v4")
        A("v_xor_b32 v6, v6, v5")
        A("v_lshlrev_b32 v6, 4, v6")
        A("v_lshl_add_u32 v6, v3, 7, v6")
        A(f"v_add_u32 v{XL+ks}, s29, v6")
        A(f"v_add_u32 v{XH+ks}, 0x10000, v{XL+ks}")
        A(f"v_add_u32 v{XQL+ks}, s40, v6")
        A(f"v_add_u32 v{XQH+ks}, 0x10000, v{XQL+ks}")
    A("v_and_b32 v5, 15, v2")
    A("v_lshrrev_b32 v6, 2, v5")
    A("v_bfe_u32 v7, v2, 4, 1")
    A("v_lshlrev_b32 v7, 1, v7")
    A("v_bfe_u32 v13, v5, 1, 1")
    A("v_add_u32 v7, v7, v13")
    A("s_lshl_b32 s29, s27, 2")
    A("v_add_u32 v7, s29, v7")
    A("v_bfe_u32 v13, v5, 3, 1")
    A("v_lshlrev_b32 v13, 2, v13")
    A("v_xor_b32 v7, v7, v13")
    A("v_lshl_add_u32 v6, v4, 3, v6")
    A("v_lshlrev_b32 v12, 7, v6")
    A("v_lshl_add_u32 v12, v7, 4, v12")
    A("v_and_b32 v13, 1, v5")
    A("v_lshl_add_u32 v12, v13, 3, v12")
    A(f"v_add_u32 v12, {L1_R}, v12")
    A("v_bfe_u32 v7, v2, 4, 1")
    A("v_lshl_add_u32 v7, v7, 1, v13")
    A("v_bfe_u32 v13, v5, 1, 1")
    A("v_cmp_eq_u32 vcc, 3, v7")
    A("v_lshl_add_u32 v7, v7, 1, v13")
    A("v_add_u32 v13, 1, v7")
    A("v_lshlrev_b32 v136, 10, v6")
    A(f"s_mul_i32 s29, s3, {4*56}")
    A(f"s_add_u32 s29, s29, {L1_R}")
    A("v_add_u32 v136, s29, v136")
    A("v_cndmask_b32 v7, v7, 6, vcc")
    A("v_cndmask_b32 v13, v13, 0, vcc")
    A("v_lshl_add_u32 v141, v7, 3, v136")
    A("v_lshl_add_u32 v142, v13, 3, v136")
    A("v_mov_b32 v137, 0")
    A("v_lshlrev_b32 v139, 4, v2")
    A(f"v_add_u32 v136, {L1_R}, v139")
    A("v_bfe_u32 v5, v2, 4, 1")
    A("v_bfe_u32 v6, v2, 3, 1")
    A("s_mul_i32 s29, s24, 28")
    A("v_mul_u32_u24 v6, 27, v6")
    A("v_add_u32 v6, s29, v6")
    A("v_lshrrev_b32 v6, 5, v6")
    A("v_mul_u32_u24 v5, 14, v5")
    A("v_add_u32 v5, v5, v6")
    A("v_cmp_gt_u32 vcc, 32, v2")
    A("v_and_b32 v6, 7, v2")
    A("s_lshl_b32 s29, s3, 3")
    A("v_add_u32 v6, s29, v6")
    A("v_cndmask_b32 v6, 0, v6, vcc")
    A("v_lshl_add_u32 v5, v5, 5, v6")
    A("v_lshlrev_b32 v140, 7, v5")
    A("s_waitcnt lgkmcnt(0)")
    A(f"s_add_u32 s63, s63, {TAGSTEP:#x}")
    A("v_mov_b32 v138, s63")
    A(f"s_mov_b32 s41, {CA_OFF}")
    A("s_mov_b32 s46, -1")
    A("s_mov_b32 s47, 0xffff")
    A("s_cmp_ge_u32 s26, 28")
    A("s_cbranch_scc1 L_RPK")
    A("s_cmp_ge_u32 s26, 14")
    A("s_cbranch_scc1 L_VPART")

    def marker_store():
        for r in range(4):
            A(f"v_mov_b32 v{96+r}, -1")
        for sx in range(2):
            A(f"buffer_store_dwordx4 v[96:99], v139, s[8:11], s35 offen offset:{1024*sx} sc1")

    def signal(ph, tag):
        A("s_waitcnt vmcnt(0)")
        A("s_mov_b64 exec, 1")
        if tag != "r":
            A("buffer_store_dword v138, v137, s[8:11], s62 offen sc1")
        A("buffer_store_dword v138, v137, s[8:11], s33 offen sc1")
        A("s_mov_b64 exec, -1")

    def poll_issue():
        A("s_mov_b64 exec, s[46:47]")
        A(f"buffer_load_dword v{PL}, v140, s[8:11], s41 offen sc1")
        A("s_mov_b64 exec, -1")

    def wqf(ji):
        j = ji % 8
        return WQF + 4 * j if j < 4 else EO + 4 * (j - 4)

    def run_jobs(jobs, transposed, alt=False, fill=None):
        pend = []
        nxt = 0

        def issue(ji):
            kind, tau, ks = jobs[ji]
            if kind == "A":
                for rd in range(2):
                    A(f"ds_read_b64_tr_b16 {vr(WR+16*tau+4*ks+2*rd,2)}, v12 offset:{(tau%5)*8192 + ks*2048 + rd*512}")
                    pend.append(ji)
            if kind == "Q":
                A(f"ds_read_b128 {vr(160+4*(ji%8) if alt else wqf(ji),4)}, v136 offset:{wq_base(tau) - L1_R + ks*1024}")
                pend.append(ji)
                reg = XH + ks if alt else (XQL + ks if tau < 4 else XQH + ks)
                A(f"ds_read_b128 {vr((216 if alt else XF)+4*(ji%8),4)}, v{reg} offset:{(tau%4)*16384}")
            else:
                reg = XL + ks if tau < 4 else XH + ks
                A(f"ds_read_b128 {vr(XF+4*(ji%8),4)}, v{reg} offset:{(tau%4)*16384 + (8192 if kind == 'B' else 0)}")
            pend.append(ji)
        for ji in range(len(jobs)):
            while nxt < len(jobs) and nxt < ji + (4 if jobs[0][0] == "A" else 6):
                issue(nxt)
                nxt += 1
            left = sum(1 for p in pend if p > ji)
            A(f"s_waitcnt lgkmcnt({left})")
            kind, tau, ks = jobs[ji]
            xreg = (216 if alt else XF) + 4 * (ji % 8)
            first = (tau == 0 and ks == 0)
            if kind == "Q":
                mfma(A, ACCQ, 160 + 4 * (ji % 8) if alt else wqf(ji), xreg, None if first else ACCQ)
                for _ in range(6):
                    if fill:
                        A(fill.pop(0))
            else:
                acc = ACC + (16 if kind == "B" else 0)
                wreg = WR + 16 * tau + 4 * ks
                if transposed:
                    mfma(A, acc, wreg, xreg, None if first else acc)
                else:
                    mfma(A, acc, xreg, wreg, None if first else acc)

    def J(kind, taus):
        return [(kind, tau, ks) for tau in taus for ks in range(4)]

    def kvloop(transposed, epilogue, tag):
        for k in range(7):
            A("s_barrier")
            run_jobs(J("A", [k]), transposed)
            if k == 2:
                marker_store()
        A("s_nop 7")
        A("s_nop 1")
        epilogue(0)
        stamp(A, 14)
        A("s_barrier")
        run_jobs(J("B", [0, 1, 2, 3]), transposed)
        signal(0, tag)
        A("s_barrier")
        stamp(A, 4)
        run_jobs(J("Q", [0, 1, 2, 3]), transposed)
        A("s_barrier")
        poll_issue()
        run_jobs(J("B", [4, 5, 6]), transposed)
        A("s_nop 7")
        A("s_nop 1")
        epilogue(1)
        stamp(A, 2)
        if tag == "v":
            A("s_waitcnt vmcnt(4)")
        else:
            A("s_or_b64 vcc, s[48:49], s[50:51]")
            A("s_cbranch_scc1 L_KW3")
            A("s_waitcnt vmcnt(2)")
            A.label("L_KW3")
            A("s_waitcnt vmcnt(3)")

    A("s_mov_b32 s42, 0x3f803f80")
    A("s_mov_b32 s43, 0x3f80")
    A("s_lshl_b32 s27, s26, 2")
    for gi, g in enumerate((0, 2)):
        A(f"v_add_u32 v5, {g}, v4")
        A("v_add_u32 v5, s27, v5")
        A("v_mul_u32_u24 v6, 37, v5")
        A("v_lshrrev_b32 v6, 8, v6")
        A("v_mul_u32_u24 v7, 7, v6")
        A("v_sub_u32 v5, v5, v7")
        A(f"v_cmp_eq_u32 s[{48+2*gi}:{49+2*gi}], 3, v5")
        A("v_lshrrev_b32 v7, 2, v5")
        A("v_lshl_add_u32 v6, v6, 1, v7")
        A("v_and_b32 v5, 3, v5")
        A(f"v_lshlrev_b32 v{EA+gi}, 18, v6")
        A(f"v_lshl_add_u32 v{EA+gi}, v5, 9, v{EA+gi}")
        A(f"v_lshl_add_u32 v{EA+gi}, v3, 4, v{EA+gi}")
        A(f"v_add_u32 v{EA+2+gi}, 0x40000, v{EA+gi}")

    def epi_k(ph):
        a = ACC + 16 * ph
        o = EO if ph == 0 else XF
        for p in range(8):
            A(f"v_cvt_pk_bf16_f32 v{o+p}, v{a+2*p}, v{a+2*p+1}")
        A("s_nop 1")
        for g in (0, 2):
            b = o + 2 * g
            A(f"v_permlane32_swap_b32 v{b}, v{b+2}")
            A(f"v_permlane32_swap_b32 v{b+1}, v{b+3}")
        for gi, g in enumerate((0, 2)):
            b = o + 2 * g
            T = o + 8 + 4 * gi
            lab = f"L_NOMIX_{ph}_{gi}"
            A(f"s_mov_b64 exec, s[{48+2*gi}:{49+2*gi}]")
            A(f"s_cbranch_execz {lab}")
            A(f"v_mov_b32 v{T}, v{b+2}")
            A(f"v_mov_b32 v{T+1}, v{b+3}")
            A(f"v_mov_b32 v{T+2}, s42")
            A(f"v_mov_b32 v{T+3}, s43")
            A(f"v_mov_b32 v{b+2}, s42")
            A(f"v_mov_b32 v{b+3}, s43")
            A(f"buffer_store_dwordx4 {vr(T,4)}, v{EA+2+gi}, s[8:11], s{60+ph} offen sc1")
            A.label(lab)
            A("s_mov_b64 exec, -1")
            A(f"buffer_store_dwordx4 {vr(b,4)}, v{EA+gi}, s[8:11], s{60+ph} offen sc1")
    A("s_nop 0")
    kvloop(True, epi_k, "k")
    A("s_branch L_QPHASE")

    A.label("L_VPART")
    A("s_sub_u32 s27, s26, 14")
    A("s_lshl_b32 s27, s27, 5")
    A("v_add_u32 v5, s27, v3")
    A("v_mul_u32_u24 v6, 2341, v5")
    A("v_lshrrev_b32 v6, 16, v6")
    A("v_mul_u32_u24 v7, 28, v6")
    A("v_sub_u32 v5, v5, v7")
    A("v_cmp_le_u32 s[48:49], 24, v5")
    A("v_cmp_eq_u32 vcc, 24, v5")
    A(f"v_lshlrev_b32 v{EA}, 18, v6")
    A("v_lshl_add_u32 v5, v4, 5, v5")
    A(f"v_lshl_add_u32 v{EA}, v5, 4, v{EA}")
    A("v_mov_b32 v5, 0x3f803f80")
    A("v_cndmask_b32 v48, 0, v5, vcc")
    for r in range(1, 4):
        A(f"v_mov_b32 v{48+r}, v48")

    def epi_v(ph):
        a = ACC + 16 * ph
        o = EO if ph == 0 else XF
        for p in range(8):
            A(f"v_cvt_pk_bf16_f32 v{o+p}, v{a+2*p}, v{a+2*p+1}")
        for tt in range(2):
            A(f"buffer_store_dwordx4 {vr(o+4*tt,4)}, v{EA}, s[8:11], s{60+ph} offen offset:{2048+1024*tt} sc1")
        A("s_mov_b64 exec, s[48:49]")
        for tt in range(2):
            A(f"buffer_store_dwordx4 v[48:51], v{EA}, s[8:11], s{60+ph} offen offset:{2048+1024*tt+64} sc1")
        A("s_mov_b64 exec, -1")
    kvloop(False, epi_v, "v")
    A("s_branch L_QPHASE")

    A.label("L_RPK")
    A("s_sub_u32 s27, s22, 14")
    A("s_lshl_b32 s27, s27, 4")
    A("s_add_u32 s27, s27, s25")
    A(f"s_mul_i32 s29, s3, {4*28*1024}")
    A("s_lshl_b32 s40, s27, 10")
    A("s_add_u32 s29, s29, s40")
    A(f"buffer_load_dword v{XF}, v137, s[8:11], s29 offen sc1")
    A("s_lshl_b32 s62, s27, 7")
    A("s_lshl_b32 s40, s3, 12")
    A("s_add_u32 s62, s62, s40")
    A(f"s_add_u32 s62, s62, {C3_OFF}")
    A("s_waitcnt vmcnt(0)")
    A("s_barrier")
    for hh in range(4):
        for rd in range(2):
            A(f"ds_read_b64_tr_b16 {vr(XF+4*hh+2*rd,2)}, v{141+(hh&1)} offset:{56*hh + rd*4096}")
    A("s_cmp_ge_u32 s27, 28")
    A("s_cbranch_scc1 L_RPKSKIP")
    for hh in range(4):
        A(f"s_waitcnt lgkmcnt({6-2*hh})")
        A(f"buffer_store_dwordx4 {vr(XF+4*hh,4)}, v139, s[8:11], s29 offen sc1")
        A(f"s_add_u32 s29, s29, {28*1024}")
    A.label("L_RPKSKIP")
    A("s_waitcnt lgkmcnt(0)")
    if OPT["rpkwait"]:
        A("s_waitcnt vmcnt(0)")
        A("s_mov_b64 exec, 1")
        A("buffer_store_dword v138, v137, s[8:11], s62 offen sc1")
        A("s_mov_b64 exec, -1")
        A("s_barrier")
    else:
        A("s_barrier")
        A("s_waitcnt vmcnt(0)")
        A("s_mov_b64 exec, 1")
        A("buffer_store_dword v138, v137, s[8:11], s62 offen sc1")
        A("s_mov_b64 exec, -1")
    stamp(A, 14)
    marker_store()
    A("s_barrier")
    signal(0, "r")
    A("s_barrier")
    run_jobs(J("Q", [0, 1, 2, 3]), True)
    A("s_barrier")
    poll_issue()
    A("s_waitcnt vmcnt(0)")

    A.label("L_QPHASE")
    A("v_mov_b32 v3, v139")
    for j in range(4):
        A(f"v_add_u32 v{VOFF+j}, {j*4096}, v3")
    A("s_mov_b32 s34, 0")
    A("s_lshl_b32 s23, s24, 18")
    A(f"s_add_u32 s23, s23, {KV_OFF}")
    A("s_lshl_b32 s27, s3, 16")
    A("s_add_u32 s27, s27, s23")
    A("s_add_u32 s12, s6, s27"); A("s_addc_u32 s13, s7, 0"); A("s_mov_b32 s14, 65536"); A("s_mov_b32 s15, 0x00020000")
    for i in range(3):
        A(f"s_add_u32 s27, s3, {i+1}")
        A("s_and_b32 s27, s27, 3")
        A("s_mul_i32 s27, s27, 12288")
        A(f"s_add_u32 s27, s27, {L2_CMB + i*4096}")
        A(f"v_add_u32 v{4+i}, s27, v3")
    A("s_mul_i32 s27, s3, 12288")
    A(f"s_add_u32 s27, s27, {L2_CMB}")
    A("v_add_u32 v7, s27, v3")
    A("s_mov_b32 s28, 0")
    A("s_mov_b32 s29, -1")

    def kv_prologue_loads(b0=0, b1=4):
        for b in range(b0, b1):
            for s in range(2):
                A(f"buffer_load_dwordx4 {vr(Kreg(b,s),4)}, v{VOFF+b}, s[12:15], 0 offen offset:{1024*s} {LD}")
            if b < 3:
                for t in range(2):
                    A(f"buffer_load_dwordx4 {vr(Vreg(b,t),4)}, v{VOFF+b}, s[12:15], 0 offen offset:{2048+1024*t} {LD}")

    def zero_list():
        return [f"v_mov_b32 v{O+r}, 0" for r in range(64)] + [f"v_mov_b32 v{Vreg(3,1)+r}, 0" for r in range(4)]

    def zero_state():
        for z in zero_list():
            A(z)
        for r in range(4):
            A(f"v_mov_b32 v{P+4+r}, 0")

    def poll_check():
        A(f"v_cmp_ne_u32 vcc, s63, v{PL}")
        A("s_nop 1")
        A("s_and_b64 vcc, vcc, s[46:47]")
        A("s_cselect_b32 s40, 1, 0")

    def first_loads():
        for s in range(2):
            A(f"buffer_load_dwordx4 {vr(K0T+4*s,4)}, v3, s[8:11], s23 offen offset:{1024*s} {LD}")
        kv_prologue_loads(0, 1)

    for ks in range(4):
        A(f"v_mov_b32 v{XH+ks}, v{XQH+ks}")
    stamp(A, 3)
    poll_check()
    A("s_cbranch_scc1 L_ARETRY")
    first_loads()
    A("s_branch L_ADONE1")
    A.label("L_ARETRY")
    poll_issue()
    A.label("L_ADONE1")
    ZL = zero_list()
    run_jobs(J("Q", [4, 5, 6]), True, alt=True, fill=ZL)
    assert not ZL
    A("s_cmp_eq_u32 s40, 0")
    A("s_cbranch_scc1 L_AOUT")
    A("s_mov_b32 s27, 0")
    A.label("L_APOLL")
    A("s_waitcnt vmcnt(0)")
    poll_check()
    A("s_cbranch_scc0 L_AOK")
    A("s_add_u32 s27, s27, 1")
    A(f"s_cmp_gt_u32 s27, {SPIN_MAX}")
    A("s_cbranch_scc1 L_AOK")
    poll_issue()
    A("s_branch L_APOLL")
    A.label("L_AOK")
    first_loads()
    A.label("L_AOUT")
    stamp(A, 5)
    stamp(A, 1)
    A(f"v_mov_b32 v14, {f32bits(QSCALE):#x}")
    A(f"v_mov_b32 v15, {f32bits(QSCALE):#x}")
    A("s_lshl_b32 s27, s3, 11")
    A(f"s_add_u32 s27, s27, {L_QX}")
    A("v_add_u32 v12, s27, v3")
    for i in range(4):
        A(f"s_add_u32 s27, s3, {i+1}")
        A("s_and_b32 s27, s27, 3")
        A("s_lshl_b32 s27, s27, 11")
        A(f"s_add_u32 s27, s27, {L_QX}")
        A(f"v_add_u32 v{136+i}, s27, v3")
    QT = 16
    for p in range(8):
        A(f"v_pk_mul_f32 {vr(ACCQ+2*p,2)}, {vr(ACCQ+2*p,2)}, v[14:15]")
    for p in range(8):
        A(f"v_cvt_pk_bf16_f32 v{QT+p}, v{ACCQ+2*p}, v{ACCQ+2*p+1}")
    A("s_mov_b64 exec, s[28:29]")
    A(f"v_mov_b32 v{QT+6}, 0")
    A(f"v_mov_b32 v{QT+7}, 0")
    A("s_mov_b64 exec, -1")
    A(f"ds_write_b128 v12, {vr(QT,4)}")
    A("s_waitcnt vmcnt(4)")
    stamp(A, 6)
    t = T2
    mfma(A, t, K0T, QT, None)
    mfma(A, t, K0T + 4, QT + 4, t)
    for r in range(4):
        A(f"v_mov_b32 v{P+4+r}, 0")
    kv_prologue_loads(1, 2)
    A("s_nop 3")
    A(f"v_max3_f32 v{t}, v{t}, v{t+1}, v{t+2}")
    for k in range(3, 15, 2):
        A(f"v_max3_f32 v{t}, v{t}, v{t+k}, v{t+k+1}")
    A(f"v_max_f32 v{t}, v{t}, v{t+15}")
    A("s_mov_b64 exec, s[28:29]")
    A(f"v_cvt_pk_bf16_f32 v{QT+6}, -v{t}, 0")
    A("s_mov_b64 exec, -1")
    A(f"ds_write_b128 v12, {vr(QT+4,4)} offset:1024")
    A("s_waitcnt lgkmcnt(0)")
    A("s_barrier")
    for i in range(4):
        for s in range(2):
            A(f"ds_read_b128 {vr(Qreg(i,s),4)}, v{136+i} offset:{1024*s}")
    kv_prologue_loads(2, 4)
    A(f"v_mov_b32 v{K0T}, {L_FLAG}")
    A("s_waitcnt lgkmcnt(0)")

    A.label("L_MAIN")
    A("s_waitcnt vmcnt(10)")
    A("s_mov_b32 s30, 16384")
    A("s_mov_b32 s31, 0")
    mfma(A, SB[0], Kreg(0, 0), Qreg(0, 0), None)
    mfma(A, SB[0], Kreg(0, 1), Qreg(0, 1), SB[0])
    A("s_nop 7")
    A("s_nop 3")
    stamp(A, 7)
    cstamp(A, 12)
    L = SB[0]

    def body(last, chk=True):
        for tb in range(4):
            for qt in range(4):
                u = tb * 4 + qt
                sc = SB[u % 2]
                sn = SB[(u + 1) % 2]
                ntb, nqt = (tb, qt + 1) if qt < 3 else ((tb + 1) % 4, 0)
                ptb, pqt = (tb, qt - 1) if qt > 0 else ((tb + 3) % 4, 3)
                fin = last and tb == 3 and qt == 3

                def ex(k, extra=()):
                    extra = list(extra)
                    for j in range(4):
                        A(f"v_exp_f32 v{sc+4*k+j}, v{sc+4*k+j}")
                        if extra:
                            A(extra.pop(0))
                    assert not extra
                    A(f"v_cvt_pk_bf16_f32 v{P+2*k}, v{sc+4*k}, v{sc+4*k+1}")
                    A(f"v_cvt_pk_bf16_f32 v{P+2*k+1}, v{sc+4*k+2}, v{sc+4*k+3}")
                aft = [None, None, None, None]
                if qt == 3 and not last:
                    for s in range(2):
                        aft[s] = f"buffer_load_dwordx4 {vr(Kreg(tb,s),4)}, v{VOFF+tb}, s[12:15], s30 offen offset:{1024*s} {LD}"
                if qt == 1 and (not last or tb == 0):
                    b_ = (tb + 3) % 4
                    so = "s30" if tb >= 1 else "s31"
                    for t in range(2):
                        aft[t] = f"buffer_load_dwordx4 {vr(Vreg(b_,t),4)}, v{VOFF+b_}, s[12:15], {so} offen offset:{2048+1024*t} {LD}"
                if qt == 2:
                    if not last:
                        aft[3] = "s_waitcnt vmcnt(8)"
                    elif tb < 3:
                        aft[3] = f"s_waitcnt vmcnt({[8, 4, 0][tb]})"
                if chk and not last and tb == 3 and qt == 0:
                    aft[0] = f"ds_read_b32 v{K0T+1}, v{K0T} offset:8"
                if chk and not last and tb == 3 and qt == 2:
                    aft[0] = "s_waitcnt lgkmcnt(0)"
                    aft[1] = f"v_readfirstlane_b32 s40, v{K0T+1}"
                if last and tb == 3 and qt >= 2:
                    i = qt - 2
                    for g in range(4):
                        aft[g] = f"ds_write_b128 v{4+i}, {vr(O+16*i+4*g,4)} offset:{1024*g}"
                if not fin:
                    mfma(A, sn, Kreg(ntb, 0), Qreg(nqt, 0), None)
                if aft[0]:
                    A(aft[0])
                ex(0)
                mfma(A, O + 16 * pqt, Vreg(ptb, 1), P + 4, O + 16 * pqt)
                if aft[1]:
                    A(aft[1])
                ex(1)
                if not fin:
                    mfma(A, sn, Kreg(ntb, 1), Qreg(nqt, 1), sn)
                if aft[2]:
                    A(aft[2])
                ex(2)
                mfma(A, O + 16 * qt, Vreg(tb, 0), P, O + 16 * qt)
                if aft[3]:
                    A(aft[3])
                e_ = []
                if tb == 3 and qt == 3 and not last:
                    e_ = ["s_add_u32 s31, s31, 16384", "s_add_u32 s30, s30, 16384", "s_cmp_lt_u32 s31, 49152"]
                ex(3, e_)

    if OPT["unroll"]:
        body(False, chk=True)
        A("s_cmp_lg_u32 s40, 0")
        A("s_cbranch_scc1 L_BOK")
        A("s_mov_b32 s27, 0")
        A.label("L_BWAIT")
        A(f"ds_read_b32 v{K0T+1}, v{K0T} offset:8")
        A("s_waitcnt lgkmcnt(0)")
        A(f"v_readfirstlane_b32 s40, v{K0T+1}")
        A("s_add_u32 s27, s27, 1")
        A(f"s_cmp_gt_u32 s27, {SPIN_MAX*64}")
        A("s_cbranch_scc1 L_BOK")
        A("s_cmp_eq_u32 s40, 0")
        A("s_cbranch_scc1 L_BWAIT")
        A.label("L_BOK")
        body(False, chk=False)
        body(False, chk=False)
    else:
        A.raw(".p2align 6")
        A.label("L_LOOP")
        body(False)
        A("s_cbranch_scc0 L_LAST")
        A("s_cmp_lg_u32 s40, 0")
        A("s_cbranch_scc1 L_LOOP")
        A("s_mov_b32 s27, 0")
        A.label("L_BWAIT")
        A(f"ds_read_b32 v{K0T+1}, v{K0T} offset:8")
        A("s_waitcnt lgkmcnt(0)")
        A(f"v_readfirstlane_b32 s40, v{K0T+1}")
        A("s_add_u32 s27, s27, 1")
        A(f"s_cmp_gt_u32 s27, {SPIN_MAX*64}")
        A("s_cbranch_scc1 L_LOOP")
        A("s_cmp_eq_u32 s40, 0")
        A("s_cbranch_scc1 L_BWAIT")
        A("s_branch L_LOOP")
    A.label("L_LAST")
    body(True)
    A("s_nop 1")
    mfma(A, O + 48, Vreg(3, 1), P + 4, O + 48)
    stamp(A, 8)
    cstamp(A, 13)
    for g in range(4):
        A(f"ds_write_b128 v6, {vr(O+32+4*g,4)} offset:{1024*g}")
    A(f"v_mov_b32 v{L}, {f32bits(2.0**40):#x}")
    A(f"v_mov_b32 v{L+1}, {f32bits(2.0**-40):#x}")
    A("s_add_u32 s26, s63, 1")
    A("s_nop 0")
    A(f"v_mov_b32 v{L+8}, 0")
    A(f"v_mov_b32 v{L+9}, s26")
    A("s_cmp_lg_u32 s34, 0")
    A("s_cbranch_scc1 L_NOFLAG")
    A(f"v_min3_f32 v{L+3}, v{O+12}, v{O+28}, v{O+44}")
    A(f"v_add_f32 v{L+4}, v{O+12}, v{O+28}")
    A(f"v_add_f32 v{L+5}, v{O+44}, v{O+60}")
    A(f"v_min_f32 v{L+3}, v{L+3}, v{O+60}")
    A(f"v_add_f32 v{L+4}, v{L+4}, v{L+5}")
    A(f"v_cmp_nlt_f32 vcc, v{L+4}, v{L}")
    A(f"v_cmp_nge_f32 s[40:41], v{L+3}, v{L+1}")
    A("s_cmp_eq_u32 s3, 0")
    A("s_cselect_b32 s41, s41, 0")
    A("s_or_b32 s41, s41, vcc_hi")
    A("s_cbranch_scc0 L_NOFLAG")
    A(f"v_mov_b32 v{L+5}, {L2_FLAG}")
    A(f"v_mov_b32 v{L+6}, 1")
    A(f"ds_write_b32 v{L+5}, v{L+6}")
    A.label("L_NOFLAG")
    A(f"v_mov_b32 v{L+5}, {L2_FLAG}")
    A("s_waitcnt lgkmcnt(0)")
    A("s_barrier")
    stamp(A, 9)
    R = KVB
    A(f"ds_read_b32 v{L+6}, v{L+5}")
    for sl in range(3):
        for g in range(4):
            A(f"ds_read_b128 {vr(R+16*sl+4*g,4)}, v7 offset:{4096*sl+1024*g}")
    A("s_waitcnt lgkmcnt(12)")
    A(f"v_readfirstlane_b32 s26, v{L+6}")
    A("s_nop 3")
    A("s_cmp_gt_u32 s26, s34")
    A("s_cbranch_scc1 L_FALLBACK")

    def hint():
        A("s_mov_b64 exec, 1")
        A(f"buffer_store_dword v{L+9}, v{L+8}, s[8:11], s33 offen sc1")
        A("s_mov_b64 exec, -1")
    if OPT["hint"] == "b8":
        hint()
    OO = O + 48
    for sl in range(3):
        for g in range(4):
            A(f"s_waitcnt lgkmcnt({11-4*sl-g})")
            for p in range(2):
                A(f"v_pk_add_f32 {vr(OO+4*g+2*p,2)}, {vr(OO+4*g+2*p,2)}, {vr(R+16*sl+4*g+2*p,2)}")
    A(f"v_mov_b32 v{L}, v{OO+12}")
    A(f"v_mov_b32 v{L+1}, v{OO+12}")
    A("s_nop 1")
    A(f"v_permlane32_swap_b32 v{L}, v{L+1}")
    A("s_nop 0")
    A(f"v_rcp_f32 v{L+2}, v{L+1}")
    A("s_nop 0")
    A(f"v_mov_b32 v{L+3}, v{L+2}")
    for p in range(8):
        A(f"v_pk_mul_f32 {vr(OO+2*p,2)}, {vr(OO+2*p,2)}, {vr(L+2,2)}")
    for p in range(8):
        A(f"v_cvt_pk_bf16_f32 v{R+p}, v{OO+2*p}, v{OO+2*p+1}")
    A("s_mov_b64 exec, s[28:29]")
    A(f"v_mov_b32 v{R+6}, 0")
    A(f"v_mov_b32 v{R+7}, 0")
    A("s_mov_b64 exec, -1")
    for p in range(8):
        A(f"v_min_u32 v{R+p}, -2, v{R+p}")
        if p % 4 == 3:
            A(f"buffer_store_dwordx4 {vr(R+p-3,4)}, v3, s[8:11], s35 offen offset:{1024*(p//4)} sc1")
    if OPT["hint"] == "drain":
        A("s_waitcnt vmcnt(0)")
    if OPT["hint"] != "b8":
        hint()
    stamp(A, 10)
    if STAMP:
        A("s_waitcnt vmcnt(2)")
        stamp(A, 11)
    A("s_branch L_END")

    A.label("L_FALLBACK")
    A("s_mov_b32 s34, 1")
    A("s_waitcnt vmcnt(0) lgkmcnt(0)")
    A("s_mov_b64 exec, s[28:29]")
    for i in range(4):
        A(f"v_mov_b32 v{Qreg(i,1)+2}, 0")
        A(f"v_mov_b32 v{Qreg(i,1)+3}, 0")
    A("s_mov_b64 exec, -1")
    M = T2
    for i in range(4):
        A(f"v_mov_b32 v{M+i}, 0xff800000")
    A("s_mov_b32 s31, 0")
    A.label("L_MAXLOOP")
    for s in range(2):
        A(f"buffer_load_dwordx4 {vr(K0T+4*s,4)}, v3, s[12:15], s31 offen offset:{1024*s} {LD}")
    A("s_waitcnt vmcnt(0)")
    for i in range(4):
        t = O + 16 * i
        mfma(A, t, K0T, Qreg(i, 0), None)
        mfma(A, t, K0T + 4, Qreg(i, 1), t)
    A("s_nop 7")
    A("s_nop 7")
    for i in range(4):
        t = O + 16 * i
        for k in range(0, 16, 2):
            A(f"v_max3_f32 v{M+i}, v{M+i}, v{t+k}, v{t+k+1}")
    A("s_add_u32 s31, s31, 4096")
    A("s_cmp_lt_u32 s31, 65536")
    A("s_cbranch_scc1 L_MAXLOOP")
    for i in range(4):
        A(f"v_mov_b32 v{M+4+i}, v{M+i}")
    A("s_nop 1")
    for i in range(4):
        A(f"v_permlane32_swap_b32 v{M+i}, v{M+4+i}")
    A("s_nop 1")
    for i in range(4):
        A(f"v_max_f32 v{M+i}, v{M+i}, v{M+4+i}")
    A(f"v_and_b32 v{M+8}, 31, v2")
    A(f"v_lshlrev_b32 v{M+8}, 2, v{M+8}")
    for i in range(4):
        A(f"s_add_u32 s26, s3, {i+1}")
        A("s_and_b32 s26, s26, 3")
        A("s_lshl_b32 s26, s26, 9")
        A(f"s_add_u32 s26, s26, {L2_MX}")
        A(f"v_add_u32 v{M+9+i}, s26, v{M+8}")
        A("s_lshl_b32 s27, s3, 7")
        A(f"v_add_u32 v{M+13}, s27, v{M+9+i}")
        A(f"ds_write_b32 v{M+13}, v{M+i}")
    A("s_waitcnt lgkmcnt(0)")
    A("s_barrier")
    for i in range(4):
        for w in range(4):
            A(f"ds_read_b32 v{O+4*i+w}, v{M+9+i} offset:{128*w}")
            if (4 * i + w) % 8 == 7:
                A("s_waitcnt lgkmcnt(0)")
    for i in range(4):
        t = O + 4 * i
        A(f"v_max3_f32 v{t}, v{t}, v{t+1}, v{t+2}")
        A(f"v_max_f32 v{t}, v{t}, v{t+3}")
        A(f"v_sub_f32 v{t}, 0, v{t}")
        A(f"v_cvt_pk_bf16_f32 v{t+1}, v{t}, 0")
        A(f"v_lshlrev_b32 v{t+2}, 16, v{t+1}")
        A(f"v_sub_f32 v{t}, v{t}, v{t+2}")
        A(f"v_cvt_pk_bf16_f32 v{t+2}, v{t}, 0")
        A(f"v_lshlrev_b32 v{t+3}, 16, v{t+2}")
        A(f"v_sub_f32 v{t}, v{t}, v{t+3}")
        A(f"v_or_b32 v{t+1}, v{t+1}, v{t+3}")
        A(f"v_cvt_pk_bf16_f32 v{t+2}, v{t}, 0")
    A("s_mov_b64 exec, s[28:29]")
    for i in range(4):
        t = O + 4 * i
        A(f"v_mov_b32 v{Qreg(i,1)+2}, v{t+1}")
        A(f"v_mov_b32 v{Qreg(i,1)+3}, v{t+2}")
    A("s_mov_b64 exec, -1")
    kv_prologue_loads()
    zero_state()
    A(f"v_mov_b32 v{K0T}, {L_FLAG}")
    A("s_branch L_MAIN")

    A.label("L_END")
    stamp_flush(A)
    A.label("L_EXIT")
    A("s_endpgm")
    A.label("L_CODEEND")


HEADER = """; MHA block (B=1, S=2048, D=448, H=16, Dh=28) for gfx950 as ONE persistent launch, 256 workgroups x 8 waves.
"""


def main(out):
    A = Asm()
    A.raw(HEADER.rstrip())
    A.raw(f"; @launch grid=(256,1,1) block=(512,1,1) lds={LDS_TOTAL}")
    A.raw('.amdgcn_target "amdgcn-amd-amdhsa--gfx950"')
    A.raw(".text")
    gen(A)
    A.raw('.section .rodata,"a"')
    A.raw(f""".p2align 6
.amdhsa_kernel {NAME}
  .amdhsa_next_free_vgpr 256
  .amdhsa_next_free_sgpr {102 if STAMP else 64}
  .amdhsa_accum_offset 256
  .amdhsa_group_segment_fixed_size 0
  .amdhsa_kernarg_size 48
  .amdhsa_user_sgpr_count 2
  .amdhsa_user_sgpr_kernarg_segment_ptr 1
  .amdhsa_system_sgpr_workgroup_id_x 1
.end_amdhsa_kernel""")
    open(out, "w").write(A.text())


if __name__ == "__main__":
    out = sys.argv[1] if len(sys.argv) > 1 else "standalone__mha_block__prompt.s"
    for a in sys.argv[2:]:
        if a == "stamp":
            STAMP = True
        elif a == "dbgstamp":
            STAMP = True
            DBGSTAMP = True
        elif "=" in a:
            k, v = a.split("=", 1)
            assert k in OPT, k
            OPT[k] = v
    main(out)
```
